```python
import torch

def _softmax(x, axis=-1):
    return torch.softmax(x, dim=axis)
def _gelu(x):
    return torch.nn.functional.gelu(x, approximate="tanh")
def _silu(x):
    return torch.nn.functional.silu(x)
def _sigmoid(x):
    return torch.sigmoid(x)
def _layernorm(x, axis=-1, eps=1e-5):
    m = x.mean(dim=axis, keepdim=True)
    v = x.var(dim=axis, keepdim=True, unbiased=False)
    return (x - m) / torch.sqrt(v + eps)
def _scatter_add(tgt, idx, src, axis=0):
    return tgt.clone().index_add_(axis, idx, src)
def _segment_sum(src, seg, n):
    out = torch.zeros((n,) + src.shape[1:], dtype=src.dtype)
    return out.index_add_(0, seg, src)
def _pad(x, pw):
    flat = tuple(v for pair in reversed(pw) for v in pair)
    return torch.nn.functional.pad(x, flat)

kernel_name = 'recurrent_scan__sliding_block__geglu_ffn__prompt'

def setup_inputs():

    _w = (lambda a: (lambda t: t.to(torch.bfloat16) if t.is_floating_point() else t)(torch.as_tensor(a)))
    def _A_setup():
        B, S, D = 1, 2048, 512
        return {
            "x": _w((lambda *s: torch.randn(*s, dtype=torch.bfloat16) * 0.05)(B, S, D)),
            "wqkv": _w((lambda *s: torch.randn(*s, dtype=torch.bfloat16) * 0.05)(D, 3 * D)),
            "wo": _w((lambda *s: torch.randn(*s, dtype=torch.bfloat16) * 0.05)(D, D)),
        }
    _A_in = _A_setup()

    def _B_setup():
        B, S, D, F = 1, 2048, 512, 1792
        return {
            "x": _w((lambda *s: torch.randn(*s, dtype=torch.bfloat16) * 0.05)(B, S, D)),
            "w_gate": _w((lambda *s: torch.randn(*s, dtype=torch.bfloat16) * 0.05)(D, F)),
            "w_up": _w((lambda *s: torch.randn(*s, dtype=torch.bfloat16) * 0.05)(D, F)),
            "w_down": _w((lambda *s: torch.randn(*s, dtype=torch.bfloat16) * 0.05)(F, D)),
        }
    _B_in = _B_setup()

    return {
        "A_x": _A_in["x"],
        "A_wqkv": _A_in["wqkv"],
        "A_wo": _A_in["wo"],
        "B_x": _B_in["x"],
        "B_w_gate": _B_in["w_gate"],
        "B_w_up": _B_in["w_up"],
        "B_w_down": _B_in["w_down"],
    }

def reference(A_x, A_wqkv, A_wo, B_x, B_w_gate, B_w_up, B_w_down):
    def _A_ref(x, wqkv, wo):
        B, S, D = x.shape
        H = 32; Dh = D // H; W = 256
        qkv = (lambda x, *d: x.permute(*d))((x @ wqkv).reshape(B, S, 3, H, Dh), 2, 0, 3, 1, 4)
        q, k, v = qkv[0], qkv[1], qkv[2]
        scores = torch.einsum("bhqd,bhkd->bhqk", q, k) * (Dh ** -0.5)
        idx = torch.arange(S)
        mask = (idx[:, None] - idx[None, :] >= 0) & (idx[:, None] - idx[None, :] < W)
        scores = torch.where(mask[None, None], scores, -1e9)
        p = _softmax(scores, axis=-1)
        o = torch.einsum("bhqk,bhkd->bhqd", p, v)
        return (lambda x, *d: x.permute(*d))(o, 0, 2, 1, 3).reshape(B, S, D) @ wo

    def _B_ref(x, w_gate, w_up, w_down):
        return (_gelu(x @ w_gate) * (x @ w_up)) @ w_down

    x = A_x
    xn = _layernorm(x, axis=-1)
    s = _A_ref(xn, A_wqkv, A_wo)
    g = _silu(_B_ref(xn, B_w_gate, B_w_up, B_w_down))
    return x + s * g
```

```python
import re

TRANS = ("v_exp_f32", "v_log_f32", "v_rcp_f32", "v_rsq_f32", "v_sqrt_f32", "v_sin_f32", "v_cos_f32")

def _regs(tok):
    tok = tok.strip()
    tok = tok.lstrip('-')
    m = re.fullmatch(r"abs\((.*)\)", tok)
    if m: tok = m.group(1)
    m = re.fullmatch(r"\|(.*)\|", tok)
    if m: tok = m.group(1)
    m = re.fullmatch(r"([vsa])(\d+)", tok)
    if m: return [(m.group(1), int(m.group(2)))]
    m = re.fullmatch(r"([vsa])\[(\d+):(\d+)\]", tok)
    if m: return [(m.group(1), i) for i in range(int(m.group(2)), int(m.group(3)) + 1)]
    if tok == "vcc": return [('s', 106), ('s', 107)]
    if tok == "exec": return [('s', 126), ('s', 127)]
    if tok == "m0": return [('s', 124)]
    if tok == "exec_hi": return [('s', 127)]
    if tok == "exec_lo": return [('s', 126)]
    return []

class Ins:
    __slots__ = ("text", "op", "ops", "kind", "wr", "rd", "passes", "srcc", "srcab", "states", "stdata")
    def __init__(self, text):
        self.text = text
        t = text.split(";")[0].strip()
        parts = t.split(None, 1)
        self.op = parts[0]
        rest = parts[1] if len(parts) > 1 else ""
        ops, depth, cur = [], 0, ""
        for ch in rest:
            if ch in "[(": depth += 1
            if ch in "])": depth -= 1
            if ch == "," and depth == 0:
                ops.append(cur.strip()); cur = ""
            else: cur += ch
        if cur.strip(): ops.append(cur.strip())
        if ops:
            last = ops[-1].split()
            ops[-1] = last[0]
            mods = last[1:]
        else: mods = []
        self.ops = ops
        op = self.op
        self.wr, self.rd, self.passes, self.srcc, self.srcab, self.stdata = [], [], 0, [], [], []
        self.states = 1
        R = _regs
        if op == "s_nop":
            self.kind = "nop"; self.states = int(ops[0], 0) + 1
        elif op.startswith("v_mfma"):
            self.kind = "mfma"
            self.passes = 8 if "32x32" in op else 4
            self.wr = R(ops[0]); self.srcab = R(ops[1]) + R(ops[2]); self.srcc = R(ops[3])
            self.rd = self.srcab + self.srcc
        elif op.startswith("v_permlane"):
            self.kind = "perm"; self.wr = R(ops[0]) + R(ops[1]); self.rd = list(self.wr)
        elif op.startswith("v_cmp"):
            self.kind = "valu"; self.wr = R(ops[0]); self.rd = sum((R(o) for o in ops[1:]), [])
        elif op in ("v_readfirstlane_b32", "v_readlane_b32"):
            self.kind = "rdlane"; self.wr = R(ops[0]); self.rd = sum((R(o) for o in ops[1:]), [])
        elif op.startswith("v_dot"):
            self.kind = "dot"; self.wr = R(ops[0]); self.rd = sum((R(o) for o in ops[1:]), [])
            if op.startswith("v_dot2c"): self.srcc = R(ops[0]); self.rd += R(ops[0])
            else: self.srcc = R(ops[3])
        elif op.startswith("v_"):
            base = op.replace("_e32", "").replace("_e64", "").replace("_dpp", "")
            self.kind = "trans" if base in TRANS else ("dpp" if op.endswith("_dpp") else "valu")
            self.wr = R(ops[0]); srcs = ops[1:]
            if base in ("v_add_co_u32", "v_sub_co_u32", "v_addc_co_u32", "v_subb_co_u32", "v_mad_u64_u32"):
                self.wr += R(ops[1]); srcs = ops[2:]
            self.rd = sum((R(o) for o in srcs), [])
            if base in ("v_fmac_f32", "v_pk_fmac_f16"): self.rd += R(ops[0])
            if base == "v_cndmask_b32" and len(ops) == 3: self.rd += R("vcc")
        elif op.startswith("ds_"):
            self.kind = "ds"
            if op.startswith("ds_read") or op.startswith("ds_bpermute") or op.startswith("ds_swizzle") or op.startswith("ds_permute"):
                self.wr = R(ops[0]); self.rd = sum((R(o) for o in ops[1:]), [])
            else:
                self.rd = sum((R(o) for o in ops), [])
        elif op.startswith("buffer_") or op.startswith("global_"):
            self.kind = "vmem"
            islds = ("lds" in mods) or ("_lds_" in op)
            if op in ("buffer_wbl2", "buffer_inv"):
                pass
            elif "load" in op and not islds:
                self.wr = R(ops[0]); self.rd = sum((R(o) for o in ops[1:]), [])
            elif islds:
                self.rd = sum((R(o) for o in ops), []) + R("m0"); self.kind = "vmem_lds"
            else:
                self.rd = sum((R(o) for o in ops), [])
                if "atomic" in op and "sc0" in mods:
                    self.wr = R(ops[0])
                if op.endswith("x4") or op.endswith("x3"):
                    self.stdata = R(ops[0]) if op.startswith("buffer_") else R(ops[1])
        elif op.startswith("s_"):
            self.kind = "salu"
            if op.startswith("s_cmp") or op.startswith("s_cbranch") or op in ("s_branch", "s_barrier", "s_waitcnt", "s_endpgm", "s_sleep", "s_setprio") or op.startswith("s_bitcmp"):
                self.rd = sum((R(o) for o in ops), [])
            else:
                self.wr = R(ops[0]) if ops else []
                self.rd = sum((R(o) for o in ops[1:]), [])
                if "saveexec" in op: self.wr += R("exec")
        else:
            raise ValueError("unknown instr: " + text)

VALU_KINDS = ("valu", "trans", "dpp", "perm", "rdlane", "dot")

def required(prev, cur):
    need = 0
    pw, cr, cw = set(prev.wr), set(cur.rd), set(cur.wr)
    pv = {r for r in pw if r[0] in 'va'}
    ps = {r for r in pw if r[0] == 's'}
    if prev.kind in VALU_KINDS:
        if cur.kind == "mfma" and pv & cr: need = max(need, 3 if prev.kind == "dot" else 2)
        if cur.kind == "perm" and pv & cr: need = max(need, 2)
        if cur.kind == "dpp" and pv & cr: need = max(need, 2)
        if cur.kind == "rdlane" and pv & cr: need = max(need, 1)
        if prev.kind == "trans" and cur.kind in VALU_KINDS + ("mfma",) and cur.kind != "trans" and pv & cr: need = max(need, 1)
        if prev.kind == "trans" and cur.kind in ("vmem", "ds", "vmem_lds") and pv & cr: need = max(need, 1)
        if prev.kind == "dot":
            if cur.kind == "dot" and cur.op == prev.op:
                if pv & (cr - set(cur.srcc)): need = max(need, 3)
            elif pv & (cr | cw): need = max(need, 3)
        if ps:
            if cur.kind in VALU_KINDS + ("mfma",) and ps & cr: need = max(need, 4 if cur.kind == "rdlane" else 2)
            if cur.kind in ("vmem", "vmem_lds") and ps & cr: need = max(need, 5)
            if cur.kind == "salu" and ps & cr: need = max(need, 1)
            if ('s', 126) in ps:
                if cur.kind in ("mfma", "perm", "rdlane"): need = max(need, 4)
                if cur.kind == "dpp": need = max(need, 5)
    if prev.kind == "mfma":
        p = prev.passes
        if cur.kind == "mfma":
            if pv & set(cur.srcab): need = max(need, {4: 8, 8: 12}[p])
            if pv & set(cur.srcc):
                if not (prev.wr == cur.srcc and prev.passes == cur.passes): need = max(need, {4: 6, 8: 10}[p])
            elif pv & cw: need = max(need, {4: 8, 8: 12}[p])
        else:
            if pv & (cr | cw): need = max(need, {4: 8, 8: 12}[p])
        if cur.kind in VALU_KINDS and set(prev.srcc) & cw: need = max(need, {4: 3, 8: 7}[p])
        if cur.kind in ("ds", "vmem") and set(prev.srcc) & cw: need = max(need, {4: 3, 8: 7}[p])
    if prev.kind == "salu":
        if ('s', 124) in ps and cur.kind == "vmem_lds": need = max(need, 1)
    if prev.stdata:
        if set(prev.stdata) & cw: need = max(need, 2)
    return need

class Asm:
    def __init__(self):
        self.items = []
    def __call__(self, s):
        for line in s.strip().split("\n"):
            line = line.strip()
            if not line or line.startswith(";"): continue
            if line.endswith(":"): self.items.append(('l', line[:-1]))
            else: self.items.append(('i', line))
    def label(self, l): self.items.append(('l', l))
    def raw(self, s): self.items.append(('r', s))
    def extend(self, lst):
        for s in lst: self(s)
    def render(self):
        items = self.items
        parsed = [(k, s, Ins(s) if k == 'i' else None) for k, s in items]
        labelpos = {s: i for i, (k, s, _) in enumerate(parsed) if k == 'l'}
        def need_for(hist, ins):
            need = 0; dist = 0
            for p in reversed(hist[-24:]):
                r = required(p, ins)
                if r - dist > need: need = r - dist
                dist += p.states
                if dist >= 20: break
            return need
        out = []; hists = [[]]; fwd = {}; nnop = 0
        def emit_nops(need):
            nonlocal nnop
            while need > 0:
                k = min(need, 16)
                n = Ins(f"s_nop {k-1}"); out.append(f"  s_nop {k-1}")
                for h in hists: h.append(n)
                need -= k; nnop += 1
        for idx, (kind, s, ins) in enumerate(parsed):
            if kind == 'r':
                out.append(s); hists = [[]]; continue
            if kind == 'l':
                out.append(s + ":")
                for h in fwd.pop(s, []): hists.append(h)
                continue
            need = max(need_for(h, ins) for h in hists) if hists else 0
            isbr = ins.op.startswith("s_cbranch") or ins.op == "s_branch"
            if isbr and ins.ops[0] in labelpos and labelpos[ins.ops[0]] < idx:
                head = []
                j = labelpos[ins.ops[0]]
                while len(head) < 22 and j < idx:
                    if parsed[j][0] == 'i': head.append(parsed[j][2])
                    j += 1
                for h in hists:
                    off = 1
                    for c in head:
                        dist = off
                        for p in reversed(h[-24:]):
                            r = required(p, c)
                            if r - dist > need: need = r - dist
                            dist += p.states
                            if dist >= 20: break
                        off += c.states
                        if off >= 20: break
            emit_nops(need)
            out.append("  " + s)
            for h in hists: h.append(ins)
            if isbr and ins.ops[0] in labelpos and labelpos[ins.ops[0]] > idx:
                fwd.setdefault(ins.ops[0], []).extend(list(h[-24:]) for h in hists)
            if ins.op in ("s_branch", "s_endpgm"):
                hists = []
            if len(hists) > 1:
                uniq = []
                for h in hists:
                    tail = h[-24:]
                    if not any(len(u[-24:]) == len(tail) and all(a is b for a, b in zip(u[-24:], tail)) for u in uniq): uniq.append(h)
                hists = uniq
            if not hists: hists = [[]] if ins.op not in ("s_branch", "s_endpgm") else []
            if ins.op in ("s_branch", "s_endpgm"): hists = [[]]
        self.nnop = nnop
        return "\n".join(out) + "\n"

def interleave(main, fill, start=0, per=None):
    out = []
    n = len(main); m = len(fill); fi = 0
    slots = max(1, n - start)
    for i, x in enumerate(main):
        out.append(x)
        if i >= start:
            tgt = (m * (i - start + 1) + slots - 1) // slots if per is None else min(m, per * (i - start + 1))
            while fi < tgt: out.append(fill[fi]); fi += 1
    while fi < m: out.append(fill[fi]); fi += 1
    return out
```

```python
import sys, math
sys.path.insert(0, "gen")
from asmlib import Asm, interleave

NAME = "recurrent_scan__sliding_block__geglu_ffn__prompt"
WS_H = 0
WS_O = 56 * 128 * 1024
WS_QKV = 72 * 128 * 1024
WS_END = WS_QKV + 96 * 65536
LOG2E = 1.4426950408889634
QSCALE = 0.25 * LOG2E
GK1 = -2.0 * math.sqrt(2.0 / math.pi) * LOG2E
GK2 = GK1 * 0.044715

import struct
def f2u(x): return struct.unpack("<I", struct.pack("<f", x))[0]
def hx(x): return "0x%08x" % f2u(x)

def vr(b, n=4): return f"v[{b}:{b+n-1}]"

class VM:
    def __init__(self): self.q = []
    def issue(self, tag, n=1): self.q += [tag] * n
    def wait(self, tag):
        idx = max(i for i, t in enumerate(self.q) if t == tag)
        n = len(self.q) - 1 - idx
        self.q = self.q[idx + 1:]
        assert n <= 63
        return f"s_waitcnt vmcnt({n})"

def prologue_ptrs(a):
    a("""
    s_load_dwordx16 s[4:19], s[0:1], 0
    s_load_dwordx4 s[20:23], s[0:1], 64
    """)

def srd(a, d, lo, hi, size):
    a(f"s_mov_b32 s{d}, s{lo}")
    a(f"s_and_b32 s{d+1}, s{hi}, 0xffff")
    a(f"s_mov_b32 s{d+2}, {size}")
    a(f"s_mov_b32 s{d+3}, 0x20000")

def gen_g1(a, st_flags=""):
    L = "g1"
    SX, SU0, SU1, SU2, SPG, SPU, SWS = 24, 28, 32, 36, 40, 44, 48
    sW, sMG, sNH, sRB, sCGQ, sCGL, sTB, sROT = 52, 53, 54, 55, 56, 57, 58, 59
    sP12, sKX, sK0, sK12, sT0, sT1, sT2, sLX, sLW, sONES = 60, 61, 62, 63, 64, 65, 66, 67, 68, 69
    sU0, sU1c, sU2c, sPF, sXB, sSC0, sSC1, sSC2, sP0 = 70, 71, 72, 73, 74, 75, 76, 77, 78
    sK1b = 79
    vL, vX0, vX1, vWq, vW12, vWg = 1, 2, 3, 4, 5, 6
    vXR = [8, 9]
    vWR = [10, 11]
    vXRb = [12, 13]; vWRb = [14, 15]
    vS, vQ = 16, 17
    vCS = list(range(18, 24))
    vT = list(range(24, 32))
    F = [32, 56]
    ACC = 80
    XF = 128
    def xf(rt, kb): return XF + (kb * 2 + rt) * 4
    def wf(buf, u, ct): return F[buf] + (u * 2 + ct) * 4
    def acc(u, rt, ct): return ACC + ((u * 2 + rt) * 2 + ct) * 4
    SLOT = 40960
    SCR = 3 * SLOT
    SCR_CS = SCR + 1024

    a(f"s_cmp_ge_u32 s2, 256")
    a(f"s_cbranch_scc1 {L}_end")
    prologue_ptrs(a)
    a(f"""
    v_and_b32 v{vL}, 63, v0
    v_lshrrev_b32 v{vT[0]}, 6, v0
    v_readfirstlane_b32 s{sW}, v{vT[0]}
    s_and_b32 s{sT0}, s2, 7
    s_lshr_b32 s{sT1}, s2, 3
    s_and_b32 s{sRB}, s{sT0}, 1
    s_lshl_b32 s{sRB}, s{sRB}, 3
    s_and_b32 s{sT2}, s{sT1}, 7
    s_add_u32 s{sRB}, s{sRB}, s{sT2}
    s_lshr_b32 s{sCGQ}, s{sT0}, 1
    s_lshr_b32 s{sCGL}, s{sT1}, 3
    s_lshl_b32 s{sROT}, s{sCGL}, 1
    s_add_u32 s{sROT}, s{sROT}, s{sT2}
    s_lshr_b32 s{sMG}, s{sW}, 1
    s_and_b32 s{sNH}, s{sW}, 1
    s_mov_b32 s{sONES}, 0x3f803f80
    s_lshl_b32 s{sLX}, s{sW}, 11
    s_lshl_b32 s{sLW}, s{sW}, 10
    s_lshl_b32 s{sXB}, s{sRB}, 17
    """)
    a(f"""
    s_mul_i32 s{sT0}, s{sCGQ}, 3
    s_add_u32 s{sT1}, s{sT0}, s{sCGL}          ; a
    s_add_u32 s{sT2}, s{sT0}, 12               ; 12+3cgq
    s_cmp_eq_u32 s{sCGL}, 3
    s_cselect_b32 s{sTB}, 1, 0
    s_cselect_b32 s{sU0}, s{sT2}, s{sT1}
    s_lshl_b32 s{sP0}, s{sT1}, 1
    s_add_u32 s{sT1}, s{sP0}, 1
    s_add_u32 s{sT2}, s{sCGQ}, 24
    s_cmp_eq_u32 s{sCGL}, 3
    s_cselect_b32 s{sPF}, s{sT2}, s{sT1}
    s_movk_i32 s{sP12}, 3584
    s_cselect_b32 s{sP12}, 3072, s{sP12}
    """)
    a(f"""
    v_lshrrev_b32 v{vT[0]}, 3, v{vL}                 ; rho' = i>>3
    v_and_b32 v{vT[1]}, 7, v{vL}                     ; pos
    v_lshrrev_b32 v{vT[2]}, 4, v{vL}                 ; (i>>4)&3 = rho'>>1
    v_xor_b32 v{vT[3]}, v{vT[1]}, v{vT[2]}
    s_lshl_b32 s{sT0}, s{sW}, 4
    v_add_u32 v{vT[4]}, s{sT0}, v{vT[0]}
    v_lshlrev_b32 v{vT[4]}, 10, v{vT[4]}
    v_lshl_add_u32 v{vX0}, v{vT[3]}, 4, v{vT[4]}
    v_xor_b32 v{vX1}, 64, v{vX0}
    v_add_u32 v{vX1}, 0x2000, v{vX1}
    """)
    a(f"""
    s_lshl_b32 s{sT0}, s{sMG}, 4
    s_lshl_b32 s{sT1}, s{sNH}, 2
    s_add_u32 s{sT0}, s{sT0}, s{sT1}
    v_and_b32 v{vT[4]}, 3, v{vT[0]}
    v_lshrrev_b32 v{vT[5]}, 2, v{vT[0]}
    v_lshl_add_u32 v{vT[4]}, v{vT[5]}, 3, v{vT[4]}
    v_add_u32 v{vT[4]}, s{sT0}, v{vT[4]}             ; krow
    v_lshrrev_b32 v{vT[5]}, 1, v{vT[1]}
    v_xor_b32 v{vT[5]}, v{vT[5]}, v{vT[2]}
    v_lshlrev_b32 v{vT[5]}, 5, v{vT[5]}
    v_and_b32 v{vT[6]}, 1, v{vT[1]}
    v_lshl_add_u32 v{vT[5]}, v{vT[6]}, 4, v{vT[5]}   ; byte
    v_mul_u32_u24 v{vWq}, 3072, v{vT[4]}
    v_add_u32 v{vWq}, v{vWq}, v{vT[5]}
    v_mul_u32_u24 v{vWg}, 3584, v{vT[4]}
    v_add_u32 v{vWg}, v{vWg}, v{vT[5]}
    v_mul_u32_u24 v{vW12}, s{sP12}, v{vT[4]}
    v_add_u32 v{vW12}, v{vW12}, v{vT[5]}
    """)
    a(f"""
    v_and_b32 v{vT[0]}, 15, v{vL}                    ; m / i
    v_lshrrev_b32 v{vT[1]}, 4, v{vL}                 ; g
    v_lshrrev_b32 v{vT[2]}, 1, v{vT[0]}
    v_xor_b32 v{vT[2]}, v{vT[2]}, v{vT[1]}
    v_lshlrev_b32 v{vT[2]}, 4, v{vT[2]}
    v_lshl_add_u32 v{vT[2]}, v{vT[0]}, 7, v{vT[2]}
    s_lshl_b32 s{sT0}, s{sMG}, 12
    v_add_u32 v{vXRb[0]}, s{sT0}, v{vT[2]}
    v_xor_b32 v{vXRb[1]}, 64, v{vXRb[0]}
    """)
    a(f"""
    v_lshrrev_b32 v{vT[2]}, 2, v{vT[0]}              ; r4
    v_and_b32 v{vT[3]}, 3, v{vT[0]}                  ; c
    v_and_b32 v{vT[4]}, 1, v{vT[1]}                  ; g&1
    v_lshl_add_u32 v{vT[5]}, v{vT[4]}, 2, v{vT[2]}   ; rho' = r4+4(g&1)
    v_lshrrev_b32 v{vT[6]}, 1, v{vT[5]}              ; rho'>>1
    s_lshl_b32 s{sT0}, s{sNH}, 1
    v_xor_b32 v{vT[6]}, s{sT0}, v{vT[6]}
    v_lshlrev_b32 v{vT[6]}, 5, v{vT[6]}
    v_lshl_add_u32 v{vT[6]}, v{vT[5]}, 7, v{vT[6]}
    v_lshl_add_u32 v{vT[6]}, v{vT[3]}, 3, v{vT[6]}
    v_lshrrev_b32 v{vT[5]}, 1, v{vT[1]}
    v_lshl_add_u32 v{vWRb[0]}, v{vT[5]}, 11, v{vT[6]}
    v_xor_b32 v{vWRb[1]}, 32, v{vWRb[0]}
    v_mov_b32 v{vS}, 0
    v_mov_b32 v{vQ}, 0
    """)
    for c in vCS: a(f"v_mov_b32 v{c}, 0")
    for i in range(48): a(f"v_mov_b32 v{ACC+i}, 0")
    a("s_waitcnt lgkmcnt(0)")
    srd(a, SX, 4, 5, 2048 * 1024)
    srd(a, SWS, 22, 23, WS_END)
    QSZ, GSZ = 512 * 3072, 512 * 3584
    a(f"""
    s_lshl_b32 s{sT0}, s{sU0}, 7
    s_add_u32 s{SU0}, s6, s{sT0}
    s_addc_u32 s{SU0+1}, s7, 0
    s_and_b32 s{SU0+1}, s{SU0+1}, 0xffff
    s_sub_u32 s{SU0+2}, {QSZ}, s{sT0}
    s_mov_b32 s{SU0+3}, 0x20000
    """)
    for k, (S, plo) in enumerate(((SU1, 12), (SU2, 14))):
        a(f"""
        s_lshl_b32 s{sT0}, s{sP0}, 7
        s_add_u32 s{sT1}, s{sU0}, {k+1}
        s_lshl_b32 s{sT1}, s{sT1}, 7
        s_cmp_eq_u32 s{sTB}, 1
        s_cselect_b32 s{sT0}, s{sT1}, s{sT0}
        s_cselect_b32 s{S}, s6, s{plo}
        s_cselect_b32 s{S+1}, s7, s{plo+1}
        s_mov_b32 s{S+2}, {GSZ}
        s_cselect_b32 s{S+2}, {QSZ}, s{S+2}
        s_add_u32 s{S}, s{S}, s{sT0}
        s_addc_u32 s{S+1}, s{S+1}, 0
        s_and_b32 s{S+1}, s{S+1}, 0xffff
        s_sub_u32 s{S+2}, s{S+2}, s{sT0}
        s_mov_b32 s{S+3}, 0x20000
        """)
    for S, plo in ((SPG, 12), (SPU, 14)):
        a(f"""
        s_lshl_b32 s{sT0}, s{sPF}, 7
        s_add_u32 s{S}, s{plo}, s{sT0}
        s_addc_u32 s{S+1}, s{plo+1}, 0
        s_and_b32 s{S+1}, s{S+1}, 0xffff
        s_sub_u32 s{S+2}, {GSZ}, s{sT0}
        s_mov_b32 s{S+3}, 0x20000
        """)
    a(f"s_lshl_b32 s{sP12}, s{sP12}, 6")

    vm = VM()
    def dma_p0(t):
        sl = (t % 3) * SLOT
        o = [f"s_add_u32 s{sT0}, s{sROT}, {t}",
             f"s_and_b32 s{sT0}, s{sT0}, 7",
             f"s_lshl_b32 s{sKX}, s{sT0}, 7",
             f"s_add_u32 s{sKX}, s{sKX}, s{sXB}",
             f"s_mul_i32 s{sK0}, s{sT0}, {64*3072}",
             f"s_mul_i32 s{sK12}, s{sT0}, s{sP12}",
             f"s_add_u32 m0, s{sLX}, {sl}",
             f"buffer_load_dwordx4 v{vX0}, s[{SX}:{SX+3}], s{sKX} offen lds",
             f"s_add_u32 m0, s{sLX}, {sl+1024}",
             f"buffer_load_dwordx4 v{vX1}, s[{SX}:{SX+3}], s{sKX} offen lds",
             f"s_add_u32 m0, s{sLW}, {sl+16384}",
             f"buffer_load_dwordx4 v{vWq}, s[{SU0}:{SU0+3}], s{sK0} offen lds",
             f"s_add_u32 m0, s{sLW}, {sl+16384+8192}",
             f"buffer_load_dwordx4 v{vW12}, s[{SU1}:{SU1+3}], s{sK12} offen lds",
             f"s_add_u32 m0, s{sLW}, {sl+16384+16384}",
             f"buffer_load_dwordx4 v{vW12}, s[{SU2}:{SU2+3}], s{sK12} offen lds"]
        vm.issue(("st", t), 5)
        return o
    def dma_p1(T):
        sl = ((8 + T) % 3) * SLOT
        o = []
        for c2 in range(2):
            sk = sK0 if c2 == 0 else sK1b
            o += [f"s_add_u32 s{sT0}, s{sROT}, {2*T+c2}",
                  f"s_and_b32 s{sT0}, s{sT0}, 7",
                  f"s_mul_i32 s{sk}, s{sT0}, {64*3584}",
                  f"s_add_u32 m0, s{sLW}, {sl+c2*16384}",
                  f"buffer_load_dwordx4 v{vWg}, s[{SPG}:{SPG+3}], s{sk} offen lds",
                  f"s_add_u32 m0, s{sLW}, {sl+c2*16384+8192}",
                  f"buffer_load_dwordx4 v{vWg}, s[{SPU}:{SPU+3}], s{sk} offen lds"]
        vm.issue(("st", 8 + T), 4)
        return o
    def dma(g):
        if g < 8: return dma_p0(g)
        if g < 12: return dma_p1(g - 8)
        return []
    def set_slot(g):
        sl = (g % 3) * SLOT
        o = []
        for i in range(2):
            if g < 8: o.append(f"v_add_u32 v{vXR[i]}, {sl}, v{vXRb[i]}")
            o.append(f"v_add_u32 v{vWR[i]}, {sl}, v{vWRb[i]}")
        return o
    def reads_p0(t, kb2, buf):
        o = []
        kb = 2 * t + kb2
        for rt in range(2):
            o.append(f"ds_read_b128 {vr(xf(rt, kb))}, v{vXR[kb2]} offset:{rt*2048}")
        for u in range(3):
            for ct in range(2):
                for hh in range(2):
                    o.append(f"ds_read_b64_tr_b16 {vr(wf(buf,u,ct)+2*hh, 2)}, v{vWR[ct]} offset:{16384+u*8192+kb2*4096+hh*1024}")
        return o
    def reads_p1(q, buf):
        c2, kb2 = q >> 1, q & 1
        o = []
        for u in range(2):
            for ct in range(2):
                for hh in range(2):
                    o.append(f"ds_read_b64_tr_b16 {vr(wf(buf,u,ct)+2*hh, 2)}, v{vWR[ct]} offset:{c2*16384+u*8192+kb2*4096+hh*1024}")
        return o
    def mfmas(kb, buf, nu):
        o = []
        for u in range(nu):
            for ct in range(2):
                for rt in range(2):
                    o.append(f"v_mfma_f32_16x16x32_bf16 {vr(acc(u,rt,ct))}, {vr(wf(buf,u,ct))}, {vr(xf(rt,kb))}, {vr(acc(u,rt,ct))}")
        return o
    lab = [0]
    def stats(kb):
        lab[0] += 1; n = lab[0]
        a(f"s_cmp_eq_u32 s{sNH}, 0")
        a(f"s_cbranch_scc0 {L}_st{n}a")
        for j in range(4):
            a(f"v_dot2c_f32_bf16 v{vS}, s{sONES}, v{xf(0,kb)+j}")
            a(f"v_dot2c_f32_bf16 v{vQ}, v{xf(0,kb)+j}, v{xf(0,kb)+j}")
        a(f"s_branch {L}_st{n}b")
        a.label(f"{L}_st{n}a")
        for j in range(4):
            a(f"v_dot2c_f32_bf16 v{vS}, s{sONES}, v{xf(1,kb)+j}")
            a(f"v_dot2c_f32_bf16 v{vQ}, v{xf(1,kb)+j}, v{xf(1,kb)+j}")
        a.label(f"{L}_st{n}b")
    def colsum(kb, buf, nu):
        lab[0] += 1; n = lab[0]
        a(f"s_cmp_eq_u32 s{sMG}, {kb & 3}")
        a(f"s_cbranch_scc0 {L}_cs{n}")
        for j in range(4):
            for u in range(nu):
                for ct in range(2):
                    a(f"v_dot2c_f32_bf16 v{vCS[u*2+ct]}, s{sONES}, v{wf(buf,u,ct)+j}")
        a.label(f"{L}_cs{n}")

    for g in range(3): a.extend(dma(g))
    a.extend(set_slot(0))
    a(vm.wait(("st", 0)))
    a("s_barrier")
    a.extend(reads_p0(0, 0, 0))
    a("s_waitcnt lgkmcnt(0)")
    for t in range(8):
        a.extend(interleave(mfmas(2*t, 0, 3), reads_p0(t, 1, 1), per=2))
        stats(2*t); colsum(2*t, 0, 3)
        a("s_waitcnt lgkmcnt(0)")
        a(vm.wait(("st", t + 1)))
        a("s_barrier")
        nxt = set_slot(t + 1) + (reads_p0(t + 1, 0, 0) if t < 7 else [])
        d = dma(t + 3)
        a.extend(interleave(mfmas(2*t+1, 1, 3), nxt + d, per=3))
        stats(2*t+1); colsum(2*t+1, 1, 3)
        a("s_waitcnt lgkmcnt(0)")

    def xreduce(v, tmp):
        a(f"v_mov_b32 v{tmp}, v{v}")
        a(f"v_permlane32_swap_b32 v{v}, v{tmp}")
        a(f"v_add_f32 v{v}, v{v}, v{tmp}")
        a(f"v_mov_b32 v{tmp}, v{v}")
        a(f"v_permlane16_swap_b32 v{v}, v{tmp}")
        a(f"v_add_f32 v{v}, v{v}, v{tmp}")
    vA = [F[0] + 0, F[0] + 2]
    CSR = F[0] + 4
    TMP = F[0] + 28
    def cs_exchange(nt, first):
        for i in range(nt): xreduce(vCS[i], vT[0])
        a(f"""
        v_and_b32 v{vT[0]}, 15, v{vL}
        v_lshlrev_b32 v{vT[0]}, 2, v{vT[0]}
        s_mul_i32 s{sT0}, s{sW}, 384
        s_add_u32 s{sT0}, s{sT0}, {SCR_CS}
        v_add_u32 v{vT[0]}, s{sT0}, v{vT[0]}
        """)
        for i in range(nt): a(f"ds_write_b32 v{vT[0]}, v{vCS[i]} offset:{i*64}")
        if first:
            xreduce(vS, vT[1]); xreduce(vQ, vT[1])
            a(f"""
            v_mul_f32 v{vS}, {hx(1.0/512)}, v{vS}              ; mean
            v_mul_f32 v{vT[1]}, v{vS}, v{vS}
            v_mov_b32 v{vT[2]}, {hx(1.0/512)}
            v_fma_f32 v{vQ}, v{vQ}, v{vT[2]}, -v{vT[1]}        ; var
            v_max_f32 v{vQ}, 0, v{vQ}
            v_add_f32 v{vQ}, {hx(1e-5)}, v{vQ}
            v_rsq_f32 v{vT[2]}, v{vQ}
            v_mul_f32 v{vT[3]}, v{vT[2]}, v{vS}
            v_sub_f32 v{vT[3]}, 0, v{vT[3]}
            v_and_b32 v{vT[1]}, 15, v{vL}
            v_lshlrev_b32 v{vT[1]}, 3, v{vT[1]}
            s_lshl_b32 s{sT0}, s{sW}, 7
            s_add_u32 s{sT0}, s{sT0}, {SCR}
            v_add_u32 v{vT[4]}, s{sT0}, v{vT[1]}
            ds_write_b64 v{vT[4]}, v[{vT[2]}:{vT[3]}]
            """)
        a("s_waitcnt lgkmcnt(0)")
        a("s_barrier")
        if first:
            a(f"""
            s_lshl_b32 s{sT0}, s{sMG}, 8
            s_add_u32 s{sT0}, s{sT0}, {SCR}
            v_add_u32 v{vT[4]}, s{sT0}, v{vT[1]}
            ds_read_b64 v[{vA[0]}:{vA[0]+1}], v{vT[4]}
            ds_read_b64 v[{vA[1]}:{vA[1]+1}], v{vT[4]} offset:128
            """)
        a(f"""
        v_lshrrev_b32 v{vT[0]}, 4, v{vL}
        v_lshlrev_b32 v{vT[0]}, 4, v{vT[0]}
        s_mul_i32 s{sT0}, s{sNH}, 384
        s_add_u32 s{sT0}, s{sT0}, {SCR_CS}
        v_add_u32 v{vT[0]}, s{sT0}, v{vT[0]}
        """)
        for i in range(nt):
            a(f"ds_read_b128 {vr(CSR+4*i)}, v{vT[0]} offset:{i*64}")
            for m in range(1, 4):
                a(f"ds_read_b128 {vr(TMP+4*(m-1))}, v{vT[0]} offset:{m*768+i*64}")
            a("s_waitcnt lgkmcnt(0)")
            for m in range(1, 4):
                for r in range(4):
                    a(f"v_add_f32 v{CSR+4*i+r}, v{CSR+4*i+r}, v{TMP+4*(m-1)+r}")
        for c in vCS: a(f"v_mov_b32 v{c}, 0")
    def fold(u, rt, ct):
        for r in range(4):
            x = acc(u, rt, ct) + r
            a(f"v_mul_f32 v{x}, v{vA[rt]}, v{x}")
            a(f"v_fmac_f32 v{x}, v{vA[rt]+1}, v{CSR+4*(u*2+ct)+r}")
    vQA = vT[5]
    vHA = vT[6]
    vK1 = vT[7]
    def st_qkv(u, sunit_add):
        a(f"""
        s_add_u32 s{sT0}, s{sU0}, {sunit_add}
        s_cmp_lt_u32 s{sT0}, 8
        s_cselect_b32 s{sSC0}, {hx(QSCALE)}, 1.0
        s_lshl_b32 s{sT0}, s{sT0}, 2
        s_lshl_b32 s{sT1}, s{sNH}, 1
        s_add_u32 s{sT0}, s{sT0}, s{sT1}
        s_lshl_b32 s{sT0}, s{sT0}, 16
        s_add_u32 s{sT0}, s{sT0}, {WS_QKV}
        s_add_u32 s{sT1}, s{sT0}, 0x10000
        """)
        for ct in range(2):
            T = TMP + 4 * ct
            for rt in range(2):
                fold(u, rt, ct)
                x = acc(u, rt, ct)
                for r in range(4): a(f"v_mul_f32 v{x+r}, s{sSC0}, v{x+r}")
                a(f"v_cvt_pk_bf16_f32 v{T+2*rt}, v{x}, v{x+1}")
                a(f"v_cvt_pk_bf16_f32 v{T+2*rt+1}, v{x+2}, v{x+3}")
            a(f"v_permlane16_swap_b32 v{T}, v{T+2}")
            a(f"v_permlane16_swap_b32 v{T+1}, v{T+3}")
            a(f"buffer_store_dwordx4 {vr(T)}, v{vQA}, s[{SWS}:{SWS+3}], s{sT0 if ct == 0 else sT1} offen{st_flags}")
    def st_h(ug, uu, spair):
        a(f"""
        s_lshl_b32 s{sT0}, s{spair}, 1
        s_add_u32 s{sT0}, s{sT0}, s{sNH}
        s_lshl_b32 s{sT0}, s{sT0}, 7
        s_lshl_b32 s{sT1}, s{sRB}, 3
        s_add_u32 s{sT0}, s{sT0}, s{sT1}
        s_lshl_b32 s{sT1}, s{sMG}, 1
        s_add_u32 s{sT0}, s{sT0}, s{sT1}
        s_lshl_b32 s{sT0}, s{sT0}, 10
        """)
        for rt in range(2):
            T = TMP + 8 + 4 * rt
            for ct in range(2):
                fold(ug, rt, ct); fold(uu, rt, ct)
                g, u = acc(ug, rt, ct), acc(uu, rt, ct)
                t = TMP
                for r in range(4): a(f"v_mul_f32 v{t+r}, v{g+r}, v{g+r}")
                for r in range(4): a(f"v_fmamk_f32 v{t+r}, v{t+r}, {hx(GK2)}, v{vK1}")
                for r in range(4): a(f"v_mul_f32 v{t+r}, v{t+r}, v{g+r}")
                for r in range(4): a(f"v_exp_f32 v{t+r}, v{t+r}")
                for r in range(4): a(f"v_mul_f32 v{g+r}, v{g+r}, v{u+r}")
                for r in range(4): a(f"v_add_f32 v{t+r}, 1.0, v{t+r}")
                for r in range(4): a(f"v_rcp_f32 v{t+r}, v{t+r}")
                for r in range(4): a(f"v_mul_f32 v{g+r}, v{g+r}, v{t+r}")
                a(f"v_cvt_pk_bf16_f32 v{T+2*ct}, v{g}, v{g+1}")
                a(f"v_cvt_pk_bf16_f32 v{T+2*ct+1}, v{g+2}, v{g+3}")
            a(f"buffer_store_dwordx4 {vr(T)}, v{vHA}, s[{SWS}:{SWS+3}], s{sT0} offen offset:{rt*1024}{st_flags}")

    cs_exchange(6, True)
    a(f"""
    v_and_b32 v{vT[0]}, 31, v{vL}
    v_lshrrev_b32 v{vT[1]}, 5, v{vL}
    v_lshlrev_b32 v{vT[1]}, 4, v{vT[1]}
    v_lshl_add_u32 v{vQA}, v{vT[0]}, 5, v{vT[1]}
    s_lshl_b32 s{sT0}, s{sRB}, 12
    s_lshl_b32 s{sT1}, s{sMG}, 10
    s_add_u32 s{sT0}, s{sT0}, s{sT1}
    v_add_u32 v{vQA}, s{sT0}, v{vQA}
    v_lshlrev_b32 v{vHA}, 4, v{vL}
    v_mov_b32 v{vK1}, {hx(GK1)}
    """)
    st_qkv(0, 0)
    a(f"s_cmp_eq_u32 s{sTB}, 1")
    a(f"s_cbranch_scc1 {L}_tb")
    st_h(1, 2, sP0)
    a(f"s_branch {L}_p1")
    a.label(f"{L}_tb")
    st_qkv(1, 1); st_qkv(2, 2)
    a.label(f"{L}_p1")
    vm.issue("store", 4)
    KEEP = [vS, vQ, vXRb[0], vXRb[1]]
    for i in range(4): a(f"v_mov_b32 v{KEEP[i]}, v{vA[0]+i}")
    for i in range(32): a(f"v_mov_b32 v{ACC+i}, 0")
    a.extend(reads_p1(0, 0))
    a("s_waitcnt lgkmcnt(0)")
    for T in range(4):
        g = 8 + T
        for q in range(4):
            kb = 4 * T + q
            buf = q & 1
            if q < 3:
                a.extend(interleave(mfmas(kb, buf, 2), reads_p1(q + 1, buf ^ 1), per=1))
                colsum(kb, buf, 2)
                a("s_waitcnt lgkmcnt(0)")
                if q == 2 and T < 3:
                    a(vm.wait(("st", g + 1)))
                    a("s_barrier")
            else:
                nxt = (set_slot(g + 1) + reads_p1(0, 0)) if T < 3 else []
                d = dma(g + 3)
                a.extend(interleave(mfmas(kb, buf, 2), nxt + d, per=2))
                colsum(kb, buf, 2)
                a("s_waitcnt lgkmcnt(0)")
    cs_exchange(4, False)
    for i in range(4): a(f"v_mov_b32 v{vA[0]+i}, v{KEEP[i]}")
    st_h(0, 1, sPF)
    a.label(f"{L}_end")
    a("s_endpgm")
    return dict(lds=SCR + 4096 + 1024, vgpr=256, sgpr=96)


def gen_att(a, st_flags="", ld_flags=""):
    L = "at"
    SWS = 24
    sW, sHD, sQB, sT0, sT1, sT2, sJS, sKO, sVO = 28, 29, 30, 31, 32, 33, 34, 35, 36
    MASK = 40
    vL, vD, vKR, vVR, vT0, vT1, vT2, vM = 1, 2, 3, 4, 5, 6, 7, 8
    Q = 12; KF = [16, 20]; VT = [24, 32]
    P = [40, 48]; NEG = 64; S = [80, 96]; O = 112; SF = 128
    LK, LV, LONE = 0, 16384, 32768 + 128
    a(f"s_cmp_ge_u32 s2, 256")
    a(f"s_cbranch_scc1 {L}_end")
    prologue_ptrs(a)
    a(f"""
    v_and_b32 v{vL}, 63, v0
    v_lshrrev_b32 v{vT0}, 6, v0
    v_readfirstlane_b32 s{sW}, v{vT0}
    s_and_b32 s{sT0}, s2, 7
    s_lshr_b32 s{sT1}, s2, 3
    s_lshl_b32 s{sHD}, s{sT0}, 2
    s_and_b32 s{sT2}, s{sT1}, 3
    s_add_u32 s{sHD}, s{sHD}, s{sT2}
    s_lshr_b32 s{sQB}, s{sT1}, 2
    v_lshlrev_b32 v{vD}, 4, v{vL}
    """)
    a(f"""
    v_and_b32 v{vT0}, 31, v{vL}
    v_lshrrev_b32 v{vT1}, 5, v{vL}
    v_lshlrev_b32 v{vT2}, 2, v{vT1}
    v_sub_u32 v{vT2}, v{vT0}, v{vT2}
    """)
    for r in range(16):
        a(f"v_cmp_le_i32 s[{MASK+2*r}:{MASK+2*r+1}], {8*(r>>2)+(r&3)}, v{vT2}")
    a(f"""
    v_lshlrev_b32 v{vT2}, 4, v{vT1}
    v_lshl_add_u32 v{vKR}, v{vT0}, 5, v{vT2}
    s_lshl_b32 s{sT0}, s{sW}, 10
    """)
    a(f"""
    v_and_b32 v{vT2}, 15, v{vL}
    v_lshrrev_b32 v{vT0}, 2, v{vT2}
    v_lshl_add_u32 v{vT0}, v{vT1}, 2, v{vT0}
    v_and_b32 v{vT2}, 3, v{vT2}
    v_lshlrev_b32 v{vT2}, 3, v{vT2}
    v_lshl_add_u32 v{vVR}, v{vT0}, 5, v{vT2}
    v_and_b32 v{vT2}, 16, v{vL}
    v_cmp_eq_u32 vcc, 0, v{vT2}
    v_mov_b32 v{vT0}, {LONE}
    v_mov_b32 v{vT1}, {LV}
    v_cndmask_b32 v{vT0}, v{vT0}, v{vT1}, vcc
    v_add_u32 v{vVR}, v{vVR}, v{vT0}
    v_add_u32 v{vVR}, s{sT0}, v{vVR}
    """)
    a(f"""
    v_mov_b32 v{S[0]}, 0x3f803f80
    v_mov_b32 v{S[0]+1}, 0x3f803f80
    v_mov_b32 v{S[0]+2}, 0x3f803f80
    v_mov_b32 v{S[0]+3}, 0x3f803f80
    s_lshl_b32 s{sT1}, s{sW}, 11
    v_add_u32 v{vT0}, s{sT1}, v{vD}
    ds_write_b128 v{vT0}, {vr(S[0])} offset:{LONE}
    ds_write_b128 v{vT0}, {vr(S[0])} offset:{LONE+1024}
    s_waitcnt lgkmcnt(0)
    """)
    srd(a, SWS, 22, 23, WS_END)
    a(f"""
    s_lshl_b32 s{sT0}, s{sQB}, 8
    s_lshl_b32 s{sT1}, s{sW}, 6
    s_add_u32 s{sT1}, s{sT1}, s{sT0}
    s_sub_i32 s{sT1}, s{sT1}, 256
    s_max_i32 s{sT1}, s{sT1}, 0
    s_lshl_b32 s{sT1}, s{sT1}, 5
    s_lshl_b32 s{sT2}, s{sHD}, 16
    s_add_u32 s{sKO}, s{sT1}, s{sT2}
    s_add_u32 s{sVO}, s{sKO}, {WS_QKV + 64*65536}
    s_add_u32 s{sKO}, s{sKO}, {WS_QKV + 32*65536}
    s_lshl_b32 s{sT1}, s{sW}, 11
    s_add_u32 m0, s{sT1}, {LK}
    buffer_load_dwordx4 v{vD}, s[{SWS}:{SWS+3}], s{sKO} offen{ld_flags} lds
    buffer_load_dwordx4 v{vD}, s[{SWS}:{SWS+3}], s{sKO} offen offset:1024{ld_flags} lds
    s_add_u32 m0, s{sT1}, {LV}
    buffer_load_dwordx4 v{vD}, s[{SWS}:{SWS+3}], s{sVO} offen{ld_flags} lds
    buffer_load_dwordx4 v{vD}, s[{SWS}:{SWS+3}], s{sVO} offen offset:1024{ld_flags} lds
    """)
    a(f"""
    s_lshl_b32 s{sT1}, s{sW}, 5
    s_add_u32 s{sT1}, s{sT1}, s{sT0}
    s_lshl_b32 s{sT1}, s{sT1}, 5
    s_add_u32 s{sT1}, s{sT1}, s{sT2}
    s_add_u32 s{sT1}, s{sT1}, {WS_QKV}
    buffer_load_dwordx4 {vr(Q)}, v{vKR}, s[{SWS}:{SWS+3}], s{sT1} offen{ld_flags}
    s_lshl_b32 s{sT0}, s{sW}, 10
    v_add_u32 v{vKR}, s{sT0}, v{vKR}
    """)
    a(f"""
    s_sub_u32 s{sJS}, 8, s{sW}
    s_cmp_eq_u32 s{sQB}, 0
    s_cselect_b32 s{sJS}, s{sJS}, 0
    v_mov_b32 v{vM}, 0xff7fffff
    """)
    for r in range(16): a(f"v_mov_b32 v{SF+r}, 0xff7fffff")
    for r in range(16): a(f"v_mov_b32 v{O+r}, 0")
    a("s_waitcnt vmcnt(0)")
    a("s_barrier")
    def mf_s(dst, kf, c): return f"v_mfma_f32_32x32x16_bf16 {vr(dst,16)}, {vr(kf)}, {vr(Q)}, {c}"
    def rdk(buf, j): return f"ds_read_b128 {vr(KF[buf])}, v{vKR} offset:{LK + j*1024}"
    def rdv(buf, j):
        return [f"ds_read_b64_tr_b16 {vr(VT[buf]+4*t+2*hh, 2)}, v{vVR} offset:{j*1024 + t*512 + hh*256}" for t in range(2) for hh in range(2)]
    def maxred(s):
        for r in range(0, 16, 2): a(f"v_max3_f32 v{vM}, v{s+r}, v{s+r+1}, v{vM}")
    a(f"s_cmp_gt_u32 s{sJS}, 0")
    a(f"s_cbranch_scc1 {L}_a0")
    a(rdk(0, 0)); a("s_waitcnt lgkmcnt(0)"); a(mf_s(SF, KF[0], "0"))
    a.label(f"{L}_a0")
    a(rdk(1, 8)); a("s_waitcnt lgkmcnt(0)"); a(mf_s(S[0], KF[1], "0"))
    for r in range(16): a(f"v_cndmask_b32 v{S[0]+r}, v{SF+r}, v{S[0]+r}, s[{MASK+2*r}:{MASK+2*r+1}]")
    maxred(S[0])
    for j in range(1, 8):
        a(f"s_cmp_gt_u32 s{sJS}, {j}")
        a(f"s_cbranch_scc1 {L}_a{j}")
        a(rdk(j & 1, j)); a("s_waitcnt lgkmcnt(0)"); a(mf_s(S[j & 1], KF[j & 1], "0"))
        maxred(S[j & 1])
        a.label(f"{L}_a{j}")
    a(f"""
    v_mov_b32 v{vT0}, v{vM}
    v_permlane32_swap_b32 v{vM}, v{vT0}
    v_max_f32 v{vM}, v{vM}, v{vT0}
    """)
    for r in range(16): a(f"v_sub_f32 v{NEG+r}, 0, v{vM}")
    def expcvt(s, p):
        for r in range(16): a(f"v_exp_f32 v{s+r}, v{s+r}")
        for r in range(8): a(f"v_cvt_pk_bf16_f32 v{p+r}, v{s+2*r}, v{s+2*r+1}")
    def pv(vb, p):
        for t in range(2):
            a(f"v_mfma_f32_32x32x16_bf16 {vr(O,16)}, {vr(VT[vb]+4*t)}, {vr(p+4*t)}, {vr(O,16)}")
    NG = vr(NEG, 16)
    a(f"s_cmp_gt_u32 s{sJS}, 0")
    a(f"s_cbranch_scc1 {L}_b0")
    a(rdk(0, 0)); a("s_waitcnt lgkmcnt(0)"); a(mf_s(SF, KF[0], NG))
    a.label(f"{L}_b0")
    a(rdk(1, 8)); a.extend(rdv(0, 8)); a("s_waitcnt lgkmcnt(0)"); a(mf_s(S[0], KF[1], NG))
    for r in range(16): a(f"v_cndmask_b32 v{S[0]+r}, v{SF+r}, v{S[0]+r}, s[{MASK+2*r}:{MASK+2*r+1}]")
    for r in range(16): a(f"v_exp_f32 v{S[0]+r}, v{S[0]+r}")
    for r in range(16): a(f"v_cndmask_b32 v{S[1]+r}, 0, v{S[0]+r}, s[{MASK+2*r}:{MASK+2*r+1}]")
    for r in range(16): a(f"v_cndmask_b32 v{SF+r}, v{S[0]+r}, 0, s[{MASK+2*r}:{MASK+2*r+1}]")
    for r in range(8): a(f"v_cvt_pk_bf16_f32 v{P[0]+r}, v{S[1]+2*r}, v{S[1]+2*r+1}")
    pv(0, P[0])
    a(f"s_cmp_gt_u32 s{sJS}, 0")
    a(f"s_cbranch_scc1 {L}_c0")
    a.extend(rdv(1, 0))
    for r in range(8): a(f"v_cvt_pk_bf16_f32 v{P[1]+r}, v{SF+2*r}, v{SF+2*r+1}")
    a("s_waitcnt lgkmcnt(0)")
    pv(1, P[1])
    a.label(f"{L}_c0")
    for j in range(1, 8):
        b = j & 1
        a(f"s_cmp_gt_u32 s{sJS}, {j}")
        a(f"s_cbranch_scc1 {L}_c{j}")
        a(rdk(b, j)); a.extend(rdv(b, j)); a("s_waitcnt lgkmcnt(0)"); a(mf_s(S[b], KF[b], NG))
        expcvt(S[b], P[b])
        pv(b, P[b])
        a.label(f"{L}_c{j}")
    a(f"v_rcp_f32 v{vT0}, v{O+8}")
    for r in range(8): a(f"v_mul_f32 v{O+r}, v{O+r}, v{vT0}")
    for r in range(4): a(f"v_cvt_pk_bf16_f32 v{P[0]+r}, v{O+2*r}, v{O+2*r+1}")
    a(f"""
    v_and_b32 v{vT0}, 15, v{vL}
    v_lshlrev_b32 v{vT0}, 4, v{vT0}
    v_lshrrev_b32 v{vT1}, 5, v{vL}
    v_lshl_add_u32 v{vT0}, v{vT1}, 8, v{vT0}
    v_bfe_u32 v{vT1}, v{vL}, 4, 1
    v_lshl_add_u32 v{vT0}, v{vT1}, 10, v{vT0}
    s_lshr_b32 s{sT0}, s{sHD}, 1
    s_lshl_b32 s{sT0}, s{sT0}, 7
    s_lshl_b32 s{sT1}, s{sQB}, 4
    s_add_u32 s{sT0}, s{sT0}, s{sT1}
    s_lshl_b32 s{sT1}, s{sW}, 1
    s_add_u32 s{sT0}, s{sT0}, s{sT1}
    s_lshl_b32 s{sT0}, s{sT0}, 10
    s_and_b32 s{sT1}, s{sHD}, 1
    s_lshl_b32 s{sT1}, s{sT1}, 9
    s_add_u32 s{sT0}, s{sT0}, s{sT1}
    s_add_u32 s{sT0}, s{sT0}, {WS_O}
    buffer_store_dwordx4 {vr(P[0])}, v{vT0}, s[{SWS}:{SWS+3}], s{sT0} offen{st_flags}
    """)
    a.label(f"{L}_end")
    a("s_endpgm")
    return dict(lds=LONE + 16384 + 128, vgpr=160, sgpr=96)

def gen_g23(a, ld_flags=""):
    L = "g2"
    SWS, SWD, SWO, SX, SOUT = 24, 28, 32, 36, 40
    sW, sCT, sKH, sMT, sNT, sT0, sT1, sT2, sAO, sLW = 44, 45, 46, 47, 48, 49, 50, 51, 52, 53
    vL, vD, vWS, vRH, vRO, vAR, vT0, vT1, vT2, vT3, vXO = 1, 2, 3, 4, 5, 6, 7, 8, 9, 10, 11
    XR = 12
    AF = 16
    ACC2 = 48; ACC3 = 64; TMP = 80
    WF = 112
    WB = [0, 49152]
    a(f"s_cmp_ge_u32 s2, 256")
    a(f"s_cbranch_scc1 {L}_end")
    prologue_ptrs(a)
    a(f"""
    v_and_b32 v{vL}, 63, v0
    v_lshrrev_b32 v{vT0}, 6, v0
    v_readfirstlane_b32 s{sW}, v{vT0}
    s_and_b32 s{sT0}, s2, 7
    s_lshr_b32 s{sT1}, s2, 3
    s_lshl_b32 s{sMT}, s{sT0}, 2
    s_and_b32 s{sT2}, s{sT1}, 3
    s_add_u32 s{sMT}, s{sMT}, s{sT2}
    s_lshr_b32 s{sNT}, s{sT1}, 2
    s_and_b32 s{sCT}, s{sW}, 3
    s_lshr_b32 s{sKH}, s{sW}, 2
    v_lshlrev_b32 v{vD}, 4, v{vL}
    """)
    a(f"""
    v_lshrrev_b32 v{vT0}, 3, v{vL}
    v_and_b32 v{vT1}, 7, v{vL}
    v_lshrrev_b32 v{vT2}, 4, v{vL}
    v_lshrrev_b32 v{vT3}, 1, v{vT1}
    v_xor_b32 v{vT3}, v{vT3}, v{vT2}
    v_lshlrev_b32 v{vT3}, 5, v{vT3}
    v_and_b32 v{vT1}, 1, v{vT1}
    v_lshl_add_u32 v{vT3}, v{vT1}, 4, v{vT3}
    v_lshl_add_u32 v{vWS}, v{vT0}, 10, v{vT3}
    s_lshl_b32 s{sT0}, s{sNT}, 7
    v_add_u32 v{vWS}, s{sT0}, v{vWS}
    """)
    a(f"""
    v_and_b32 v{vT0}, 15, v{vL}
    v_lshrrev_b32 v{vT1}, 2, v{vT0}
    v_bfe_u32 v{vT2}, v{vL}, 4, 1
    v_lshl_add_u32 v{vT1}, v{vT2}, 2, v{vT1}          ; rho7
    v_lshrrev_b32 v{vT2}, 1, v{vT1}
    v_xor_b32 v{vT2}, s{sCT}, v{vT2}
    v_lshlrev_b32 v{vT2}, 5, v{vT2}
    v_and_b32 v{vT0}, 3, v{vT0}
    v_lshl_add_u32 v{vT2}, v{vT0}, 3, v{vT2}
    v_lshl_add_u32 v{vT2}, v{vT1}, 7, v{vT2}
    s_mul_i32 s{sT0}, s{sKH}, {6*4096}
    v_add_u32 v{vT2}, s{sT0}, v{vT2}
    v_lshrrev_b32 v{vT1}, 5, v{vL}
    v_lshl_add_u32 v{vRH}, v{vT1}, 10, v{vT2}
    v_lshl_add_u32 v{vRO}, v{vT1}, 11, v{vT2}
    s_lshl_b32 s{sT0}, s{sKH}, 14
    v_add_u32 v{vAR}, s{sT0}, v{vD}
    """)
    for i in range(32): a(f"v_mov_b32 v{ACC2+i}, 0")
    a("s_waitcnt lgkmcnt(0)")
    srd(a, SWS, 22, 23, WS_END)
    srd(a, SWD, 16, 17, 1792 * 1024)
    srd(a, SWO, 8, 9, 512 * 1024)
    srd(a, SX, 4, 5, 2048 * 1024)
    srd(a, SOUT, 18, 19, 2048 * 1024)
    vm = VM()
    a(f"""
    v_and_b32 v{vT0}, 15, v{vL}
    v_lshrrev_b32 v{vT1}, 4, v{vL}
    v_lshlrev_b32 v{vT1}, 3, v{vT1}
    v_lshl_add_u32 v{vXO}, v{vT0}, 10, v{vT1}
    s_lshl_b32 s{sT0}, s{sMT}, 16
    s_lshl_b32 s{sT1}, s{sKH}, 15
    s_add_u32 s{sT0}, s{sT0}, s{sT1}
    s_lshl_b32 s{sT1}, s{sNT}, 7
    s_add_u32 s{sT0}, s{sT0}, s{sT1}
    s_lshl_b32 s{sT1}, s{sCT}, 5
    s_add_u32 s{sT0}, s{sT0}, s{sT1}
    v_add_u32 v{vXO}, s{sT0}, v{vXO}
    s_movk_i32 s{sT1}, 0x4000
    buffer_load_dwordx2 v[{XR}:{XR+1}], v{vXO}, s[{SX}:{SX+3}], 0 offen
    buffer_load_dwordx2 v[{XR+2}:{XR+3}], v{vXO}, s[{SX}:{SX+3}], s{sT1} offen
    """)
    vm.issue("x", 2)
    def kappa(kh, i):
        pass
    def wdma(b):
        o = []
        for j in range(6):
            i = 6 * b + j
            if i < 28:
                o += [f"s_mul_i32 s{sT0}, s{sKH}, {28*32*1024}", f"s_add_u32 s{sT0}, s{sT0}, {i*32*1024}"]; S = SWD
            else:
                o += [f"s_mul_i32 s{sT0}, s{sKH}, {8*32*1024}", f"s_add_u32 s{sT0}, s{sT0}, {(i-28)*32*1024}"]; S = SWO
            o += [f"s_add_u32 s{sT0}, s{sT0}, s{sT2}",
                  f"s_add_u32 m0, s{sLW}, {WB[b & 1] + j*4096}",
                  f"buffer_load_dwordx4 v{vWS}, s[{S}:{S+3}], s{sT0} offen lds"]
        vm.issue(("w", b), 6)
        return o
    a(f"""
    s_lshl_b32 s{sT2}, s{sCT}, 13
    s_mul_i32 s{sLW}, s{sKH}, {6*4096}
    s_lshl_b32 s{sT0}, s{sCT}, 10
    s_add_u32 s{sLW}, s{sLW}, s{sT0}
    """)
    def wreads(b):
        o = []
        for j in range(6):
            i = 6 * b + j
            for hh in range(2):
                if i < 28: o.append(f"ds_read_b64_tr_b16 {vr(WF+4*i+2*hh,2)}, v{vRH} offset:{WB[b&1] + j*4096 + hh*2048}")
                else:      o.append(f"ds_read_b64_tr_b16 {vr(WF+4*i+2*hh,2)}, v{vRO} offset:{WB[b&1] + j*4096 + hh*1024}")
        return o
    assert WB[1] + 5 * 4096 + 2048 < 65536 + 8192
    a.extend(wdma(0)); a.extend(wdma(1))
    for b in range(6):
        a(vm.wait(("w", b)))
        a("s_barrier")
        if b & 1:
            a(f"v_add_u32 v{vT0}, {WB[1]}, v{vRH}"); a(f"v_add_u32 v{vT1}, {WB[1]}, v{vRO}")
            rr = [x.replace(f"v{vRH} ", f"v{vT0} ").replace(f"v{vRO} ", f"v{vT1} ") for x in wreads(b)]
            import re
            rr = [re.sub(r"offset:(\d+)", lambda m: f"offset:{int(m.group(1)) - WB[1]}", x) for x in rr]
            a.extend(rr)
        else:
            a.extend(wreads(b))
        a("s_waitcnt lgkmcnt(0)")
        a("s_barrier")
        if b + 2 < 6: a.extend(wdma(b + 2))
    NS = 4; AS = 32768
    a(f"""
    s_lshl_b32 s{sAO}, s{sMT}, 12
    s_lshl_b32 s{sT0}, s{sCT}, 17
    s_add_u32 s{sAO}, s{sAO}, s{sT0}            ; + (w&3) k-blocks
    s_lshl_b32 s{sLW}, s{sW}, 12
    """)
    def adma(s):
        if s < 7: o = [f"s_mul_i32 s{sT0}, s{sKH}, {28*131072}", f"s_add_u32 s{sT0}, s{sT0}, {4*s*131072}"]
        else:     o = [f"s_mul_i32 s{sT0}, s{sKH}, {8*131072}", f"s_add_u32 s{sT0}, s{sT0}, {(56+4*(s-7))*131072}"]
        o += [f"s_add_u32 s{sT0}, s{sT0}, s{sAO}", f"s_add_u32 m0, s{sLW}, {(s % NS)*AS}"]
        for q in range(4):
            o.append(f"buffer_load_dwordx4 v{vD}, s[{SWS}:{SWS+3}], s{sT0} offen offset:{q*1024}{ld_flags} lds")
        vm.issue(("a", s), 4)
        return o
    def areads(s, i, buf):
        return [f"ds_read_b128 {vr(AF+16*buf+4*rt)}, v{vT2} offset:{i*4096 + rt*1024}" for rt in range(4)]
    def amf(s, i, buf):
        ac = ACC2 if s < 7 else ACC3
        return [f"v_mfma_f32_16x16x32_bf16 {vr(ac+4*rt)}, {vr(WF+4*(4*s+i))}, {vr(AF+16*buf+4*rt)}, {vr(ac+4*rt)}" for rt in range(4)]
    for s in range(3): a.extend(adma(s))
    for s in range(9):
        a(vm.wait(("a", s)))
        a("s_barrier")
        if s + 3 < 9: a.extend(adma(s + 3))
        a(f"v_add_u32 v{vT2}, {(s % NS)*AS}, v{vAR}")
        a.extend(areads(s, 0, 0))
        for i in range(4):
            if i < 3:
                a.extend(areads(s, i + 1, (i + 1) & 1))
                a("s_waitcnt lgkmcnt(4)")
            else:
                a("s_waitcnt lgkmcnt(0)")
            a.extend(amf(s, i, i & 1))
    a("s_barrier")
    a(f"""
    s_lshl_b32 s{sT0}, s{sW}, 12
    v_add_u32 v{vT0}, s{sT0}, v{vD}
    s_xor_b32 s{sT1}, s{sW}, 4
    s_lshl_b32 s{sT1}, s{sT1}, 12
    v_add_u32 v{vT1}, s{sT1}, v{vD}
    s_cmp_eq_u32 s{sKH}, 0
    s_cbranch_scc0 {L}_k1
    """)
    for x, ac in enumerate((ACC2, ACC3)):
        for r in range(2): a(f"ds_write_b128 v{vT0}, {vr(ac+4*(2+r))} offset:{x*2048+r*1024}")
    a(f"s_branch {L}_k2")
    a.label(f"{L}_k1")
    for x, ac in enumerate((ACC2, ACC3)):
        for r in range(2): a(f"ds_write_b128 v{vT0}, {vr(ac+4*r)} offset:{x*2048+r*1024}")
    for x, ac in enumerate((ACC2, ACC3)):
        for i in range(8): a(f"v_mov_b32 v{ac+i}, v{ac+8+i}")
    a.label(f"{L}_k2")
    a("s_waitcnt lgkmcnt(0)")
    a("s_barrier")
    for x in range(2):
        for r in range(2): a(f"ds_read_b128 {vr(TMP+8*x+4*r)}, v{vT1} offset:{x*2048+r*1024}")
    a("s_waitcnt lgkmcnt(0) vmcnt(0)")
    for x, ac in enumerate((ACC2, ACC3)):
        for i in range(8): a(f"v_add_f32 v{ac+i}, v{ac+i}, v{TMP+8*x+i}")
    T = TMP + 16
    for i in range(8): a(f"v_mul_f32 v{T+i}, {hx(-LOG2E)}, v{ACC2+i}")
    for i in range(8): a(f"v_exp_f32 v{T+i}, v{T+i}")
    for i in range(8): a(f"v_mul_f32 v{ACC2+i}, v{ACC2+i}, v{ACC3+i}")
    for i in range(8): a(f"v_add_f32 v{T+i}, 1.0, v{T+i}")
    for i in range(8): a(f"v_rcp_f32 v{T+i}, v{T+i}")
    for r in range(2):
        for d in range(2):
            a(f"v_lshlrev_b32 v{TMP+4*r+2*d}, 16, v{XR+2*r+d}")
            a(f"v_and_b32 v{TMP+4*r+2*d+1}, 0xffff0000, v{XR+2*r+d}")
    for i in range(8): a(f"v_fmac_f32 v{TMP+i}, v{ACC2+i}, v{T+i}")
    for r in range(2):
        a(f"v_cvt_pk_bf16_f32 v{T+2*r}, v{TMP+4*r}, v{TMP+4*r+1}")
        a(f"v_cvt_pk_bf16_f32 v{T+2*r+1}, v{TMP+4*r+2}, v{TMP+4*r+3}")
    a(f"""
    s_movk_i32 s{sT1}, 0x4000
    buffer_store_dwordx2 v[{T}:{T+1}], v{vXO}, s[{SOUT}:{SOUT+3}], 0 offen
    buffer_store_dwordx2 v[{T+2}:{T+3}], v{vXO}, s[{SOUT}:{SOUT+3}], s{sT1} offen
    """)
    a.label(f"{L}_end")
    a("s_endpgm")
    return dict(lds=131072, vgpr=256, sgpr=96)

HEADER = open("cdna_kernels/%s.s.ref" % NAME).read().split("; Override launch")[0]

def build(kernels, path):
    body = ""; launches = ""; descs = ""
    for label, gen in kernels:
        a = Asm()
        info = gen(a)
        txt = a.render()
        body += f".globl {label}\n.p2align 8\n.type {label},@function\n{label}:\n{txt}"
        launches += f"; @launch kernel={label} grid=(256,1,1) block=(512,1,1) lds={info['lds']}\n"
        descs += f""".p2align 6
.amdhsa_kernel {label}
  .amdhsa_next_free_vgpr {info['vgpr']}
  .amdhsa_next_free_sgpr {info['sgpr']}
  .amdhsa_accum_offset {info['vgpr']}
  .amdhsa_group_segment_fixed_size 0
  .amdhsa_kernarg_size 80
  .amdhsa_user_sgpr_count 2
  .amdhsa_user_sgpr_kernarg_segment_ptr 1
  .amdhsa_system_sgpr_workgroup_id_x 1
.end_amdhsa_kernel
"""
        print(label, "instrs", sum(1 for k, _ in a.items if k == 'i'), "nops inserted", a.nnop, file=sys.stderr)
    out = HEADER + launches + '.amdgcn_target "amdgcn-amd-amdhsa--gfx950"\n.text\n' + body + '.section .rodata,"a"\n' + descs
    open(path, "w").write(out)

if __name__ == "__main__":
    path = sys.argv[1] if len(sys.argv) > 1 else f"cdna_kernels/{NAME}.s"
    build([("g1_kernel", gen_g1), ("att_kernel", gen_att), ("g23_kernel", gen_g23)], path)
```

```python
import sys, math, struct, re
sys.path.insert(0, "gen")
from asmlib import Asm

NAME = "recurrent_scan__sliding_block__geglu_ffn__prompt"
WS_H = 0
WS_O = 56 * 128 * 1024
WS_QKV = 72 * 128 * 1024
WS_END = WS_QKV + 96 * 65536
LOG2E = 1.4426950408889634
QSCALE = 0.25 * LOG2E
GK1 = -2.0 * math.sqrt(2.0 / math.pi) * LOG2E
GK2 = GK1 * 0.044715
NEGBIG = "0xf149f2ca"
def f2u(x): return struct.unpack("<I", struct.pack("<f", x))[0]
def hx(x): return "0x%08x" % f2u(x)
def vr(b, n=4): return f"v[{b}:{b+n-1}]"
def sr(b, n=4): return f"s[{b}:{b+n-1}]"

class Cnt:
    def __init__(self, name, mx): self.q = []; self.name = name; self.mx = mx
    def issue(self, tag, n=1): self.q += [tag] * n
    def wait(self, tag):
        idxs = [i for i, t in enumerate(self.q) if t == tag]
        if not idxs: return None
        idx = max(idxs); n = len(self.q) - 1 - idx
        n = min(n, self.mx)
        self.q = self.q[len(self.q) - n:] if n else []
        return f"s_waitcnt {self.name}({n})"
    def drain(self):
        self.q = []; return f"s_waitcnt {self.name}(0)"

STAMP = False
WS_STAMP = 32 << 20
OPT = dict(prefetch=True, codepf=True)

def gen(a):
    SC = " sc1"
    vm = Cnt("vmcnt", 63); lg = Cnt("lgkmcnt", 15)
    def W(x):
        if x: a(x)
    SX, SU0, SU1, SU2, SPG, SPU, SWS, SDBG = 24, 28, 32, 36, 40, 44, 48, 52
    sW, sMG, sNH, sRB, sCGQ, sCGL, sTB, sRL = 56, 57, 58, 59, 60, 61, 62, 63
    sP12, sKX, sK0, sK12, sT0, sT1, sT2, sT3 = 64, 65, 66, 67, 68, 69, 70, 71
    sLX, sLW, sU0, sPF, sXB, sSC0, sP0, sFL = 72, 73, 74, 75, 76, 77, 78, 79
    sCNT = 80
    SWD, SWO, SOUT = 28, 32, 36
    sHD, sQB, sJS, sMT, sNT, sCT, sKH, sAO = 81, 82, 83, 84, 85, 86, 87, 88
    sWQ, sWL = 89, 90
    nstamp = [0]
    def stamp(real=False):
        if not STAMP: return
        i = nstamp[0]; nstamp[0] += 1
        a("s_memrealtime s[92:93]" if real else "s_memtime s[92:93]")
        a("s_waitcnt lgkmcnt(0)"); lg.q = []
        a(f"v_writelane_b32 v{vSTAMP}, s92, {i}")
    vL, vX0, vX1, vWq, vW12, vWg = 0, 1, 2, 3, 4, 5
    vXR = [[6, 7], [8, 9]]; vWR = [10, 11]; vCR = [12, 13]
    vS = [14, 15]; vQ = [16, 17]; vST = [18, 19]
    ONES = 20; CSF = 24; CA = [28, 32]
    FR = 36; NF = 9
    SP = 72
    vD, vPOLL, vPO, vSTAMP = 72, 73, 74, 75
    QF = 76
    ACC = 80; XF = 128
    def xf(rt, kb): return XF + (kb * 2 + rt) * 4
    def acc(u, rt, ct): return ACC + ((u * 2 + rt) * 2 + ct) * 4
    SLOT = 40960
    SCR = 3 * SLOT; SCR_CS = SCR + 1024
    LK = SCR + 4096; LV = LK + 16384; LONE = LV + 16384 + 128
    LDS_TOTAL = 163840
    T = [FR + i for i in range(8)]

    a("s_cmp_ge_u32 s2, 256")
    a("s_cbranch_scc1 L_end")
    a("s_load_dwordx16 s[4:19], s[0:1], 0")
    a("s_load_dwordx4 s[20:23], s[0:1], 64")
    a(f"""
    v_lshrrev_b32 v{T[0]}, 6, v0
    v_and_b32 v{vL}, 63, v0
    v_readfirstlane_b32 s{sW}, v{T[0]}
    s_and_b32 s{sT0}, s2, 7
    s_lshr_b32 s{sT1}, s2, 3
    s_and_b32 s{sRB}, s{sT0}, 1
    s_lshl_b32 s{sRB}, s{sRB}, 3
    s_and_b32 s{sRL}, s{sT1}, 7
    s_add_u32 s{sRB}, s{sRB}, s{sRL}
    s_lshr_b32 s{sCGQ}, s{sT0}, 1
    s_lshr_b32 s{sCGL}, s{sT1}, 3
    s_lshr_b32 s{sMG}, s{sW}, 1
    s_and_b32 s{sNH}, s{sW}, 1
    s_lshl_b32 s{sLX}, s{sW}, 11
    s_lshl_b32 s{sLW}, s{sW}, 10
    s_lshl_b32 s{sXB}, s{sRB}, 17
    s_mul_i32 s{sT0}, s{sCGQ}, 3
    s_add_u32 s{sT1}, s{sT0}, s{sCGL}
    s_add_u32 s{sT2}, s{sT0}, 12
    s_lshl_b32 s{sP0}, s{sT1}, 1
    s_add_u32 s{sT3}, s{sP0}, 1
    s_add_u32 s{sPF}, s{sCGQ}, 24
    s_movk_i32 s{sP12}, 3584
    s_cmp_eq_u32 s{sCGL}, 3
    s_cselect_b32 s{sTB}, 1, 0
    s_cselect_b32 s{sU0}, s{sT2}, s{sT1}
    s_cselect_b32 s{sPF}, s{sPF}, s{sT3}
    s_cselect_b32 s{sP12}, 3072, s{sP12}
    """)
    if STAMP: a(f"v_mov_b32 v{vSTAMP}, 0")
    a(f"""
    v_lshrrev_b32 v{T[0]}, 3, v{vL}
    v_and_b32 v{T[1]}, 7, v{vL}
    v_lshrrev_b32 v{T[2]}, 4, v{vL}
    v_xor_b32 v{T[3]}, v{T[1]}, v{T[2]}
    s_lshl_b32 s{sT0}, s{sW}, 4
    v_add_u32 v{T[4]}, s{sT0}, v{T[0]}
    v_lshlrev_b32 v{T[4]}, 10, v{T[4]}
    v_lshl_add_u32 v{vX0}, v{T[3]}, 4, v{T[4]}
    v_xor_b32 v{vX1}, 64, v{vX0}
    v_add_u32 v{vX1}, 0x2000, v{vX1}
    s_lshl_b32 s{sT0}, s{sMG}, 4
    s_lshl_b32 s{sT1}, s{sNH}, 2
    s_add_u32 s{sT0}, s{sT0}, s{sT1}
    v_and_b32 v{T[4]}, 3, v{T[0]}
    v_lshrrev_b32 v{T[5]}, 2, v{T[0]}
    v_lshl_add_u32 v{T[4]}, v{T[5]}, 3, v{T[4]}
    v_add_u32 v{T[4]}, s{sT0}, v{T[4]}
    v_lshrrev_b32 v{T[5]}, 1, v{T[1]}
    v_xor_b32 v{T[5]}, v{T[5]}, v{T[2]}
    v_lshlrev_b32 v{T[5]}, 5, v{T[5]}
    v_and_b32 v{T[6]}, 1, v{T[1]}
    v_lshl_add_u32 v{T[5]}, v{T[6]}, 4, v{T[5]}
    v_mul_u32_u24 v{vWq}, 3072, v{T[4]}
    v_add_u32 v{vWq}, v{vWq}, v{T[5]}
    v_mul_u32_u24 v{vWg}, 3584, v{T[4]}
    v_add_u32 v{vWg}, v{vWg}, v{T[5]}
    v_mul_u32_u24 v{vW12}, s{sP12}, v{T[4]}
    v_add_u32 v{vW12}, v{vW12}, v{T[5]}
    s_lshl_b32 s{sP12}, s{sP12}, 6
    s_mov_b32 s{SX+2}, {2048*1024}
    s_mov_b32 s{SX+3}, 0x20000
    s_mov_b32 s{SU0+3}, 0x20000
    s_mov_b32 s{SU1+3}, 0x20000
    s_mov_b32 s{SU2+3}, 0x20000
    s_waitcnt lgkmcnt(0)
    """)
    stamp(); stamp(True)
    QSZ, GSZ = 512 * 3072, 512 * 3584
    a(f"""
    s_mov_b32 s{SX}, s4
    s_and_b32 s{SX+1}, s5, 0xffff
    s_lshl_b32 s{sT0}, s{sU0}, 7
    s_add_u32 s{SU0}, s6, s{sT0}
    s_addc_u32 s{SU0+1}, s7, 0
    s_and_b32 s{SU0+1}, s{SU0+1}, 0xffff
    s_sub_u32 s{SU0+2}, {QSZ}, s{sT0}
    """)
    for k, (S, plo) in enumerate(((SU1, 12), (SU2, 14))):
        a(f"""
        s_lshl_b32 s{sT0}, s{sP0}, 7
        s_add_u32 s{sT1}, s{sU0}, {k+1}
        s_lshl_b32 s{sT1}, s{sT1}, 7
        s_mov_b32 s{S+2}, {GSZ}
        s_cmp_eq_u32 s{sTB}, 1
        s_cselect_b32 s{sT0}, s{sT1}, s{sT0}
        s_cselect_b32 s{S}, s6, s{plo}
        s_cselect_b32 s{S+1}, s7, s{plo+1}
        s_cselect_b32 s{S+2}, {QSZ}, s{S+2}
        s_add_u32 s{S}, s{S}, s{sT0}
        s_addc_u32 s{S+1}, s{S+1}, 0
        s_and_b32 s{S+1}, s{S+1}, 0xffff
        s_sub_u32 s{S+2}, s{S+2}, s{sT0}
        """)
    def dma_p0(t):
        sl = (t % 3) * SLOT
        o = [f"s_add_u32 s{sKX}, s{sXB}, {t*128}",
             f"s_mov_b32 s{sK0}, {t*64*3072}",
             f"s_mul_i32 s{sK12}, s{sP12}, {t}",
             f"s_add_u32 m0, s{sLX}, {sl}",
             f"buffer_load_dwordx4 v{vX0}, {sr(SX)}, s{sKX} offen lds",
             f"s_add_u32 m0, s{sLX}, {sl+1024}",
             f"buffer_load_dwordx4 v{vX1}, {sr(SX)}, s{sKX} offen lds",
             f"s_add_u32 m0, s{sLW}, {sl+16384}",
             f"buffer_load_dwordx4 v{vWq}, {sr(SU0)}, s{sK0} offen lds",
             f"s_add_u32 m0, s{sLW}, {sl+16384+8192}",
             f"buffer_load_dwordx4 v{vW12}, {sr(SU1)}, s{sK12} offen lds",
             f"s_add_u32 m0, s{sLW}, {sl+16384+16384}",
             f"buffer_load_dwordx4 v{vW12}, {sr(SU2)}, s{sK12} offen lds"]
        return o, ("st", t), 5
    def dma_p1(Tq):
        sl = ((8 + Tq) % 3) * SLOT
        o = []
        for c2 in range(2):
            sk = sK0 if c2 == 0 else sK12
            o += [f"s_mov_b32 s{sk}, {(2*Tq+c2)*64*3584}",
                  f"s_add_u32 m0, s{sLW}, {sl+c2*16384}",
                  f"buffer_load_dwordx4 v{vWg}, {sr(SPG)}, s{sk} offen lds",
                  f"s_add_u32 m0, s{sLW}, {sl+c2*16384+8192}",
                  f"buffer_load_dwordx4 v{vWg}, {sr(SPU)}, s{sk} offen lds"]
        return o, ("st", 8 + Tq), 4
    def emit_dma(d):
        o, tag, n = d
        a.extend(o); vm.issue(tag, n)
    for t in range(3): emit_dma(dma_p0(t))
    for S, plo in ((SPG, 12), (SPU, 14)):
        a(f"""
        s_lshl_b32 s{sT0}, s{sPF}, 7
        s_add_u32 s{S}, s{plo}, s{sT0}
        s_addc_u32 s{S+1}, s{plo+1}, 0
        s_and_b32 s{S+1}, s{S+1}, 0xffff
        s_sub_u32 s{S+2}, {GSZ}, s{sT0}
        s_mov_b32 s{S+3}, 0x20000
        """)
    a(f"""
    s_mov_b32 s{SWS}, s22
    s_and_b32 s{SWS+1}, s23, 0xffff
    s_mov_b32 s{SWS+2}, {WS_END}
    s_mov_b32 s{SWS+3}, 0x20000
    s_mov_b32 s{SDBG}, s20
    s_and_b32 s{SDBG+1}, s21, 0xffff
    s_movk_i32 s{SDBG+2}, 256
    s_mov_b32 s{SDBG+3}, 0x20000
    """)
    if OPT["prefetch"]:
        a(f"""
        s_cmp_lt_u32 s{sW}, 3
        s_cbranch_scc0 L_pfw
        v_and_b32 v{T[0]}, 31, v{vL}
        v_lshrrev_b32 v{T[1]}, 5, v{vL}
        v_lshlrev_b32 v{T[0]}, 10, v{T[0]}
        v_lshl_add_u32 v{T[0]}, v{T[1]}, 7, v{T[0]}
        s_lshl_b32 s{sT0}, s{sCGL}, 15
        s_add_u32 s{sT0}, s{sT0}, s{sXB}
        s_lshl_b32 s{sT1}, s{sW}, 8
        s_add_u32 s{sT0}, s{sT0}, s{sT1}
        buffer_load_dword v{vPOLL}, v{T[0]}, {sr(SX)}, s{sT0} offen offset:256
        s_branch L_pfd
        L_pfw:
        s_lshl_b32 s{sT0}, s{sRL}, 6
        v_add_u32 v{T[0]}, s{sT0}, v{vL}
        v_mul_u32_u24 v{T[1]}, 3072, v{T[0]}
        v_mul_u32_u24 v{T[2]}, 3584, v{T[0]}
        s_lshr_b32 s{sT1}, s{sP12}, 6
        v_mul_u32_u24 v{T[3]}, s{sT1}, v{T[0]}
        """)
        for k, (S, vv) in enumerate(((SU0, T[1]), (SU1, T[3]), (SU2, T[3]), (SPG, T[2]), (SPU, T[2]))):
            a(f"""
            s_cmp_eq_u32 s{sW}, {3+k}
            s_cbranch_scc0 L_pf{k}
            buffer_load_dword v{vPOLL}, v{vv}, {sr(S)}, 0 offen
            L_pf{k}:
            """)
        a.label("L_pfd")
        vm.issue("pf", 1)
    if OPT["codepf"]:
        a(f"""
        s_getpc_b64 s[92:93]
        L_pc:
        s_and_b32 s92, s92, 0xffffff00
        s_and_b32 s93, s93, 0xffff
        s_mov_b32 s94, CODE_BYTES
        s_mov_b32 s95, 0x20000
        v_lshlrev_b32 v{T[0]}, 7, v{vL}
        s_lshl_b32 s{sT0}, s{sW}, 13
        buffer_load_dword v{vPOLL}, v{T[0]}, s[92:95], s{sT0} offen
        """)
        vm.issue("pf", 1)
    a(f"""
    v_and_b32 v{T[0]}, 15, v{vL}
    v_lshrrev_b32 v{T[1]}, 4, v{vL}
    v_lshrrev_b32 v{T[2]}, 1, v{T[0]}
    v_xor_b32 v{T[2]}, v{T[2]}, v{T[1]}
    v_lshlrev_b32 v{T[2]}, 4, v{T[2]}
    v_lshl_add_u32 v{T[2]}, v{T[0]}, 7, v{T[2]}
    v_add_u32 v{vXR[0][0]}, s{sLX}, v{T[2]}
    v_xor_b32 v{vXR[0][1]}, 64, v{vXR[0][0]}
    v_xor_b32 v{vXR[1][0]}, 0x800, v{vXR[0][0]}
    v_xor_b32 v{vXR[1][1]}, 0x800, v{vXR[0][1]}
    v_lshrrev_b32 v{T[2]}, 2, v{T[0]}
    v_and_b32 v{T[3]}, 3, v{T[0]}
    v_and_b32 v{T[4]}, 1, v{T[1]}
    v_lshl_add_u32 v{T[5]}, v{T[4]}, 2, v{T[2]}
    v_lshrrev_b32 v{T[4]}, 1, v{T[5]}
    v_lshlrev_b32 v{T[4]}, 5, v{T[4]}
    v_lshl_add_u32 v{T[4]}, v{T[5]}, 7, v{T[4]}
    v_lshl_add_u32 v{T[4]}, v{T[3]}, 3, v{T[4]}
    v_lshrrev_b32 v{T[5]}, 1, v{T[1]}
    v_lshl_add_u32 v{T[4]}, v{T[5]}, 11, v{T[4]}
    s_lshl_b32 s{sT0}, s{sNH}, 6
    v_xor_b32 v{vWR[0]}, s{sT0}, v{T[4]}
    v_xor_b32 v{vWR[1]}, 32, v{vWR[0]}
    """)
    a(f"""
    s_mul_i32 s{sT0}, s{sMG}, 3
    s_lshl_b32 s{sT1}, s{sNH}, 1
    s_add_u32 s{sT1}, s{sT1}, s{sT0}
    s_and_b32 s{sT2}, s{sT1}, 3
    s_lshl_b32 s{sT2}, s{sT2}, 5
    v_xor_b32 v{vCR[0]}, s{sT2}, v{T[4]}
    s_lshr_b32 s{sT2}, s{sT1}, 2
    s_lshl_b32 s{sT2}, s{sT2}, 13
    v_add_u32 v{vCR[0]}, s{sT2}, v{vCR[0]}
    s_add_u32 s{sT1}, s{sT0}, 1
    s_and_b32 s{sT2}, s{sT1}, 3
    s_lshl_b32 s{sT2}, s{sT2}, 5
    v_xor_b32 v{vCR[1]}, s{sT2}, v{T[4]}
    s_lshr_b32 s{sT2}, s{sT1}, 2
    s_lshl_b32 s{sT2}, s{sT2}, 13
    s_lshl_b32 s{sT3}, s{sNH}, 12
    s_add_u32 s{sT2}, s{sT2}, s{sT3}
    v_add_u32 v{vCR[1]}, s{sT2}, v{vCR[1]}
    v_mov_b32 v{vPO}, v{T[4]}
    v_lshlrev_b32 v{vD}, 4, v{vL}
    """)
    for r in vS + vQ: a(f"v_mov_b32 v{r}, 0")
    for i in range(4): a(f"v_mov_b32 v{ONES+i}, 0x3f803f80")
    for i in range(8): a(f"v_mov_b32 v{CA[0]+i}, 0")
    for i in range(48): a(f"v_mov_b32 v{ACC+i}, 0")
    a(f"""
    s_lshl_b32 s{sFL}, s{sRB}, 4
    s_lshl_b32 s{sT0}, s{sCGQ}, 2
    s_add_u32 s{sT0}, s{sT0}, s{sCGL}
    s_add_u32 s{sFL}, s{sFL}, s{sT0}
    s_lshr_b32 s{sQB}, s{sRB}, 1
    s_and_b32 s{sHD}, s{sFL}, 31
    s_lshr_b32 s{sT1}, s2, 3
    s_and_b32 s{sMT}, s{sT1}, 3
    s_lshl_b32 s{sT2}, s{sCGQ}, 2
    s_add_u32 s{sMT}, s{sMT}, s{sT2}
    s_and_b32 s{sT2}, s2, 1
    s_lshl_b32 s{sT2}, s{sT2}, 4
    s_add_u32 s{sMT}, s{sMT}, s{sT2}
    s_lshr_b32 s{sNT}, s{sT1}, 2
    s_and_b32 s{sCT}, s{sW}, 3
    s_lshr_b32 s{sKH}, s{sW}, 2
    s_sub_u32 s{sJS}, 8, s{sW}
    s_cmp_eq_u32 s{sQB}, 0
    s_cselect_b32 s{sJS}, s{sJS}, 0
    """)
    a(f"v_add_u32 v{T[0]}, {LONE}, v{vD}")
    a(f"ds_write_b128 v{T[0]}, {vr(ONES)}"); lg.issue("misc")

    def fslot(n): return FR + (n % NF) * 4
    def rd_x(h):
        o = []
        for rt in range(2):
            o.append((f"ds_read_b128 {vr(xf(rt, h))}, v{vXR[rt][h & 1]}", ("x", h)))
        return o
    def rd_w0(h, i):
        u, ct = i >> 1, i & 1
        f = fslot(6 * h + i)
        return [(f"ds_read_b64_tr_b16 {vr(f+2*hh, 2)}, v{vWR[ct]} offset:{16384+u*8192+(h&1)*4096+hh*1024}", ("w", h, i)) for hh in range(2)]
    def rd_cs(job, tag):
        r = vCR[0] if job < 2 else vCR[1]
        off = 16384 + (job * 4096 if job < 2 else 0)
        return [(f"ds_read_b64_tr_b16 {vr(CSF+2*hh, 2)}, v{r} offset:{off+hh*1024}", tag) for hh in range(2)]
    def mf_cs(job):
        c = CA[0] if job < 2 else CA[1]
        return f"v_mfma_f32_16x16x32_bf16 {vr(c)}, {vr(CSF)}, {vr(ONES)}, {vr(c)}"
    def lds(lst):
        for ins, tag in lst: a(ins); lg.issue(tag)
    def stat_ops(h):
        o = []
        for j in range(4):
            x = xf(0, h) + j
            o += [f"v_lshlrev_b32 v{vST[0]}, 16, v{x}", f"v_and_b32 v{vST[1]}, 0xffff0000, v{x}",
                  f"v_add_f32 v{vS[0]}, v{vS[0]}, v{vST[0]}", f"v_add_f32 v{vS[1]}, v{vS[1]}, v{vST[1]}",
                  f"v_fmac_f32 v{vQ[0]}, v{vST[0]}, v{vST[0]}", f"v_fmac_f32 v{vQ[1]}, v{vST[1]}, v{vST[1]}"]
        return o
    def slot_adv(t_next, regs):
        d = SLOT if (t_next % 3) else -2 * SLOT
        return [f"v_add_u32 v{r}, {d & 0xffffffff}, v{r}" for r in regs]
    stamp()
    W(vm.wait(("st", 0)))
    a("s_barrier")
    stamp()
    lds(rd_x(0))
    for i in range(6): lds(rd_w0(0, i))
    for job in range(2):
        lds(rd_cs(job, "cs")); W(lg.wait("cs")); a(mf_cs(job))
    for h in range(16):
        t = h >> 1; odd = h & 1
        valu = stat_ops(h)
        misc = []
        dmainfo = None
        if odd:
            regs = ([vXR[0][0], vXR[0][1], vXR[1][0], vXR[1][1], vCR[0], vCR[1]] if t < 7 else []) + vWR
            a.extend(slot_adv(t + 1, regs))
            d = dma_p0(t + 3) if t + 3 < 8 else dma_p1(t + 3 - 8)
            misc = list(d[0]); dmainfo = d
        nxt = h + 1 < 16
        if nxt:
            lds(rd_x(h + 1))
            for i in range(3): lds(rd_w0(h + 1, i))
        jobs = []
        if odd and t < 7: jobs = [0, 1]
        if not odd: jobs = [2]
        if jobs: lds(rd_cs(jobs[0], ("cs", h, 0)))
        W(lg.wait(("x", h)))
        vi = 0; mi = 0
        for i in range(6):
            W(lg.wait(("w", h, i)))
            u, ct = i >> 1, i & 1
            for rt in range(2):
                a(f"v_mfma_f32_16x16x32_bf16 {vr(acc(u,rt,ct))}, {vr(fslot(6*h+i))}, {vr(xf(rt,h))}, {vr(acc(u,rt,ct))}")
                for _ in range(2):
                    if vi < len(valu): a(valu[vi]); vi += 1
                for _ in range(2):
                    if mi < len(misc): a(misc[mi]); mi += 1
            if nxt and i < 3: lds(rd_w0(h + 1, i + 3))
            if jobs and i == 1:
                W(lg.wait(("cs", h, 0))); a(mf_cs(jobs[0]))
                if len(jobs) > 1: lds(rd_cs(jobs[1], ("cs", h, 1)))
            if len(jobs) > 1 and i == 4:
                W(lg.wait(("cs", h, 1))); a(mf_cs(jobs[1]))
        while mi < len(misc): a(misc[mi]); mi += 1
        if dmainfo: vm.issue(dmainfo[1], dmainfo[2])
        if not odd:
            a(lg.drain())
            W(vm.wait(("st", t + 1)))
            a("s_barrier")
    stamp()
    E = FR
    CSR = E
    TMP = E + 24
    vNM = [vS[0], vS[1]]; vVE = [vQ[0], vQ[1]]
    vA_ = [vXR[0][0], vXR[0][1]]; vC1 = [vXR[1][0], vXR[1][1]]; vC2 = [vST[0], vST[1]]
    vQA, vRS = CSF, CSF + 1
    def xreduce(v, tmp):
        a(f"v_mov_b32 v{tmp}, v{v}")
        a(f"v_permlane32_swap_b32 v{v}, v{tmp}")
        a(f"v_add_f32 v{v}, v{v}, v{tmp}")
        a(f"v_mov_b32 v{tmp}, v{v}")
        a(f"v_permlane16_swap_b32 v{v}, v{tmp}")
        a(f"v_add_f32 v{v}, v{v}, v{tmp}")
    def row_consts():
        for rt in range(2):
            a(f"v_rsq_f32 v{vA_[rt]}, v{vVE[rt]}")
        for rt in range(2):
            a(f"v_mul_f32 v{vC1[rt]}, {hx(GK1)}, v{vA_[rt]}")
            a(f"v_mul_f32 v{vC2[rt]}, v{vA_[rt]}, v{vA_[rt]}")
            a(f"v_mul_f32 v{vC2[rt]}, v{vC2[rt]}, v{vA_[rt]}")
            a(f"v_mul_f32 v{vC2[rt]}, {hx(GK2)}, v{vC2[rt]}")
    def fold(u, rt, ct):
        for r in range(4):
            a(f"v_fmac_f32 v{acc(u,rt,ct)+r}, v{vNM[rt]}, v{CSR+4*(u*2+ct)+r}")
    def st_qkv(u, uadd):
        a(f"""
        s_add_u32 s{sT0}, s{sU0}, {uadd}
        s_cmp_lt_u32 s{sT0}, 8
        s_cselect_b32 s{sSC0}, {hx(QSCALE)}, 1.0
        s_lshl_b32 s{sT0}, s{sT0}, 2
        s_lshl_b32 s{sT1}, s{sNH}, 1
        s_add_u32 s{sT0}, s{sT0}, s{sT1}
        s_lshl_b32 s{sT0}, s{sT0}, 16
        s_add_u32 s{sT0}, s{sT0}, {WS_QKV}
        s_add_u32 s{sT1}, s{sT0}, 0x10000
        v_mul_f32 v{vRS}, s{sSC0}, v{vA_[0]}
        v_mul_f32 v{vRS+1}, s{sSC0}, v{vA_[1]}
        """)
        for ct in range(2):
            Tq = TMP + 4 * ct
            for rt in range(2):
                fold(u, rt, ct)
                x = acc(u, rt, ct)
                for r in range(4): a(f"v_mul_f32 v{x+r}, v{vRS+rt}, v{x+r}")
                a(f"v_cvt_pk_bf16_f32 v{Tq+2*rt}, v{x}, v{x+1}")
                a(f"v_cvt_pk_bf16_f32 v{Tq+2*rt+1}, v{x+2}, v{x+3}")
            a(f"v_permlane16_swap_b32 v{Tq}, v{Tq+2}")
            a(f"v_permlane16_swap_b32 v{Tq+1}, v{Tq+3}")
            a(f"buffer_store_dwordx4 {vr(Tq)}, v{vQA}, {sr(SWS)}, s{sT0 if ct == 0 else sT1} offen{SC}")
    def st_h(ug, uu, spair):
        a(f"""
        s_lshl_b32 s{sT0}, s{spair}, 1
        s_add_u32 s{sT0}, s{sT0}, s{sNH}
        s_lshl_b32 s{sT0}, s{sT0}, 7
        s_lshl_b32 s{sT1}, s{sRB}, 3
        s_add_u32 s{sT0}, s{sT0}, s{sT1}
        s_add_u32 s{sT0}, s{sT0}, s{sW}
        s_lshl_b32 s{sT0}, s{sT0}, 10
        s_xor_b32 s{sT1}, s{sT0}, 0x400
        """)
        for rt in range(2):
            Tq = TMP + 4 + 4 * rt
            for ct in range(2):
                fold(ug, rt, ct); fold(uu, rt, ct)
                g, u = acc(ug, rt, ct), acc(uu, rt, ct)
                t = TMP
                for r in range(4): a(f"v_mul_f32 v{t+r}, v{g+r}, v{g+r}")
                for r in range(4): a(f"v_fma_f32 v{t+r}, v{t+r}, v{vC2[rt]}, v{vC1[rt]}")
                for r in range(4): a(f"v_mul_f32 v{t+r}, v{t+r}, v{g+r}")
                for r in range(4): a(f"v_exp_f32 v{t+r}, v{t+r}")
                for r in range(4): a(f"v_mul_f32 v{g+r}, v{g+r}, v{u+r}")
                for r in range(4): a(f"v_fma_f32 v{t+r}, v{t+r}, v{vVE[rt]}, v{vVE[rt]}")
                for r in range(4): a(f"v_rcp_f32 v{t+r}, v{t+r}")
                for r in range(4): a(f"v_mul_f32 v{g+r}, v{g+r}, v{t+r}")
                a(f"v_cvt_pk_bf16_f32 v{Tq+2*ct}, v{g}, v{g+1}")
                a(f"v_cvt_pk_bf16_f32 v{Tq+2*ct+1}, v{g+2}, v{g+3}")
            a(f"buffer_store_dwordx4 {vr(Tq)}, v{vD}, {sr(SWS)}, s{sT0 if rt == 0 else sT1} offen{SC}")
    a(f"""
    v_add_f32 v{vS[0]}, v{vS[0]}, v{vS[1]}
    v_add_f32 v{vQ[0]}, v{vQ[0]}, v{vQ[1]}
    v_lshrrev_b32 v{TMP}, 4, v{vL}
    v_lshlrev_b32 v{TMP}, 4, v{TMP}
    s_mul_i32 s{sT0}, s{sMG}, {3*128}
    s_add_u32 s{sT0}, s{sT0}, {SCR_CS}
    s_lshl_b32 s{sT1}, s{sNH}, 8
    s_add_u32 s{sT1}, s{sT1}, s{sT0}
    v_add_u32 v{TMP+1}, s{sT1}, v{TMP}
    s_lshl_b32 s{sT1}, s{sNH}, 6
    s_add_u32 s{sT1}, s{sT1}, s{sT0}
    v_add_u32 v{TMP+2}, s{sT1}, v{TMP}
    v_mov_b32 v{TMP+4}, 0
    v_mov_b32 v{TMP+5}, 0
    v_mov_b32 v{TMP+6}, 0
    v_mov_b32 v{TMP+7}, 0
    ds_write_b128 v{TMP+1}, {vr(CA[0])}
    ds_write_b128 v{TMP+1}, {vr(TMP+4)} offset:64
    ds_write_b128 v{TMP+2}, {vr(CA[1])} offset:128
    """)
    xreduce(vS[0], TMP + 3); xreduce(vQ[0], TMP + 8)
    a(f"""
    v_mul_f32 v{vNM[0]}, {hx(-1.0/512)}, v{vS[0]}
    v_mul_f32 v{TMP+3}, v{vNM[0]}, v{vNM[0]}
    v_mov_b32 v{TMP+8}, {hx(1.0/512)}
    v_fma_f32 v{vVE[0]}, v{vQ[0]}, v{TMP+8}, -v{TMP+3}
    v_max_f32 v{vVE[0]}, 0, v{vVE[0]}
    v_add_f32 v{vVE[0]}, {hx(1e-5)}, v{vVE[0]}
    v_and_b32 v{TMP+3}, 15, v{vL}
    v_lshlrev_b32 v{TMP+3}, 2, v{TMP+3}
    s_lshl_b32 s{sT0}, s{sW}, 7
    s_add_u32 s{sT0}, s{sT0}, {SCR}
    v_add_u32 v{TMP+8}, s{sT0}, v{TMP+3}
    ds_write_b32 v{TMP+8}, v{vNM[0]}
    ds_write_b32 v{TMP+8}, v{vVE[0]} offset:64
    v_xor_b32 v{TMP+8}, 0x80, v{TMP+8}
    s_lshl_b32 s{sT0}, s{sNH}, 8
    s_add_u32 s{sT0}, s{sT0}, {SCR_CS}
    v_add_u32 v{TMP}, s{sT0}, v{TMP}
    s_waitcnt lgkmcnt(0)
    s_barrier
    ds_read_b32 v{vNM[1]}, v{TMP+8}
    ds_read_b32 v{vVE[1]}, v{TMP+8} offset:64
    """)
    lg.q = []
    for u in range(3):
        for ct in range(2):
            a(f"ds_read_b128 {vr(CSR+4*(2*u+ct))}, v{TMP} offset:{(4*u+ct)*128}")
    P2 = [CA[0], CA[1], TMP + 4, TMP + 8]
    for base in (0, 4):
        tiles = [k for k in range(base, min(base + 4, 6))]
        for n, k in enumerate(tiles):
            a(f"ds_read_b128 {vr(P2[n])}, v{TMP} offset:{(4*(k>>1)+(k&1))*128+64}")
        a("s_waitcnt lgkmcnt(0)")
        for n, k in enumerate(tiles):
            for r in range(4): a(f"v_add_f32 v{CSR+4*k+r}, v{CSR+4*k+r}, v{P2[n]+r}")
    row_consts()
    a(f"""
    v_and_b32 v{TMP}, 31, v{vL}
    s_lshl_b32 s{sT0}, s{sNH}, 4
    v_xor_b32 v{TMP}, s{sT0}, v{TMP}
    v_lshrrev_b32 v{TMP+1}, 5, v{vL}
    v_lshlrev_b32 v{TMP+1}, 4, v{TMP+1}
    v_lshl_add_u32 v{vQA}, v{TMP}, 5, v{TMP+1}
    s_lshl_b32 s{sT0}, s{sRB}, 12
    s_lshl_b32 s{sT1}, s{sMG}, 10
    s_add_u32 s{sT0}, s{sT0}, s{sT1}
    v_add_u32 v{vQA}, s{sT0}, v{vQA}
    """)
    stamp()
    st_qkv(0, 0)
    a(f"s_cmp_eq_u32 s{sTB}, 1")
    a(f"s_cbranch_scc1 L_tb")
    st_h(1, 2, sP0)
    a("s_branch L_p1")
    a.label("L_tb")
    st_qkv(1, 1); st_qkv(2, 2)
    a.label("L_p1")
    vm.issue("e0", 4)
    stamp()
    a(f"""
    s_lshl_b32 s{sT0}, s{sCT}, 5
    v_xor_b32 v{vCR[0]}, s{sT0}, v{vPO}
    s_lshl_b32 s{sT0}, s{sKH}, 13
    s_add_u32 s{sT0}, s{sT0}, {2*SLOT}
    v_add_u32 v{vCR[0]}, s{sT0}, v{vCR[0]}
    """)
    for i in range(4): a(f"v_mov_b32 v{CA[0]+i}, 0")
    for i in range(32): a(f"v_mov_b32 v{ACC+i}, 0")
    def f1slot(kb, i): return FR + ((kb & 1) * 4 + i) * 4
    def rd_w1(kb):
        q = kb & 3; o = []
        for i in range(4):
            u, ct = i >> 1, i & 1
            for hh in range(2):
                o.append((f"ds_read_b64_tr_b16 {vr(f1slot(kb,i)+2*hh,2)}, v{vWR[ct]} offset:{(q>>1)*16384+u*8192+(q&1)*4096+hh*1024}", ("w1", kb, i)))
        return o
    CSF1 = [CSF, FR + 32]
    def rd_cs1(kb):
        q = kb & 3
        return [(f"ds_read_b64_tr_b16 {vr(CSF1[kb&1]+2*hh,2)}, v{vCR[0]} offset:{(q>>1)*16384+(q&1)*4096+hh*1024}", ("c1", kb)) for hh in range(2)]
    vWS = vX0
    def wbatch_setup():
        a(f"""
        v_lshrrev_b32 v{TMP}, 3, v{vL}
        v_and_b32 v{TMP+1}, 7, v{vL}
        v_lshrrev_b32 v{TMP+2}, 4, v{vL}
        v_lshrrev_b32 v{TMP+3}, 1, v{TMP+1}
        v_xor_b32 v{TMP+3}, v{TMP+3}, v{TMP+2}
        v_lshlrev_b32 v{TMP+3}, 5, v{TMP+3}
        v_and_b32 v{TMP+1}, 1, v{TMP+1}
        v_lshl_add_u32 v{TMP+3}, v{TMP+1}, 4, v{TMP+3}
        v_lshl_add_u32 v{vWS}, v{TMP}, 10, v{TMP+3}
        s_lshl_b32 s{sT0}, s{sNT}, 7
        s_lshl_b32 s{sT1}, s{sCT}, 13
        s_add_u32 s{sT0}, s{sT0}, s{sT1}
        v_add_u32 v{vWS}, s{sT0}, v{vWS}
        s_mov_b32 s{SWD}, s16
        s_and_b32 s{SWD+1}, s17, 0xffff
        s_mov_b32 s{SWD+2}, {1792*1024}
        s_mov_b32 s{SWO}, s8
        s_and_b32 s{SWO+1}, s9, 0xffff
        s_mov_b32 s{SWO+2}, {512*1024}
        s_mov_b32 s{SOUT}, s18
        s_and_b32 s{SOUT+1}, s19, 0xffff
        s_mov_b32 s{SOUT+2}, {2048*1024}
        s_mul_i32 s{sWQ}, s{sKH}, {28*32*1024}
        s_lshl_b32 s{sWL}, s{sKH}, 14
        s_lshl_b32 s{sT0}, s{sCT}, 10
        s_add_u32 s{sWL}, s{sWL}, s{sT0}
        s_lshl_b32 s{sAO}, s{sMT}, 12
        s_lshl_b32 s{sT0}, s{sCT}, 17
        s_add_u32 s{sAO}, s{sAO}, s{sT0}
        """)
    def bdma(b):
        ar = (b % 3) * SLOT
        o = []
        if b < 9:
            for j in range(4):
                i = 4 * b + j
                if i < 28:
                    o += [f"s_add_u32 s{sT0}, s{sWQ}, {i*32*1024}"]; S = SWD
                else:
                    o += [f"s_lshl_b32 s{sT0}, s{sKH}, 18", f"s_add_u32 s{sT0}, s{sT0}, {(i-28)*32*1024}"]; S = SWO
                o += [f"s_add_u32 m0, s{sWL}, {ar + j*4096}",
                      f"buffer_load_dwordx4 v{vWS}, {sr(S)}, s{sT0} offen lds"]
        else:
            s = b - 9
            if s < 7: o += [f"s_mul_i32 s{sT0}, s{sKH}, {28*131072}", f"s_add_u32 s{sT0}, s{sT0}, {4*s*131072}"]
            else:     o += [f"s_lshl_b32 s{sT0}, s{sKH}, 20", f"s_add_u32 s{sT0}, s{sT0}, {(56+4*(s-7))*131072}"]
            o += [f"s_add_u32 s{sT0}, s{sT0}, s{sAO}", f"s_lshl_b32 s{sT1}, s{sW}, 12", f"s_add_u32 m0, s{sT1}, {ar}"]
            for q in range(4):
                o.append(f"buffer_load_dwordx4 v{vD}, {sr(SWS)}, s{sT0} offen offset:{q*1024}{SC} lds")
        return o, ("b", b), 4
    wbatch_setup()
    npoll = [0]
    def publish(level):
        n = npoll[0]; npoll[0] += 1
        a(f"""
        s_cmp_eq_u32 s{sW}, 0
        s_cbranch_scc0 L_pub{n}
        v_mov_b32 v{vPOLL}, {level}
        v_mov_b32 v{vPO}, s{sFL}
        s_mov_b64 exec, 1
        buffer_store_byte v{vPOLL}, v{vPO}, {sr(SDBG)}, 0 offen{SC}
        s_mov_b64 exec, -1
        L_pub{n}:
        """)
    def poll_issue(tag, sbase, ndw):
        a(f"v_and_b32 v{vPO}, {ndw-1}, v{vL}")
        a(f"v_lshlrev_b32 v{vPO}, 2, v{vPO}")
        a(f"buffer_load_dword v{vPOLL}, v{vPO}, {sr(SDBG)}, s{sbase} offen{SC}")
        vm.issue(tag)
    def poll_check(tag, sbase, bit, ndw):
        n = npoll[0]; npoll[0] += 1
        M = bit * 0x01010101
        W(vm.wait(tag))
        a(f"""
        s_mov_b32 s{sCNT}, 0
        L_pl{n}:
        v_and_b32 v{vPOLL}, {hex(M)}, v{vPOLL}
        v_cmp_ne_u32 vcc, {hex(M)}, v{vPOLL}
        s_cbranch_vccz L_pd{n}
        s_add_u32 s{sCNT}, s{sCNT}, 1
        s_cmp_gt_u32 s{sCNT}, 0x8000
        s_cbranch_scc1 L_pd{n}
        s_sleep 4
        v_and_b32 v{vPO}, {ndw-1}, v{vL}
        v_lshlrev_b32 v{vPO}, 2, v{vPO}
        buffer_load_dword v{vPOLL}, v{vPO}, {sr(SDBG)}, s{sbase} offen{SC}
        s_waitcnt vmcnt(0)
        s_branch L_pl{n}
        L_pd{n}:
        """)
    sPB = sXB
    lds(rd_w1(0)); lds(rd_cs1(0))
    for kb in range(16):
        Tq, q = kb >> 2, kb & 3; g = 8 + Tq
        misc = []; dmainfo = None
        if q == 3:
            if Tq < 3: a.extend(slot_adv(g + 1, vWR + [vCR[0]]))
            if Tq == 0: dmainfo = dma_p1(3)
            elif Tq in (1, 2): dmainfo = bdma(Tq - 1)
            if dmainfo: misc = list(dmainfo[0])
        if kb < 15:
            lds(rd_w1(kb + 1)); lds(rd_cs1(kb + 1))
        mi = 0
        for i in range(4):
            W(lg.wait(("w1", kb, i)))
            u, ct = i >> 1, i & 1
            for rt in range(2):
                a(f"v_mfma_f32_16x16x32_bf16 {vr(acc(u,rt,ct))}, {vr(f1slot(kb,i))}, {vr(xf(rt,kb))}, {vr(acc(u,rt,ct))}")
                for _ in range(2):
                    if mi < len(misc): a(misc[mi]); mi += 1
        W(lg.wait(("c1", kb)))
        a(f"v_mfma_f32_16x16x32_bf16 {vr(CA[0])}, {vr(CSF1[kb&1])}, {vr(ONES)}, {vr(CA[0])}")
        while mi < len(misc): a(misc[mi]); mi += 1
        if dmainfo: vm.issue(dmainfo[1], dmainfo[2])
        if q == 2 and Tq < 3:
            a(lg.drain())
            if Tq == 1:
                W(vm.wait("e0"))
            else:
                W(vm.wait(("st", g + 1)))
            a("s_barrier")
            if Tq == 1: publish(1)
        if kb == 12:
            a(f"""
            s_lshl_b32 s{sPB}, s{sQB}, 5
            s_sub_i32 s{sPB}, s{sPB}, 32
            s_max_i32 s{sPB}, s{sPB}, 0
            """)
            poll_issue("p1", sPB, 16)
    stamp()
    a(f"""
    v_lshrrev_b32 v{TMP}, 4, v{vL}
    v_lshlrev_b32 v{TMP}, 4, v{TMP}
    s_lshl_b32 s{sT0}, s{sW}, 6
    s_add_u32 s{sT0}, s{sT0}, {SCR_CS}
    v_add_u32 v{TMP+1}, s{sT0}, v{TMP}
    ds_write_b128 v{TMP+1}, {vr(CA[0])}
    s_lshl_b32 s{sT0}, s{sNH}, 7
    s_add_u32 s{sT0}, s{sT0}, {SCR_CS}
    v_add_u32 v{TMP}, s{sT0}, v{TMP}
    s_waitcnt lgkmcnt(0)
    s_barrier
    """)
    lg.q = []
    for u in range(2):
        for ct in range(2):
            a(f"ds_read_b128 {vr(CSR+4*(2*u+ct))}, v{TMP} offset:{(4*u+ct)*64}")
    emit_dma(bdma(2))
    poll_check("p1", sPB, 1, 16)
    vKR = vX1
    a(f"""
    s_lshl_b32 s{sT0}, s{sQB}, 8
    s_lshl_b32 s{sT1}, s{sW}, 6
    s_add_u32 s{sT1}, s{sT1}, s{sT0}
    s_sub_i32 s{sT1}, s{sT1}, 256
    s_max_i32 s{sT1}, s{sT1}, 0
    s_lshl_b32 s{sT1}, s{sT1}, 5
    s_lshl_b32 s{sT2}, s{sHD}, 16
    s_add_u32 s{sT1}, s{sT1}, s{sT2}
    s_add_u32 s{sT3}, s{sT1}, {WS_QKV + 64*65536}
    s_add_u32 s{sT1}, s{sT1}, {WS_QKV + 32*65536}
    s_add_u32 m0, s{sLX}, {LK}
    buffer_load_dwordx4 v{vD}, {sr(SWS)}, s{sT1} offen{SC} lds
    buffer_load_dwordx4 v{vD}, {sr(SWS)}, s{sT1} offen offset:1024{SC} lds
    s_add_u32 m0, s{sLX}, {LV}
    buffer_load_dwordx4 v{vD}, {sr(SWS)}, s{sT3} offen{SC} lds
    buffer_load_dwordx4 v{vD}, {sr(SWS)}, s{sT3} offen offset:1024{SC} lds
    v_and_b32 v{TMP}, 31, v{vL}
    v_lshrrev_b32 v{TMP+1}, 5, v{vL}
    v_lshlrev_b32 v{TMP+1}, 4, v{TMP+1}
    v_lshl_add_u32 v{vKR}, v{TMP}, 5, v{TMP+1}
    s_lshl_b32 s{sT1}, s{sW}, 5
    s_add_u32 s{sT1}, s{sT1}, s{sT0}
    s_lshl_b32 s{sT1}, s{sT1}, 5
    s_add_u32 s{sT1}, s{sT1}, s{sT2}
    s_add_u32 s{sT1}, s{sT1}, {WS_QKV}
    buffer_load_dwordx4 {vr(QF)}, v{vKR}, {sr(SWS)}, s{sT1} offen{SC}
    s_add_u32 s{sT0}, s{sLW}, {LK}
    v_add_u32 v{vKR}, s{sT0}, v{vKR}
    """)
    vm.issue("kv", 5)
    row_consts()
    a("s_waitcnt lgkmcnt(0)")
    st_h(0, 1, sPF)
    vm.issue("e1", 2)
    stamp()
    WF = 112
    vVR, vVS, vRH, vRO, vM = 3, 4, 5, 6, 7
    P2r = 8; KF = [16, 20]; VT = 24; P = 32; S = [40, 56]; NEG = 80; O = 96
    t0, t1, t2 = 24, 25, 26
    MASK = 4
    MP = [4 + 2 * i for i in range(10)] + [40, 42, 44, 46] + [64, 66]
    a(f"""
    v_and_b32 v{t0}, 31, v{vL}
    v_lshrrev_b32 v{t1}, 5, v{vL}
    v_lshlrev_b32 v{t2}, 2, v{t1}
    v_sub_u32 v{t2}, v{t0}, v{t2}
    """)
    for r in range(16):
        a(f"v_cmp_le_i32 s[{MP[r]}:{MP[r]+1}], {8*(r>>2)+(r&3)}, v{t2}")
    a(f"""
    v_and_b32 v{t2}, 15, v{vL}
    v_lshrrev_b32 v{t0}, 2, v{t2}
    v_lshl_add_u32 v{t0}, v{t1}, 2, v{t0}
    v_and_b32 v{t2}, 3, v{t2}
    v_lshlrev_b32 v{t2}, 3, v{t2}
    v_lshl_add_u32 v{vVR}, v{t0}, 5, v{t2}
    v_and_b32 v{t2}, 16, v{vL}
    v_cmp_eq_u32 vcc, 0, v{t2}
    s_add_u32 s{sT0}, s{sLW}, {LV}
    v_mov_b32 v{t0}, {LONE}
    v_mov_b32 v{t1}, s{sT0}
    v_cndmask_b32 v{t0}, v{t0}, v{t1}, vcc
    v_add_u32 v{vVR}, v{vVR}, v{t0}
    v_mov_b32 v{t1}, 0x400
    v_cndmask_b32 v{vVS}, 0, v{t1}, vcc
    """)
    a(f"""
    v_and_b32 v{t0}, 15, v{vL}
    v_lshrrev_b32 v{t1}, 2, v{t0}
    v_bfe_u32 v{t2}, v{vL}, 4, 1
    v_lshl_add_u32 v{t1}, v{t2}, 2, v{t1}
    v_lshrrev_b32 v{t2}, 1, v{t1}
    v_xor_b32 v{t2}, s{sCT}, v{t2}
    v_lshlrev_b32 v{t2}, 5, v{t2}
    v_and_b32 v{t0}, 3, v{t0}
    v_lshl_add_u32 v{t2}, v{t0}, 3, v{t2}
    v_lshl_add_u32 v{t2}, v{t1}, 7, v{t2}
    s_lshl_b32 s{sT0}, s{sKH}, 14
    v_add_u32 v{t2}, s{sT0}, v{t2}
    v_lshrrev_b32 v{t1}, 5, v{vL}
    v_lshl_add_u32 v{vRH}, v{t1}, 10, v{t2}
    v_lshl_add_u32 v{vRO}, v{t1}, 11, v{t2}
    v_mov_b32 v{vM}, {NEGBIG}
    """)
    for r in range(16): a(f"v_mov_b32 v{O+r}, 0")
    vTA = 15
    def wstep(b, extra_wait=None):
        a(lg.drain())
        if extra_wait: W(vm.wait(extra_wait))
        W(vm.wait(("b", b)))
        a("s_barrier")
        ar = (b % 3) * SLOT
        base = vRH if 4 * b < 28 else vRO
        hs = 2048 if 4 * b < 28 else 1024
        if ar + 3 * 4096 + hs + 8 > 65535:
            a(f"v_add_u32 v{vTA}, {ar}, v{base}"); rb_, off = vTA, 0
        else:
            rb_, off = base, ar
        for j in range(4):
            i = 4 * b + j
            for hh in range(2):
                a(f"ds_read_b64_tr_b16 {vr(WF+4*i+2*hh,2)}, v{rb_} offset:{off + j*4096 + hh*hs}"); lg.issue("wf")
        if b >= 1: pre_dma(b + 2)
    def pre_dma(b):
        if b > 17: return
        if b == 9: poll_check("p2", sPB, 2, 4)
        if b == 16: poll_check("p3", sPB, 4, 8)
        emit_dma(bdma(b))
    def mf_s(dst, kf): return f"v_mfma_f32_32x32x16_bf16 {vr(dst,16)}, {vr(kf)}, {vr(QF)}, {vr(NEG,16)}"
    def rdk(j):
        a(f"ds_read_b128 {vr(KF[j & 1])}, v{vKR} offset:{j*1024}"); lg.issue(("k", j))
    nsw = [0]
    def cswitch(j, val):
        n = nsw[0]; nsw[0] += 1
        if j == 1:
            a(f"s_cmp_le_u32 s{sJS}, 1")
        else:
            a(f"s_cmp_eq_u32 s{sJS}, {j}")
        a(f"s_cbranch_scc0 L_sw{n}")
        for r in range(16): a(val(r))
        a.label(f"L_sw{n}")
    def maxred(s):
        for r in range(0, 16, 2): a(f"v_max3_f32 v{vM}, v{s+r}, v{s+r+1}, v{vM}")
    for r in range(16): a(f"v_mov_b32 v{NEG+r}, {NEGBIG}")
    a(lg.drain())
    W(vm.wait("kv"))
    wstep(0)
    stamp()
    zero = lambda r: f"v_mov_b32 v{NEG+r}, 0"
    rdk(1)
    for j in range(1, 9):
        cswitch(j, zero)
        W(lg.wait(("k", j)))
        a(mf_s(S[j & 1], KF[j & 1]))
        rdk(j + 1 if j < 8 else 0 + 0) if j < 8 else None
        if j == 8:
            a(f"ds_read_b128 {vr(KF[1])}, v{vKR}"); lg.issue(("k", 0))
        if j > 1: maxred(S[(j - 1) & 1])
        if j == 3: wstep(1, "e1"); publish(3)
        if j == 6: wstep(2)
    def tile0():
        n = nsw[0]; nsw[0] += 1
        a(f"s_cmp_gt_u32 s{sJS}, 0")
        a(f"s_cbranch_scc1 L_t0a{n}")
        W(lg.wait(("k", 0)))
        a(mf_s(S[1], KF[1]))
        a(f"s_branch L_t0b{n}")
        a.label(f"L_t0a{n}")
        for r in range(16): a(f"v_mov_b32 v{S[1]+r}, {NEGBIG}")
        a.label(f"L_t0b{n}")
        for r in range(16): a(f"v_cndmask_b32 v{S[0]+r}, v{S[1]+r}, v{S[0]+r}, s[{MP[r]}:{MP[r]+1}]")
    tile0()
    maxred(S[0])
    a(f"""
    v_mov_b32 v{vPO}, v{vM}
    v_permlane32_swap_b32 v{vM}, v{vPO}
    v_max_f32 v{vM}, v{vM}, v{vPO}
    """)
    for r in range(16): a(f"v_mov_b32 v{NEG+r}, {NEGBIG}")
    a(f"s_lshr_b32 s{sPB}, s{sMT}, 1")
    a(f"s_lshl_b32 s{sPB}, s{sPB}, 4")
    wstep(3)
    stamp()
    negm = lambda r: f"v_sub_f32 v{NEG+r}, 0, v{vM}"
    def rdv(tag):
        for t in range(2):
            for hh in range(2):
                a(f"ds_read_b64_tr_b16 {vr(VT+4*t+2*hh,2)}, v{vVR} offset:{t*512+hh*256}"); lg.issue(tag)
    def pv(p):
        for t in range(2):
            a(f"v_mfma_f32_32x32x16_bf16 {vr(O,16)}, {vr(VT+4*t)}, {vr(p+4*t)}, {vr(O,16)}")
    def expcvt(s, p):
        for r in range(16): a(f"v_exp_f32 v{s+r}, v{s+r}")
        for r in range(8): a(f"v_cvt_pk_bf16_f32 v{p+r}, v{s+2*r}, v{s+2*r+1}")
    rdk(1)
    wsched = {2: 4, 4: 5, 5: 6, 7: 7}
    for j in range(1, 9):
        cswitch(j, negm)
        W(lg.wait(("k", j)))
        a(mf_s(S[j & 1], KF[j & 1]))
        if j < 8: rdk(j + 1)
        else:
            a(f"ds_read_b128 {vr(KF[1])}, v{vKR}"); lg.issue(("k", 0))
        if j > 1:
            a(f"v_add_u32 v{vVR}, v{vVR}, v{vVS}")
            rdv(("v", j - 1))
            expcvt(S[(j - 1) & 1], P)
            W(lg.wait(("v", j - 1)))
            pv(P)
        if j == 3: poll_issue("p2", sPB, 4)
        if j in wsched: wstep(wsched[j])
    a(f"v_add_u32 v{vVR}, v{vVR}, v{vVS}")
    rdv(("v", 8))
    tile0()
    for r in range(16): a(f"v_exp_f32 v{S[0]+r}, v{S[0]+r}")
    for r in range(16): a(f"v_cndmask_b32 v{S[1]+r}, 0, v{S[0]+r}, s[{MP[r]}:{MP[r]+1}]")
    for r in range(8): a(f"v_cvt_pk_bf16_f32 v{P+r}, v{S[1]+2*r}, v{S[1]+2*r+1}")
    for r in range(16): a(f"v_cndmask_b32 v{S[0]+r}, v{S[0]+r}, 0, s[{MP[r]}:{MP[r]+1}]")
    W(lg.wait(("v", 8)))
    pv(P)
    a(f"v_lshlrev_b32 v{vPO}, 3, v{vVS}")
    a(f"v_sub_u32 v{vVR}, v{vVR}, v{vPO}")
    rdv(("v", 0))
    for r in range(8): a(f"v_cvt_pk_bf16_f32 v{P2r+r}, v{S[0]+2*r}, v{S[0]+2*r+1}")
    W(lg.wait(("v", 0)))
    pv(P2r)
    a(f"v_rcp_f32 v{vM}, v{O+8}")
    for r in range(8): a(f"v_mul_f32 v{O+r}, v{O+r}, v{vM}")
    for r in range(4): a(f"v_cvt_pk_bf16_f32 v{P+r}, v{O+2*r}, v{O+2*r+1}")
    a(f"""
    v_and_b32 v{t0}, 15, v{vL}
    v_lshlrev_b32 v{t0}, 4, v{t0}
    v_lshrrev_b32 v{t1}, 5, v{vL}
    v_lshl_add_u32 v{t0}, v{t1}, 8, v{t0}
    v_bfe_u32 v{t1}, v{vL}, 4, 1
    v_lshl_add_u32 v{t0}, v{t1}, 10, v{t0}
    s_lshr_b32 s{sT0}, s{sHD}, 1
    s_lshl_b32 s{sT0}, s{sT0}, 7
    s_lshl_b32 s{sT1}, s{sQB}, 4
    s_add_u32 s{sT0}, s{sT0}, s{sT1}
    s_lshl_b32 s{sT1}, s{sW}, 1
    s_add_u32 s{sT0}, s{sT0}, s{sT1}
    s_lshl_b32 s{sT0}, s{sT0}, 10
    s_and_b32 s{sT1}, s{sHD}, 1
    s_lshl_b32 s{sT1}, s{sT1}, 9
    s_add_u32 s{sT0}, s{sT0}, s{sT1}
    s_add_u32 s{sT0}, s{sT0}, {WS_O}
    buffer_store_dwordx4 {vr(P)}, v{t0}, {sr(SWS)}, s{sT0} offen{SC}
    """)
    vm.issue("o")
    stamp()
    wstep(8)
    vAR, vXO, vA2 = 3, 4, 5
    XR = 8; AF = 16; ACC2 = 80; ACC3 = 96; TM = 48
    a(f"""
    s_lshl_b32 s{sT0}, s{sKH}, 14
    v_add_u32 v{vAR}, s{sT0}, v{vD}
    v_and_b32 v{TM}, 15, v{vL}
    v_lshrrev_b32 v{TM+1}, 4, v{vL}
    v_lshlrev_b32 v{TM+1}, 3, v{TM+1}
    v_lshl_add_u32 v{vXO}, v{TM}, 10, v{TM+1}
    s_lshl_b32 s{sT0}, s{sMT}, 16
    s_lshl_b32 s{sT1}, s{sKH}, 15
    s_add_u32 s{sT0}, s{sT0}, s{sT1}
    s_lshl_b32 s{sT1}, s{sNT}, 7
    s_add_u32 s{sT0}, s{sT0}, s{sT1}
    s_lshl_b32 s{sT1}, s{sCT}, 5
    s_add_u32 s{sT0}, s{sT0}, s{sT1}
    v_add_u32 v{vXO}, s{sT0}, v{vXO}
    s_movk_i32 s{sT1}, 0x4000
    buffer_load_dwordx2 v[{XR}:{XR+1}], v{vXO}, {sr(SX)}, 0 offen
    buffer_load_dwordx2 v[{XR+2}:{XR+3}], v{vXO}, {sr(SX)}, s{sT1} offen
    s_lshr_b32 s{sPB}, s{sMT}, 2
    s_lshl_b32 s{sPB}, s{sPB}, 5
    """)
    vm.issue("x", 2)
    for i in range(32): a(f"v_mov_b32 v{ACC2+i}, 0")
    for s in range(9):
        b = 9 + s
        a(lg.drain())
        if s == 1: W(vm.wait("o"))
        W(vm.wait(("b", b)))
        a("s_barrier")
        if s == 1: publish(7)
        a(f"v_add_u32 v{vA2}, {(b % 3)*SLOT}, v{vAR}")
        def ard(i):
            for rt in range(4):
                a(f"ds_read_b128 {vr(AF+16*(i&1)+4*rt)}, v{vA2} offset:{i*4096+rt*1024}"); lg.issue(("a", s, i, rt))
        ard(0)
        if s == 3: poll_issue("p3", sPB, 8)
        pre_dma(b + 2)
        ac = ACC2 if s < 7 else ACC3
        for i in range(4):
            if i < 3: ard(i + 1)
            for rt in range(4):
                W(lg.wait(("a", s, i, rt)))
                a(f"v_mfma_f32_16x16x32_bf16 {vr(ac+4*rt)}, {vr(WF+4*(4*s+i))}, {vr(AF+16*(i&1)+4*rt)}, {vr(ac+4*rt)}")
    stamp()
    a(f"""
    s_lshl_b32 s{sT0}, s{sW}, 12
    s_add_u32 s{sT0}, s{sT0}, {LK}
    v_add_u32 v{vAR}, s{sT0}, v{vD}
    s_cmp_eq_u32 s{sKH}, 0
    s_cbranch_scc0 L_k1
    """)
    assert LK % 32768 == LK % 32768
    for x, ac in enumerate((ACC2, ACC3)):
        for r in range(2): a(f"ds_write_b128 v{vAR}, {vr(ac+4*(2+r))} offset:{x*2048+r*1024}")
    a("s_branch L_k2")
    a.label("L_k1")
    for x, ac in enumerate((ACC2, ACC3)):
        for r in range(2): a(f"ds_write_b128 v{vAR}, {vr(ac+4*r)} offset:{x*2048+r*1024}")
    for x, ac in enumerate((ACC2, ACC3)):
        for i in range(8): a(f"v_mov_b32 v{ac+i}, v{ac+8+i}")
    a.label("L_k2")
    a(f"""
    s_xor_b32 s{sT0}, s{sW}, 4
    s_lshl_b32 s{sT0}, s{sT0}, 12
    s_add_u32 s{sT0}, s{sT0}, {LK}
    v_add_u32 v{vA2}, s{sT0}, v{vD}
    s_waitcnt lgkmcnt(0)
    s_barrier
    """)
    for x in range(2):
        for r in range(2): a(f"ds_read_b128 {vr(TM+8*x+4*r)}, v{vA2} offset:{x*2048+r*1024}")
    a("s_waitcnt vmcnt(0) lgkmcnt(0)")
    for x, ac in enumerate((ACC2, ACC3)):
        for i in range(8): a(f"v_add_f32 v{ac+i}, v{ac+i}, v{TM+8*x+i}")
    Tz = TM + 16
    for i in range(8): a(f"v_mul_f32 v{Tz+i}, {hx(-LOG2E)}, v{ACC2+i}")
    for i in range(8): a(f"v_exp_f32 v{Tz+i}, v{Tz+i}")
    for i in range(8): a(f"v_mul_f32 v{ACC2+i}, v{ACC2+i}, v{ACC3+i}")
    for i in range(8): a(f"v_add_f32 v{Tz+i}, 1.0, v{Tz+i}")
    for i in range(8): a(f"v_rcp_f32 v{Tz+i}, v{Tz+i}")
    for r in range(2):
        for d in range(2):
            a(f"v_lshlrev_b32 v{TM+4*r+2*d}, 16, v{XR+2*r+d}")
            a(f"v_and_b32 v{TM+4*r+2*d+1}, 0xffff0000, v{XR+2*r+d}")
    for i in range(8): a(f"v_fmac_f32 v{TM+i}, v{ACC2+i}, v{Tz+i}")
    for r in range(2):
        a(f"v_cvt_pk_bf16_f32 v{Tz+2*r}, v{TM+4*r}, v{TM+4*r+1}")
        a(f"v_cvt_pk_bf16_f32 v{Tz+2*r+1}, v{TM+4*r+2}, v{TM+4*r+3}")
    a(f"""
    s_movk_i32 s{sT1}, 0x4000
    buffer_store_dwordx2 v[{Tz}:{Tz+1}], v{vXO}, {sr(SOUT)}, 0 offen
    buffer_store_dwordx2 v[{Tz+2}:{Tz+3}], v{vXO}, {sr(SOUT)}, s{sT1} offen
    """)
    if STAMP:
        a("s_waitcnt vmcnt(0)")
        stamp(); stamp(True)
        a(f"""
        s_lshl_b32 s{sT0}, s2, 3
        s_add_u32 s{sT0}, s{sT0}, s{sW}
        s_lshl_b32 s{sT0}, s{sT0}, 8
        s_add_u32 s{sT0}, s{sT0}, {WS_STAMP}
        s_mov_b32 s{SWS+2}, {WS_STAMP + (1 << 20)}
        v_lshlrev_b32 v{TM}, 2, v{vL}
        buffer_store_dword v{vSTAMP}, v{TM}, {sr(SWS)}, s{sT0} offen
        """)
        print("stamps:", nstamp[0], file=sys.stderr)
    a.label("L_end")
    a("s_endpgm")
    return dict(lds=LDS_TOTAL, vgpr=256, sgpr=100)

HEADER = open("cdna_kernels/%s.s.ref" % NAME).read().split("; Override launch")[0]

def build(path):
    a = Asm(); info = gen(a); txt = a.render()
    label = NAME + "_kernel"
    n = sum(1 for k, _ in a.items if k == 'i')
    print("instrs", n, "nops", a.nnop, file=sys.stderr)
    out = HEADER + f"; @launch grid=(256,1,1) block=(512,1,1) lds={info['lds']}\n"
    out += '.amdgcn_target "amdgcn-amd-amdhsa--gfx950"\n.text\n'
    out += f".globl {label}\n.p2align 8\n.type {label},@function\n{label}:\n"
    out += txt.replace("CODE_BYTES", "(L_code_end - L_pc)")
    out += "L_code_end:\n"
    out += f""".section .rodata,"a"
.p2align 6
.amdhsa_kernel {label}
  .amdhsa_next_free_vgpr {info['vgpr']}
  .amdhsa_next_free_sgpr {info['sgpr']}
  .amdhsa_accum_offset {info['vgpr']}
  .amdhsa_group_segment_fixed_size 0
  .amdhsa_kernarg_size 80
  .amdhsa_user_sgpr_count 2
  .amdhsa_user_sgpr_kernarg_segment_ptr 1
  .amdhsa_system_sgpr_workgroup_id_x 1
.end_amdhsa_kernel
"""
    open(path, "w").write(out)

if __name__ == "__main__":
    path = sys.argv[1]
    for arg in sys.argv[2:]:
        if arg == "stamp": STAMP = True
        elif "=" in arg:
            k, v = arg.split("="); OPT[k] = int(v)
    build(path)
```

```python
import sys, math, struct, re
sys.path.insert(0, "gen")
from asmlib import Asm

NAME = "recurrent_scan__sliding_block__geglu_ffn__prompt"
WS_H = 0
WS_O = 56 * 128 * 1024
WS_QKV = 72 * 128 * 1024
WS_F = WS_QKV + 96 * 65536
WS_END = WS_F + 3 * 4096
LOG2E = 1.4426950408889634
QSCALE = 0.25 * LOG2E
GK1 = -2.0 * math.sqrt(2.0 / math.pi) * LOG2E
GK2 = GK1 * 0.044715
NEGBIG = "0xf149f2ca"
def f2u(x): return struct.unpack("<I", struct.pack("<f", x))[0]
def hx(x): return "0x%08x" % f2u(x)
def vr(b, n=4): return f"v[{b}:{b+n-1}]"
def sr(b, n=4): return f"s[{b}:{b+n-1}]"

class Cnt:
    def __init__(self, name, mx): self.q = []; self.name = name; self.mx = mx; self.total = 0; self.marks = {}
    def issue(self, tag, n=1): self.q += [tag] * n; self.total += n
    def wait(self, tag):
        idxs = [i for i, t in enumerate(self.q) if t == tag]
        if not idxs: return None
        n = min(len(self.q) - 1 - max(idxs), self.mx)
        self.q = self.q[len(self.q) - n:] if n else []
        return f"s_waitcnt {self.name}({n})"
    def mark(self, tag): self.marks[tag] = self.total
    def peek(self, tag): return f"s_waitcnt {self.name}({min(self.total - self.marks[tag], self.mx)})"
    def drain(self): self.q = []; return f"s_waitcnt {self.name}(0)"
    def save(self): return (list(self.q), self.total, dict(self.marks))
    def restore(self, st): self.q, self.total, self.marks = list(st[0]), st[1], dict(st[2])

STAMP = False
SNAMES = []
WS_STAMP = 32 << 20
OPT = dict(codepf=32, rot=4, rot2=1, fine=0, start=1, fper=3, early_b=2, wpf=0, hpf=0, p2late=1, x_nodma=0, x_nomfma=0, x_nostat=0, x_nords=0)

def gen(a):
    SC = " sc1"
    vm = Cnt("vmcnt", 63); lg = Cnt("lgkmcnt", 15)
    ool = Asm()
    def W(x):
        if x: a(x)
    SX, SU0, SU1, SU2, SPG, SPU, SWS, SDBG = 24, 28, 32, 36, 40, 44, 48, 52
    sW, sMG, sNH, sRB, sCGQ, sCGL, sTB, sRL = 56, 57, 58, 59, 60, 61, 62, 63
    sP12, sKX, sK0, sK12, sT0, sT1, sT2, sT3 = 64, 65, 66, 67, 68, 69, 70, 71
    sLX, sLW, sU0, sPF, sXB, sSC0, sP0, sFL = 72, 73, 74, 75, 76, 77, 78, 79
    sCNT = 80
    SWD, SWO, SOUT = 28, 32, 36
    sHD, sQB, sJS, sMT, sNT, sCT, sKH, sAO = 81, 82, 83, 84, 85, 86, 87, 88
    sWQ, sWL, sROT, sTAG, sE0, sE1 = 89, 90, 91, 96, 97, 98
    sR2 = 63
    STP = 84
    R2MASK = 7 if OPT['rot2'] else 0
    ROTMASK = {1: 0, 2: 4, 4: 6, 8: 7}[OPT['rot']]
    uid = [0]
    def U(): uid[0] += 1; return uid[0]
    nstamp = [0]
    def fstamp(name):
        if OPT["fine"] == 1: stamp(name=name)
    def f2stamp(name):
        if OPT["fine"] == 2: stamp(name=name)
    def f3stamp(name):
        if OPT["fine"] == 3: stamp(name=name)
    def stamp(real=False, name=""):
        if not STAMP: return
        i = nstamp[0]; nstamp[0] += 1
        SNAMES.append(name)
        a("s_memrealtime s[92:93]" if real else "s_memtime s[92:93]")
        a("s_waitcnt lgkmcnt(0)"); lg.q = []
        a(f"v_writelane_b32 v{vSTAMP}, s92, {i}")
    def rare(cond, body):
        n = U()
        a.extend(cond)
        a(f"s_cbranch_scc1 R{n}")
        a.label(f"B{n}")
        ool.label(f"R{n}")
        ool("s_nop 7"); ool("s_nop 7")
        ool(body)
        ool("s_nop 7")
        ool(f"s_branch B{n}")
    vL, vX0, vX1, vWq, vW12, vWg = 0, 1, 2, 3, 4, 5
    vXR = [6, 7, 8, 9]; vWR = [10, 11, 12, 13]
    vS = [14, 15]; vQ = [16, 17]; vST = [18, 19]
    SEL = 20; CA = [24, 28, 32]
    FR = 36; NF = 9
    vD, vPOLL, vPO, vSTAMP = 72, 73, 74, 75
    SPARE = 76
    ACC = 80; XF = 128; ACC1 = 40
    def xf(s): return XF + s * 4
    def acc(u): return ACC + u * 16
    SLOT = 40960
    SCR = 3 * SLOT
    L_RS = SCR
    L_CSA = SCR + 1024
    L_CSB = SCR + 2560
    LK = SCR + 4096; LV = LK + 16384; LONE = LV + 16384 + 128
    LDS_TOTAL = 163840
    T = [FR + i for i in range(8)]

    a("s_cmp_ge_u32 s2, 256")
    a("s_cbranch_scc1 L_end")
    a("s_load_dwordx16 s[4:19], s[0:1], 0")
    a("s_load_dwordx4 s[20:23], s[0:1], 64")
    if OPT["codepf"]:
        a(f"""
        s_cmp_ge_u32 s2, {OPT["codepf"]}
        s_cbranch_scc1 L_npf
        s_getpc_b64 s[92:93]
        L_pc:
        s_and_b32 s92, s92, 0xffffff00
        s_and_b32 s93, s93, 0xffff
        s_mov_b32 s94, CODE_BYTES
        s_mov_b32 s95, 0x20000
        v_lshlrev_b32 v{T[0]}, 7, v0
        buffer_load_dword v{vPOLL}, v{T[0]}, s[92:95], 0 offen
        L_npf:
        """)
    a(f"""
    v_lshrrev_b32 v{T[0]}, 6, v0
    v_and_b32 v{vL}, 63, v0
    v_readfirstlane_b32 s{sW}, v{T[0]}
    s_and_b32 s{sT0}, s2, 7
    s_lshr_b32 s{sT1}, s2, 3
    s_and_b32 s{sRB}, s{sT0}, 1
    s_lshl_b32 s{sRB}, s{sRB}, 3
    s_and_b32 s{sRL}, s{sT1}, 7
    s_add_u32 s{sRB}, s{sRB}, s{sRL}
    s_lshr_b32 s{sCGQ}, s{sT0}, 1
    s_lshr_b32 s{sCGL}, s{sT1}, 3
    s_lshl_b32 s{sROT}, s{sCGL}, 1
    s_add_u32 s{sROT}, s{sROT}, s{sRL}
    s_and_b32 s{sROT}, s{sROT}, {ROTMASK}
    s_lshl_b32 s{sLX}, s{sW}, 11
    s_lshl_b32 s{sLW}, s{sW}, 10
    s_lshl_b32 s{sXB}, s{sRB}, 17
    s_mul_i32 s{sT0}, s{sCGQ}, 3
    s_add_u32 s{sT1}, s{sT0}, s{sCGL}
    s_add_u32 s{sT2}, s{sT0}, 12
    s_lshl_b32 s{sP0}, s{sT1}, 1
    s_add_u32 s{sT3}, s{sP0}, 1
    s_add_u32 s{sPF}, s{sCGQ}, 24
    s_movk_i32 s{sP12}, 3584
    s_cmp_eq_u32 s{sCGL}, 3
    s_cselect_b32 s{sTB}, 1, 0
    s_cselect_b32 s{sU0}, s{sT2}, s{sT1}
    s_cselect_b32 s{sPF}, s{sPF}, s{sT3}
    s_cselect_b32 s{sP12}, 3072, s{sP12}
    """)
    if STAMP: a(f"v_mov_b32 v{vSTAMP}, 0")
    a(f"""
    v_lshrrev_b32 v{T[0]}, 3, v{vL}
    v_and_b32 v{T[1]}, 7, v{vL}
    v_lshrrev_b32 v{T[2]}, 4, v{vL}
    v_xor_b32 v{T[3]}, v{T[1]}, v{T[2]}
    s_lshl_b32 s{sT0}, s{sW}, 4
    v_add_u32 v{T[4]}, s{sT0}, v{T[0]}
    v_lshlrev_b32 v{T[4]}, 10, v{T[4]}
    v_lshl_add_u32 v{vX0}, v{T[3]}, 4, v{T[4]}
    v_xor_b32 v{vX1}, 64, v{vX0}
    v_add_u32 v{vX1}, 0x2000, v{vX1}
    s_lshl_b32 s{sT0}, s{sW}, 3
    v_add_u32 v{T[4]}, s{sT0}, v{T[0]}
    v_and_b32 v{T[2]}, 1, v{T[2]}
    v_lshlrev_b32 v{T[2]}, 2, v{T[2]}
    v_xor_b32 v{T[5]}, v{T[1]}, v{T[2]}
    v_lshlrev_b32 v{T[5]}, 4, v{T[5]}
    v_mul_u32_u24 v{vWq}, 3072, v{T[4]}
    v_add_u32 v{vWq}, v{vWq}, v{T[5]}
    v_mul_u32_u24 v{vWg}, 3584, v{T[4]}
    v_add_u32 v{vWg}, v{vWg}, v{T[5]}
    v_mul_u32_u24 v{vW12}, s{sP12}, v{T[4]}
    v_add_u32 v{vW12}, v{vW12}, v{T[5]}
    s_lshl_b32 s{sP12}, s{sP12}, 6
    s_mov_b32 s{SX+2}, {2048*1024}
    s_mov_b32 s{SX+3}, 0x20000
    s_mov_b32 s{SU0+3}, 0x20000
    s_mov_b32 s{SU1+3}, 0x20000
    s_mov_b32 s{SU2+3}, 0x20000
    s_waitcnt lgkmcnt(0)
    """)
    stamp(); stamp(True)
    QSZ, GSZ = 512 * 3072, 512 * 3584
    a(f"""
    s_mov_b32 s{SX}, s4
    s_and_b32 s{SX+1}, s5, 0xffff
    s_lshl_b32 s{sT0}, s{sU0}, 7
    s_add_u32 s{SU0}, s6, s{sT0}
    s_addc_u32 s{SU0+1}, s7, 0
    s_and_b32 s{SU0+1}, s{SU0+1}, 0xffff
    s_sub_u32 s{SU0+2}, {QSZ}, s{sT0}
    """)
    for k, (S, plo) in enumerate(((SU1, 12), (SU2, 14))):
        a(f"""
        s_lshl_b32 s{sT0}, s{sP0}, 7
        s_add_u32 s{sT1}, s{sU0}, {k+1}
        s_lshl_b32 s{sT1}, s{sT1}, 7
        s_mov_b32 s{S+2}, {GSZ}
        s_cmp_eq_u32 s{sTB}, 1
        s_cselect_b32 s{sT0}, s{sT1}, s{sT0}
        s_cselect_b32 s{S}, s6, s{plo}
        s_cselect_b32 s{S+1}, s7, s{plo+1}
        s_cselect_b32 s{S+2}, {QSZ}, s{S+2}
        s_add_u32 s{S}, s{S}, s{sT0}
        s_addc_u32 s{S+1}, s{S+1}, 0
        s_and_b32 s{S+1}, s{S+1}, 0xffff
        s_sub_u32 s{S+2}, s{S+2}, s{sT0}
        """)
    def dma_p0(t):
        sl = (t % 3) * SLOT
        pre = [f"s_add_u32 s{sT3}, s{sROT}, {t}", f"s_and_b32 s{sT3}, s{sT3}, 7", f"s_lshl_b32 s{sKX}, s{sT3}, 7",
               f"s_add_u32 s{sKX}, s{sKX}, s{sXB}", f"s_mul_i32 s{sK0}, s{sT3}, {64*3072}", f"s_mul_i32 s{sK12}, s{sP12}, s{sT3}"]
        g = [(pre + [f"s_add_u32 m0, s{sLX}, {sl}"], f"buffer_load_dwordx4 v{vX0}, {sr(SX)}, s{sKX} offen lds"),
             ([f"s_add_u32 m0, s{sLX}, {sl+1024}"], f"buffer_load_dwordx4 v{vX1}, {sr(SX)}, s{sKX} offen lds"),
             ([f"s_add_u32 m0, s{sLW}, {sl+16384}"], f"buffer_load_dwordx4 v{vWq}, {sr(SU0)}, s{sK0} offen lds"),
             ([f"s_add_u32 m0, s{sLW}, {sl+24576}"], f"buffer_load_dwordx4 v{vW12}, {sr(SU1)}, s{sK12} offen lds"),
             ([f"s_add_u32 m0, s{sLW}, {sl+32768}"], f"buffer_load_dwordx4 v{vW12}, {sr(SU2)}, s{sK12} offen lds")]
        return g, ("st", t)
    def dma_p1(Tq):
        sl = ((8 + Tq) % 3) * SLOT
        g = []
        for c2 in range(2):
            sk = sK0 if c2 == 0 else sK12
            pre = [f"s_add_u32 s{sT3}, s{sROT}, {2*Tq+c2}", f"s_and_b32 s{sT3}, s{sT3}, 7", f"s_mul_i32 s{sk}, s{sT3}, {64*3584}"]
            g += [(pre + [f"s_add_u32 m0, s{sLW}, {sl+c2*16384}"], f"buffer_load_dwordx4 v{vWg}, {sr(SPG)}, s{sk} offen lds"),
                  ([f"s_add_u32 m0, s{sLW}, {sl+c2*16384+8192}"], f"buffer_load_dwordx4 v{vWg}, {sr(SPU)}, s{sk} offen lds")]
        return g, ("st", 8 + Tq)
    def emit_dma(d):
        g, tag = d
        for pre, ld in g:
            a.extend(pre); a(ld); vm.issue(tag)
    emit_dma(dma_p0(0))
    if OPT["start"] == 0: emit_dma(dma_p0(1))
    for S, plo in ((SPG, 12), (SPU, 14)):
        a(f"""
        s_lshl_b32 s{sT0}, s{sPF}, 7
        s_add_u32 s{S}, s{plo}, s{sT0}
        s_addc_u32 s{S+1}, s{plo+1}, 0
        s_and_b32 s{S+1}, s{S+1}, 0xffff
        s_sub_u32 s{S+2}, {GSZ}, s{sT0}
        s_mov_b32 s{S+3}, 0x20000
        """)
    a(f"""
    s_mov_b32 s{SWS}, s22
    s_and_b32 s{SWS+1}, s23, 0xffff
    s_mov_b32 s{SWS+2}, {WS_END}
    s_mov_b32 s{SWS+3}, 0x20000
    s_mov_b32 s{SDBG}, s20
    s_and_b32 s{SDBG+1}, s21, 0xffff
    s_movk_i32 s{SDBG+2}, 256
    s_mov_b32 s{SDBG+3}, 0x20000
    s_lshr_b32 s{sMG}, s{sW}, 1
    s_and_b32 s{sNH}, s{sW}, 1
    """)
    rare([f"s_or_b32 s{sT0}, s2, s{sW}", f"s_cmp_eq_u32 s{sT0}, 0"], f"""
    s_memrealtime s[92:93]
    s_waitcnt lgkmcnt(0)
    s_or_b32 s92, s92, 1
    v_mov_b32 v{T[0]}, s92
    s_mov_b64 exec, 1
    buffer_store_dword v{T[0]}, off, {sr(SDBG)}, 0{SC}
    s_mov_b64 exec, -1
    """)
    a(f"""
    s_and_b32 s{sT0}, s{sMG}, 1
    s_lshl_b32 s{sT0}, s{sT0}, 1
    s_lshr_b32 s{sT1}, s{sMG}, 1
    s_xor_b32 s{sT1}, s{sT1}, s{sNH}
    s_add_u32 s{sT0}, s{sT0}, s{sT1}
    v_and_b32 v{T[0]}, 31, v{vL}
    v_lshrrev_b32 v{T[1]}, 5, v{vL}
    v_bfe_u32 v{T[2]}, v{vL}, 1, 3
    v_xor_b32 v{T[2]}, v{T[2]}, v{T[1]}
    v_lshlrev_b32 v{T[2]}, 4, v{T[2]}
    v_lshl_add_u32 v{T[2]}, v{T[0]}, 7, v{T[2]}
    s_lshl_b32 s{sT1}, s{sMG}, 12
    v_add_u32 v{T[2]}, s{sT1}, v{T[2]}
    s_lshl_b32 s{sT1}, s{sT0}, 5
    v_xor_b32 v{vXR[0]}, s{sT1}, v{T[2]}
    v_xor_b32 v{vXR[1]}, 32, v{vXR[0]}
    v_xor_b32 v{vXR[2]}, 64, v{vXR[0]}
    v_xor_b32 v{vXR[3]}, 0x60, v{vXR[0]}
    """)
    a(f"""
    v_bfe_u32 v{T[2]}, v{vL}, 2, 2
    v_lshl_add_u32 v{T[3]}, v{T[1]}, 3, v{T[2]}
    v_lshlrev_b32 v{T[3]}, 7, v{T[3]}
    v_lshrrev_b32 v{T[2]}, 1, v{T[2]}
    v_xor_b32 v{T[2]}, s{sNH}, v{T[2]}
    v_lshl_add_u32 v{T[3]}, v{T[2]}, 6, v{T[3]}
    v_bfe_u32 v{T[2]}, v{vL}, 4, 1
    v_lshl_add_u32 v{T[3]}, v{T[2]}, 5, v{T[3]}
    v_and_b32 v{T[2]}, 3, v{vL}
    v_lshl_add_u32 v{T[3]}, v{T[2]}, 3, v{T[3]}
    s_lshl_b32 s{sT1}, s{sT0}, 11
    v_xor_b32 v{vWR[0]}, s{sT1}, v{T[3]}
    v_xor_b32 v{vWR[1]}, 0x800, v{vWR[0]}
    v_xor_b32 v{vWR[2]}, 0x1000, v{vWR[0]}
    v_xor_b32 v{vWR[3]}, 0x1800, v{vWR[0]}
    v_lshlrev_b32 v{vD}, 4, v{vL}
    """)
    a(f"""
    v_lshrrev_b32 v{T[2]}, 4, v{vL}
    v_xor_b32 v{T[2]}, v{T[2]}, v{vL}
    v_and_b32 v{T[2]}, 1, v{T[2]}
    v_cmp_eq_u32 vcc, 0, v{T[2]}
    v_mov_b32 v{T[3]}, 0x3f803f80
    v_cndmask_b32 v{SEL}, 0, v{T[3]}, vcc
    v_mov_b32 v{SEL+1}, v{SEL}
    v_mov_b32 v{SEL+2}, v{SEL}
    v_mov_b32 v{SEL+3}, v{SEL}
    v_mov_b32 v{T[4]}, v{T[3]}
    v_mov_b32 v{T[5]}, v{T[3]}
    v_mov_b32 v{T[6]}, v{T[3]}
    v_mov_b32 v{T[7]}, v{T[3]}
    v_add_u32 v{T[0]}, {LONE}, v{vD}
    ds_write_b128 v{T[0]}, {vr(T[4])}
    """)
    for r in vS + vQ: a(f"v_mov_b32 v{r}, 0")
    lg.issue("misc", 1)
    if OPT["start"] == 0: emit_dma(dma_p0(2))
    else: emit_dma(dma_p0(1))
    def lds(lst):
        for ins, tag in lst: a(ins); lg.issue(tag)
    def run_slots(mfs, reads=(), valu=(), dmas=None, rstart=0, rper=2.0, vper=2, fill=None, fper=0):
        ri = vi = 0
        for k, (tags, ins) in enumerate(mfs):
            for tg in tags: W(lg.wait(tg))
            a(ins)
            if dmas and k in dmas: a.extend(dmas[k][0])
            for _ in range(vper):
                if vi < len(valu): a(valu[vi]); vi += 1
            if k >= rstart:
                lim = int(rper * (k - rstart + 1) + 0.999)
                while ri < len(reads) and ri < lim and reads[ri][2] <= k:
                    a(reads[ri][0]); lg.issue(reads[ri][1]); ri += 1
            if fill is not None:
                n = 0
                while fill and n < fper:
                    n += do_fill(fill.pop(0))
            if dmas and k in dmas: a(dmas[k][1]); vm.issue(dmas[k][2])
        while vi < len(valu): a(valu[vi]); vi += 1
        while ri < len(reads): a(reads[ri][0]); lg.issue(reads[ri][1]); ri += 1
    def do_fill(it):
        kind = it[0]
        if kind == 'v': a(it[1]); return 2 if it[1].startswith(("v_exp", "v_rcp")) else 1
        if kind == 's': a(it[1]); return 0.5
        if kind == 'm': a(it[1]); vm.issue(it[2]); return 1
        raise ValueError
    def slot_adv(t_next, regs):
        d = SLOT if (t_next % 3) else -2 * SLOT
        return [f"v_add_u32 v{r}, {d & 0xffffffff}, v{r}" for r in regs]
    MF32 = "v_mfma_f32_32x32x16_bf16"; MF16 = "v_mfma_f32_16x16x32_bf16"

    a(f"""
    v_bfe_u32 v{vPO}, v{vL}, 2, 2
    v_lshlrev_b32 v{vPO}, 10, v{vPO}
    v_and_b32 v{T[0]}, 3, v{vL}
    v_lshl_add_u32 v{vPO}, v{T[0]}, 7, v{vPO}
    s_lshr_b32 s{sCNT}, s2, 3
    s_lshl_b32 s{sCNT}, s{sCNT}, 3
    s_add_u32 s{sCNT}, s{sCNT}, s{sW}
    s_lshl_b32 s{sCNT}, s{sCNT}, 12
    s_and_b32 s{sT0}, s2, 1
    s_lshl_b32 s{sT0}, s{sT0}, 9
    s_add_u32 s{sCNT}, s{sCNT}, s{sT0}
    s_mov_b32 s{STP+3}, 0x20000
    """)
    def wtouch(k):
        if k < 2:
            pre = [f"s_mov_b32 s{STP}, s16", f"s_and_b32 s{STP+1}, s17, 0xffff", f"s_mov_b32 s{STP+2}, {1792*1024}", f"s_add_u32 s{sE0}, s{sCNT}, {k << 20}"]
        else:
            pre = [f"s_mov_b32 s{STP}, s8", f"s_and_b32 s{STP+1}, s9, 0xffff", f"s_mov_b32 s{STP+2}, {512*1024}", f"s_mov_b32 s{sE0}, s{sCNT}"]
        return (pre, f"buffer_load_dword v{SPARE}, v{vPO}, {sr(STP)}, s{sE0} offen", "wpf")
    def fslot(n): return FR + (n % NF) * 4
    def rd_x(s): return [(f"ds_read_b128 {vr(xf(s))}, v{vXR[s & 3]}", ("x", s))]
    def rd_w0(s, u):
        f = fslot(3 * s + u)
        return [(f"ds_read_b64_tr_b16 {vr(f+2*hh, 2)}, v{vWR[s & 3]} offset:{16384+u*8192+hh*512}", ("w", s, u)) for hh in range(2)]
    def stat_ops(s):
        o = []
        for j in range(4):
            x = xf(s) + j
            o += [f"v_lshlrev_b32 v{vST[0]}, 16, v{x}", f"v_and_b32 v{vST[1]}, 0xffff0000, v{x}",
                  f"v_add_f32 v{vS[0]}, v{vS[0]}, v{vST[0]}", f"v_add_f32 v{vS[1]}, v{vS[1]}, v{vST[1]}",
                  f"v_fmac_f32 v{vQ[0]}, v{vST[0]}, v{vST[0]}", f"v_fmac_f32 v{vQ[1]}, v{vST[1]}, v{vST[1]}"]
        return o
    stamp(name="setup")
    W(vm.wait(("st", 0)))
    if OPT["start"] == 1: emit_dma(dma_p0(2))
    a(lg.drain())
    a("s_barrier")
    stamp(name="wait st0")
    a.label("X_begin")
    for s in range(2):
        lds(rd_x(s))
        for u in range(3): lds(rd_w0(s, u))
    pend = []
    WTH = [6, 8, 10]
    for h in range(16):
        t = h >> 1; odd = h & 1
        valu = []
        if odd:
            if t < 7: valu = slot_adv(t + 1, [vXR[0], vWR[0], vXR[1], vWR[1], vXR[2], vWR[2], vXR[3], vWR[3]])
            else: valu = slot_adv(t + 1, vWR)
            g, tag = dma_p0(t + 3) if t + 3 < 8 else dma_p1(t + 3 - 8)
            pend = [(pre, ld, tag) for pre, ld in g]
        valu += stat_ops(2 * h)
        dm = {}
        if h >= 1:
            if odd and h < 15: now = pend[:3]; pend = pend[3:]; sl_ = [0, 2, 4]
            elif odd: now = pend; pend = []; sl_ = [0, 2, 3, 5]
            else: now = pend; pend = []; sl_ = [1, 5]
            dm = dict(zip(sl_, now))
            if OPT["wpf"] and h in WTH: dm[3] = wtouch(WTH.index(h))
        mfs = []
        for ss in range(2):
            s = 2 * h + ss
            for u in range(3):
                tags = ([("x", s)] if u == 0 else []) + [("w", s, u)]
                mfs.append((tags, f"{MF32} {vr(acc(u),16)}, {vr(fslot(3*s+u))}, {vr(xf(s))}, {vr(acc(u),16) if s else 0}"))
                if (s & 3) == 0:
                    mfs.append(([], f"{MF16} {vr(CA[u])}, {vr(fslot(3*s+u))}, {vr(SEL)}, {vr(CA[u]) if s else 0}"))
        free = {}
        idx = 0
        for ss in range(2):
            for u in range(3):
                idx += 2 if ((2 * h + ss) & 3) == 0 else 1
                free[(ss, u)] = idx - 1
        reads = []
        if h + 1 < 16:
            s0 = 2 * h + 2
            reads += [(i_, tg, 0) for i_, tg in rd_x(s0)]
            for u in range(3): reads += [(i_, tg, 0) for i_, tg in rd_w0(s0, u)]
            reads += [(i_, tg, 0) for i_, tg in rd_x(s0 + 1)]
            for u in range(3): reads += [(i_, tg, free[(0, u)]) for i_, tg in rd_w0(s0 + 1, u)]
        if h == 7:
            rare([f"s_cmp_eq_u32 s{sW}, 0"], f"buffer_load_dword v{vPOLL}, off, {sr(SDBG)}, 0")
            vm.mark("nonce")
        n = len(mfs)
        run_slots(mfs, reads, valu, dm, rstart=0, rper=(3.0 if odd else 2.0), vper=(6 if odd else 3))
        if not odd:
            a(lg.drain())
            W(vm.wait(("st", t + 1)))
            a("s_barrier")
    a.label("X_end")
    stamp(name="pass0")
    a(f"""
    s_lshl_b32 s{sFL}, s{sRB}, 4
    s_lshl_b32 s{sT0}, s{sCGQ}, 2
    s_add_u32 s{sT0}, s{sT0}, s{sCGL}
    s_add_u32 s{sFL}, s{sFL}, s{sT0}
    s_lshr_b32 s{sQB}, s{sRB}, 1
    s_and_b32 s{sHD}, s{sFL}, 31
    s_lshl_b32 s{sMT}, s{sCGQ}, 3
    s_add_u32 s{sMT}, s{sMT}, s{sRL}
    s_and_b32 s{sNT}, s2, 1
    s_lshl_b32 s{sNT}, s{sNT}, 2
    s_add_u32 s{sNT}, s{sNT}, s{sCGL}
    s_and_b32 s{sCT}, s{sW}, 3
    s_lshr_b32 s{sKH}, s{sW}, 2
    s_sub_u32 s{sJS}, 8, s{sW}
    s_cmp_eq_u32 s{sQB}, 0
    s_cselect_b32 s{sJS}, s{sJS}, 0
    """)

    E = 40
    vNM, vVE, vA_, vC1, vC2 = vS[0], vQ[0], vS[1], vQ[1], vST[0]
    vQA, vHA = vX0, vX1
    rare([f"s_cmp_eq_u32 s{sW}, 0"], f"""
    {vm.peek("nonce")}
    s_mov_b32 s{sCNT}, 0
    L_nc:
    v_readfirstlane_b32 s{sTAG}, v{vPOLL}
    s_nop 3
    s_cmp_lg_u32 s{sTAG}, 0
    s_cbranch_scc1 L_nd
    s_add_u32 s{sCNT}, s{sCNT}, 1
    s_cmp_gt_u32 s{sCNT}, 0x8000
    s_cbranch_scc1 L_nd
    s_sleep 2
    buffer_load_dword v{vPOLL}, off, {sr(SDBG)}, 0{SC}
    s_waitcnt vmcnt(0)
    s_branch L_nc
    L_nd:
    """)
    def cs_publish(nu, base):
        a(f"""
        v_lshrrev_b32 v{FR}, 4, v{vL}
        v_lshlrev_b32 v{FR}, 4, v{FR}
        v_and_b32 v{FR+1}, 1, v{vL}
        v_lshl_add_u32 v{FR}, v{FR+1}, 6, v{FR}
        s_lshl_b32 s{sT0}, s{sNH}, 2
        s_add_u32 s{sT0}, s{sT0}, s{sMG}
        s_mul_i32 s{sT0}, s{sT0}, {nu*128}
        s_add_u32 s{sT0}, s{sT0}, {base}
        v_add_u32 v{FR}, s{sT0}, v{FR}
        """)
        for u in range(nu): a(f"ds_write_b128 v{FR}, {vr(CA[u])} offset:{u*128}")
        a(f"""
        v_min_u32 v{FR+1}, {nu*16-1}, v{vL}
        v_lshlrev_b32 v{FR+1}, 3, v{FR+1}
        s_mul_i32 s{sT0}, s{sW}, {nu*128}
        s_add_u32 s{sT0}, s{sT0}, {base + 8*nu*128}
        v_add_u32 v{FR}, s{sT0}, v{FR+1}
        s_mul_i32 s{sT1}, s{sNH}, {4*nu*128}
        s_add_u32 s{sT1}, s{sT1}, {base}
        v_add_u32 v{FR+1}, s{sT1}, v{FR+1}
        v_lshrrev_b32 v{FR+3}, 5, v{vL}
        v_lshlrev_b32 v{FR+3}, 4, v{FR+3}
        v_add_u32 v{FR+3}, s{sT0}, v{FR+3}
        """)
    def cs_reduce_issue(nu, tmp):
        for m in range(4):
            a(f"ds_read_b64 {vr(tmp+2*m,2)}, v{FR+1} offset:{m*nu*128}"); lg.issue("cp")
    def cs_reduce(nu, tmp):
        W(lg.wait("cp"))
        a(f"""
        v_add_f32 v{tmp}, v{tmp}, v{tmp+2}
        v_add_f32 v{tmp+1}, v{tmp+1}, v{tmp+3}
        v_add_f32 v{tmp+4}, v{tmp+4}, v{tmp+6}
        v_add_f32 v{tmp+5}, v{tmp+5}, v{tmp+7}
        v_add_f32 v{tmp}, v{tmp}, v{tmp+4}
        v_add_f32 v{tmp+1}, v{tmp+1}, v{tmp+5}
        ds_write_b64 v{FR}, {vr(tmp,2)}
        """)
        lg.issue("ct")
    def cs_fold(nu, accf, tmp):
        def rd(u):
            for q in range(4):
                a(f"ds_read_b128 {vr(tmp+16*(u&1)+4*q)}, v{FR+3} offset:{u*128+q*32}"); lg.issue(("cf", u))
        rd(0); rd(1)
        for u in range(nu):
            W(lg.wait(("cf", u)))
            for r in range(16): a(f"v_fmac_f32 v{accf(u)+r}, v{vNM}, v{tmp+16*(u&1)+r}")
            if u + 2 < nu: rd(u + 2)
    L_RS = LK + 8192
    a(f"""
    v_add_f32 v{vS[0]}, v{vS[0]}, v{vS[1]}
    v_add_f32 v{vQ[0]}, v{vQ[0]}, v{vQ[1]}
    v_mov_b32 v{vS[1]}, v{vS[0]}
    v_mov_b32 v{vQ[1]}, v{vQ[0]}
    v_and_b32 v{FR+2}, 31, v{vL}
    v_lshlrev_b32 v{FR+2}, 3, v{FR+2}
    v_permlane32_swap_b32 v{vS[0]}, v{vS[1]}
    v_permlane32_swap_b32 v{vQ[0]}, v{vQ[1]}
    s_lshl_b32 s{sT0}, s{sW}, 8
    s_add_u32 s{sT0}, s{sT0}, {L_RS}
    v_add_u32 v{FR+2}, s{sT0}, v{FR+2}
    v_add_f32 v{vS[0]}, v{vS[0]}, v{vS[1]}
    v_add_f32 v{vS[1]}, v{vQ[0]}, v{vQ[1]}
    ds_write_b64 v{FR+2}, v[{vS[0]}:{vS[1]}]
    v_xor_b32 v{FR+2}, 0x100, v{FR+2}
    """)
    cs_publish(3, LK)
    a(f"""
    v_and_b32 v{vQA}, 31, v{vL}
    v_lshrrev_b32 v{E}, 5, v{vL}
    v_lshlrev_b32 v{vHA}, 4, v{E}
    v_lshl_add_u32 v{vQA}, v{vQA}, 5, v{vHA}
    s_lshl_b32 s{sT0}, s{sRB}, 12
    s_lshl_b32 s{sT1}, s{sMG}, 10
    s_add_u32 s{sT0}, s{sT0}, s{sT1}
    v_add_u32 v{vQA}, s{sT0}, v{vQA}
    v_and_b32 v{vHA}, 15, v{vL}
    v_lshlrev_b32 v{vHA}, 4, v{vHA}
    v_lshl_add_u32 v{vHA}, v{E}, 8, v{vHA}
    v_bfe_u32 v{E}, v{vL}, 4, 1
    v_lshl_add_u32 v{vHA}, v{E}, 10, v{vHA}
    s_waitcnt lgkmcnt(0)
    s_barrier
    """)
    lg.q = []
    cs_reduce_issue(3, E)
    a(f"ds_read_b64 v[{vQ[0]}:{vQ[1]}], v{FR+2}"); lg.issue("rs")
    cs_reduce(3, E)
    W(lg.wait("rs"))
    a(f"""
    v_add_f32 v{vS[0]}, v{vS[0]}, v{vQ[0]}
    v_add_f32 v{vS[1]}, v{vS[1]}, v{vQ[1]}
    v_mul_f32 v{vNM}, {hx(-1.0/512)}, v{vS[0]}
    v_mul_f32 v{vQ[1]}, v{vNM}, v{vNM}
    v_mov_b32 v{vST[1]}, {hx(1.0/512)}
    v_fma_f32 v{vVE}, v{vS[1]}, v{vST[1]}, -v{vQ[1]}
    v_max_f32 v{vVE}, 0, v{vVE}
    v_add_f32 v{vVE}, {hx(1e-5)}, v{vVE}
    v_rsq_f32 v{vA_}, v{vVE}
    v_mul_f32 v{vC1}, {hx(GK1)}, v{vA_}
    v_mul_f32 v{vC2}, v{vA_}, v{vA_}
    v_mul_f32 v{vC2}, v{vC2}, v{vA_}
    v_mul_f32 v{vC2}, {hx(GK2)}, v{vC2}
    """)
    cs_fold(3, acc, E)
    stamp(name="E0 serial")
    def f_qkv(x, uadd, tmp, tag):
        o = [('s', f"s_add_u32 s{sE0}, s{sU0}, {uadd}"), ('s', f"s_cmp_lt_u32 s{sE0}, 8\ns_cselect_b32 s{sSC0}, {hx(QSCALE)}, 1.0"),
             ('s', f"s_lshl_b32 s{sE0}, s{sE0}, 2"), ('s', f"s_lshl_b32 s{sE1}, s{sNH}, 1"), ('s', f"s_add_u32 s{sE0}, s{sE0}, s{sE1}"),
             ('s', f"s_lshl_b32 s{sE0}, s{sE0}, 16"), ('s', f"s_add_u32 s{sE0}, s{sE0}, {WS_QKV}"), ('s', f"s_add_u32 s{sE1}, s{sE0}, 0x10000"),
             ('v', f"v_mul_f32 v{tmp+8}, s{sSC0}, v{vA_}")]
        for e in range(2):
            for r in range(8): o.append(('v', f"v_mul_f32 v{x+8*e+r}, v{tmp+8}, v{x+8*e+r}"))
            for r in range(4): o.append(('v', f"v_cvt_pk_bf16_f32 v{tmp+4*e+r}, v{x+8*e+2*r}, v{x+8*e+2*r+1}"))
            o.append(('m', f"buffer_store_dwordx4 {vr(tmp+4*e)}, v{vQA}, {sr(SWS)}, s{sE0 if e == 0 else sE1} offen{SC}", tag))
        return o
    def f_h(g, u, spair, tmp, tag):
        o = [('s', f"s_lshl_b32 s{sE0}, s{spair}, 1"), ('s', f"s_add_u32 s{sE0}, s{sE0}, s{sNH}"), ('s', f"s_lshl_b32 s{sE0}, s{sE0}, 7"),
             ('s', f"s_lshl_b32 s{sE1}, s{sRB}, 3"), ('s', f"s_add_u32 s{sE0}, s{sE0}, s{sE1}"), ('s', f"s_lshl_b32 s{sE1}, s{sMG}, 1"),
             ('s', f"s_add_u32 s{sE0}, s{sE0}, s{sE1}"), ('s', f"s_lshl_b32 s{sE0}, s{sE0}, 10")]
        t = tmp + 8
        for e in range(2):
            for q in range(2):
                G_, U_ = g + 8 * e + 4 * q, u + 8 * e + 4 * q
                for r in range(4): o.append(('v', f"v_mul_f32 v{t+r}, v{G_+r}, v{G_+r}"))
                for r in range(4): o.append(('v', f"v_fma_f32 v{t+r}, v{t+r}, v{vC2}, v{vC1}"))
                for r in range(4): o.append(('v', f"v_mul_f32 v{t+r}, v{t+r}, v{G_+r}"))
                for r in range(4): o.append(('v', f"v_exp_f32 v{t+r}, v{t+r}"))
                for r in range(4): o.append(('v', f"v_mul_f32 v{G_+r}, v{G_+r}, v{U_+r}"))
                for r in range(4): o.append(('v', f"v_fma_f32 v{t+r}, v{t+r}, v{vVE}, v{vVE}"))
                for r in range(4): o.append(('v', f"v_rcp_f32 v{t+r}, v{t+r}"))
                for r in range(4): o.append(('v', f"v_mul_f32 v{G_+r}, v{G_+r}, v{t+r}"))
                o.append(('v', f"v_cvt_pk_bf16_f32 v{tmp+4*e+2*q}, v{G_}, v{G_+1}"))
                o.append(('v', f"v_cvt_pk_bf16_f32 v{tmp+4*e+2*q+1}, v{G_+2}, v{G_+3}"))
            o.append(('m', f"buffer_store_dwordx4 {vr(tmp+4*e)}, v{vHA}, {sr(SWS)}, s{sE0} offen offset:{512*e}{SC}", tag))
        return o
    vWS = vWq
    a(f"""
    v_lshrrev_b32 v{E}, 3, v{vL}
    v_and_b32 v{E+1}, 7, v{vL}
    v_lshrrev_b32 v{E+2}, 4, v{vL}
    v_lshrrev_b32 v{E+3}, 1, v{E+1}
    v_xor_b32 v{E+3}, v{E+3}, v{E+2}
    v_lshlrev_b32 v{E+3}, 5, v{E+3}
    v_and_b32 v{E+1}, 1, v{E+1}
    v_lshl_add_u32 v{E+3}, v{E+1}, 4, v{E+3}
    v_lshl_add_u32 v{vWS}, v{E}, 10, v{E+3}
    s_lshl_b32 s{sT0}, s{sNT}, 7
    s_lshl_b32 s{sT1}, s{sCT}, 13
    s_add_u32 s{sT0}, s{sT0}, s{sT1}
    v_add_u32 v{vWS}, s{sT0}, v{vWS}
    s_mov_b32 s{SWD}, s16
    s_and_b32 s{SWD+1}, s17, 0xffff
    s_mov_b32 s{SWD+2}, {1792*1024}
    s_mov_b32 s{SWO}, s8
    s_and_b32 s{SWO+1}, s9, 0xffff
    s_mov_b32 s{SWO+2}, {512*1024}
    s_mov_b32 s{SOUT}, s18
    s_and_b32 s{SOUT+1}, s19, 0xffff
    s_mov_b32 s{SOUT+2}, {2048*1024}
    s_mul_i32 s{sWQ}, s{sKH}, {28*32*1024}
    s_lshl_b32 s{sWL}, s{sKH}, 14
    s_lshl_b32 s{sT0}, s{sCT}, 10
    s_add_u32 s{sWL}, s{sWL}, s{sT0}
    s_lshl_b32 s{sAO}, s{sMT}, 12
    s_lshl_b32 s{sT0}, s{sCT}, 17
    s_add_u32 s{sAO}, s{sAO}, s{sT0}
    s_lshl_b32 s{sT0}, s{sCGL}, 1
    s_add_u32 s{sR2}, s{sR2}, s{sT0}
    s_sub_u32 s{sT0}, s{sR2}, 7
    s_cmp_ge_u32 s{sR2}, 7
    s_cselect_b32 s{sR2}, s{sT0}, s{sR2}
    s_and_b32 s{sR2}, s{sR2}, {R2MASK}
    """)
    def bdma(b):
        ar = (b % 3) * SLOT
        rotc = lambda bb: [f"s_add_u32 s{sT2}, s{sR2}, {bb}", f"s_sub_u32 s{sT3}, s{sT2}, 7", f"s_cmp_ge_u32 s{sT2}, 7", f"s_cselect_b32 s{sT2}, s{sT3}, s{sT2}"]
        g = []
        if b < 9:
            if b < 7: pre = rotc(b) + [f"s_lshl_b32 s{sT2}, s{sT2}, 17", f"s_add_u32 s{sT2}, s{sT2}, s{sWQ}"]
            else: pre = [f"s_lshl_b32 s{sT2}, s{sKH}, 18", f"s_add_u32 s{sT2}, s{sT2}, {(b-7)*4*32*1024}"]
            S = SWD if b < 7 else SWO
            for j in range(4):
                g.append(((pre if j == 0 else []) + [f"s_add_u32 m0, s{sWL}, {ar + j*4096}", f"s_add_u32 s{sT0}, s{sT2}, {j*32*1024}"],
                          f"buffer_load_dwordx4 v{vWS}, {sr(S)}, s{sT0} offen lds"))
        else:
            s = b - 9
            if s < 7: pre = rotc(s) + [f"s_lshl_b32 s{sT2}, s{sT2}, 19", f"s_mul_i32 s{sT0}, s{sKH}, {28*131072}", f"s_add_u32 s{sT0}, s{sT0}, s{sT2}"]
            else: pre = [f"s_lshl_b32 s{sT0}, s{sKH}, 20", f"s_add_u32 s{sT0}, s{sT0}, {(56+4*(s-7))*131072}"]
            pre += [f"s_lshl_b32 s{sT1}, s{sW}, 12", f"s_add_u32 m0, s{sT1}, {ar}", f"s_add_u32 s{sT0}, s{sT0}, s{sAO}"]
            for q in range(4):
                g.append((pre if q == 0 else [], f"buffer_load_dwordx4 v{vD}, {sr(SWS)}, s{sT0} offen offset:{q*1024} lds"))
        return g, ("b", b)
    W0 = [f"s_cmp_eq_u32 s{sW}, 0"]
    def publish(level):
        if level < 3:
            adr = f"""s_lshr_b32 s92, s{sFL}, 4
            s_lshl_b32 s92, s92, 7
            s_and_b32 s93, s{sFL}, 15
            s_lshl_b32 s93, s93, 2
            s_add_u32 s92, s92, s93"""
        else:
            adr = f"s_lshl_b32 s92, s{sFL}, 2"
        rare(W0, f"""
        {adr}
        s_add_u32 s92, s92, {WS_F + (level-1)*4096}
        v_mov_b32 v{vPOLL}, s{sTAG}
        s_mov_b64 exec, 1
        buffer_store_dword v{vPOLL}, off, {sr(SWS)}, s92{SC}
        s_mov_b64 exec, -1
        """)
    def poll_addr(kind):
        if kind == 1:
            return f"""v_lshrrev_b32 v{vPO}, 4, v{vL}
            v_lshlrev_b32 v{vPO}, 7, v{vPO}
            v_and_b32 v{vPOLL}, 15, v{vL}
            v_lshl_add_u32 v{vPO}, v{vPOLL}, 2, v{vPO}"""
        m = 15 if kind == 2 else 31
        return f"""v_and_b32 v{vPO}, {m}, v{vL}
            v_lshlrev_b32 v{vPO}, 2, v{vPO}"""
    def poll_issue(tag, sbase, kind):
        rare(W0, f"""
        {poll_addr(kind)}
        buffer_load_dword v{vPOLL}, v{vPO}, {sr(SWS)}, s{sbase} offen{SC}
        """)
        vm.mark(tag)
    def poll_check(tag, sbase, kind):
        n = U()
        rare(W0, f"""
        {vm.peek(tag)}
        s_mov_b32 s{sCNT}, 0
        L_pl{n}:
        v_cmp_ne_u32 vcc, s{sTAG}, v{vPOLL}
        s_nop 4
        s_cbranch_vccz L_pd{n}
        s_add_u32 s{sCNT}, s{sCNT}, 1
        s_cmp_gt_u32 s{sCNT}, 0x8000
        s_cbranch_scc1 L_pd{n}
        s_sleep 2
        {poll_addr(kind)}
        buffer_load_dword v{vPOLL}, v{vPO}, {sr(SWS)}, s{sbase} offen{SC}
        s_waitcnt vmcnt(0)
        s_branch L_pl{n}
        L_pd{n}:
        """)
        fstamp(f"poll {tag}")
    sPB = sXB
    for it in f_qkv(acc(0), 0, E, "eq"): do_fill(it)
    def acc1_init():
        pass
    R1 = [36, SPARE, 6, CA[2], xf(0), xf(1)]
    def f1(s, u): return R1[(2 * s + u) % 6]
    def acc1(u): return ACC1 + 16 * u
    def rd_w1(s):
        c2 = (s >> 2) & 1
        return [(f"ds_read_b64_tr_b16 {vr(f1(s,u)+2*hh,2)}, v{vWR[s & 3]} offset:{c2*16384+u*8192+hh*512}", ("w1", s, u)) for u in range(2) for hh in range(2)]
    PFS = [0, 3, 10, 13, 19]
    def pass1(fill, nq):
        lds(rd_w1(0)); lds(rd_w1(1))
        for s in range(32):
            Tq, r8 = s >> 3, s & 7; g = 8 + Tq
            valu = []; dm = {}
            if r8 == 6 and Tq < 3:
                a(lg.drain())
                f2stamp(f"p1 mm{Tq}")
                if Tq == 1: W(vm.wait("eq"))
                W(vm.wait(("st", g + 1)))
                f2stamp(f"p1 vmwait{Tq}")
                a("s_barrier")
                f2stamp(f"p1 bar{Tq}")
                if Tq == 1: publish(1)
                valu = slot_adv(g + 1, vWR)
                if Tq <= OPT["early_b"]:
                    gr, tag = dma_p1(3) if Tq == 0 else bdma(Tq - 1)
                    pass1.pend = [(pre, ld, tag) for pre, ld in gr]
            if getattr(pass1, "pend", None) and (r8 in (6, 7, 0, 1)):
                dm = {1: pass1.pend.pop(0)}
            mfs = []
            for u in range(2):
                mfs.append(([("w1", s, u)], f"{MF32} {vr(acc1(u),16)}, {vr(f1(s,u))}, {vr(xf(s))}, {vr(acc1(u),16) if s else 0}"))
                if (s & 3) == 0:
                    mfs.append(([], f"{MF16} {vr(CA[u])}, {vr(f1(s,u))}, {vr(SEL)}, {vr(CA[u]) if s else 0}"))
            last = len(mfs) - 1
            reads = []
            if s + 2 < 32:
                e = last if s == 0 else 0
                if s == 0:
                    reads = [(i_, tg, last) for i_, tg in rd_w1(2)[:2]]
                elif s == 1:
                    reads = [(i_, tg, last) for i_, tg in rd_w1(2)[2:]] + [(i_, tg, last) for i_, tg in rd_w1(3)]
                else:
                    reads = [(i_, tg, 0) for i_, tg in rd_w1(s + 2)]
            run_slots(mfs, reads, valu, dm, rper=2.0 if s > 1 else 8.0, vper=4, fill=(fill if s >= 5 else None), fper=OPT["fper"])
            if s == 26:
                a(f"""
                s_lshl_b32 s{sPB}, s{sQB}, 8
                s_sub_i32 s{sPB}, s{sPB}, 256
                s_max_i32 s{sPB}, s{sPB}, 0
                s_add_u32 s{sPB}, s{sPB}, {WS_F}
                """)
                poll_issue("p1", sPB, 1)
        while fill: do_fill(fill.pop(0))
    TF = xf(2)
    fa = f_h(acc(1), acc(2), sP0, TF, "eh")
    lateA = [it for it in fa if it[0] != 'v']
    k = max(i for i, it in enumerate(fa) if it[0] == 's')
    fillA = fa[:k+1] + [('s', f"s_cmp_eq_u32 s{sW}, 0\ns_cselect_b32 s{sE0}, 0x7f000000, s{sE0}")] + fa[k+1:]
    fillB = []
    sv, sl0, sn = vm.save(), lg.save(), nstamp[0]
    a(f"s_cmp_eq_u32 s{sTB}, 1")
    a("s_cbranch_scc1 L_p1b")
    acc1_init()
    pass1.pend = []
    pass1(fillA, 2)
    stA = vm.save()
    a("s_branch L_e1")
    a.label("L_p1b")
    vm.restore(sv); lg.restore(sl0); nstamp[0] = sn; del SNAMES[sn:]
    for it in f_qkv(acc(1), 1, E + 12, "eq") + f_qkv(acc(2), 2, E, "eq"): do_fill(it)
    acc1_init()
    pass1.pend = []
    pass1(fillB, 6)
    stB = vm.save()
    a.label("L_e1")
    qa = [t for t in stA[0] if t not in ("eq", "eh")]; qb_ = [t for t in stB[0] if t not in ("eq", "eh")]
    if len(qb_) > len(qa): qa, qb_ = qb_, qa
    assert qa[len(qa) - len(qb_):] == qb_, (qa, qb_)
    vm.q = list(qa)
    def after_mark(st):
        n = st[1] - st[2]["p1"]; tail = st[0][len(st[0]) - n:] if n <= len(st[0]) else st[0]
        return len([t for t in tail if t not in ("eq", "eh")])
    vm.total = 1000; vm.marks = {"p1": 1000 - min(after_mark(stA), after_mark(stB))}
    stamp(name="pass1")
    cs_publish(2, SCR)
    poll_check("p1", sPB, 1)
    f3stamp("e1 poll")
    a(lg.drain())
    a("s_barrier")
    f3stamp("e1 bar")
    cs_reduce_issue(2, ACC)
    vKR = vW12; QF = SPARE
    a(f"""
    s_lshl_b32 s{sT0}, s{sQB}, 8
    s_lshl_b32 s{sT1}, s{sW}, 6
    s_add_u32 s{sT1}, s{sT1}, s{sT0}
    s_sub_i32 s{sT1}, s{sT1}, 256
    s_max_i32 s{sT1}, s{sT1}, 0
    s_lshl_b32 s{sT1}, s{sT1}, 5
    s_lshl_b32 s{sT2}, s{sHD}, 16
    s_add_u32 m0, s{sLX}, {LK}
    s_add_u32 s{sT1}, s{sT1}, s{sT2}
    s_add_u32 s{sT3}, s{sT1}, {WS_QKV + 64*65536}
    s_add_u32 s{sT1}, s{sT1}, {WS_QKV + 32*65536}
    buffer_load_dwordx4 v{vD}, {sr(SWS)}, s{sT1} offen lds
    buffer_load_dwordx4 v{vD}, {sr(SWS)}, s{sT1} offen offset:1024 lds
    s_add_u32 m0, s{sLX}, {LV}
    v_and_b32 v{FR+2}, 31, v{vL}
    buffer_load_dwordx4 v{vD}, {sr(SWS)}, s{sT3} offen lds
    buffer_load_dwordx4 v{vD}, {sr(SWS)}, s{sT3} offen offset:1024 lds
    v_lshrrev_b32 v{vKR}, 5, v{vL}
    v_lshlrev_b32 v{vKR}, 4, v{vKR}
    v_lshl_add_u32 v{vKR}, v{FR+2}, 5, v{vKR}
    s_lshl_b32 s{sT1}, s{sW}, 5
    s_add_u32 s{sT1}, s{sT1}, s{sT0}
    s_lshl_b32 s{sT1}, s{sT1}, 5
    s_add_u32 s{sT1}, s{sT1}, s{sT2}
    s_add_u32 s{sT1}, s{sT1}, {WS_QKV}
    buffer_load_dwordx4 {vr(QF)}, v{vKR}, {sr(SWS)}, s{sT1} offen
    s_add_u32 s{sT0}, s{sLW}, {LK}
    v_add_u32 v{vKR}, s{sT0}, v{vKR}
    """)
    vm.issue("kv", 5)
    f3stamp("e1 kv")
    cs_reduce(2, ACC)
    e1d = []
    for b in range(OPT["early_b"], 3):
        gr, tag = bdma(b); e1d += [(pre, ld, tag) for pre, ld in gr]
    f3stamp("e1 b2")
    rare([f"s_or_b32 s{sT0}, s{sTB}, s{sW}", f"s_cmp_eq_u32 s{sT0}, 0"], "\n".join(it[1] for it in lateA))
    cs_fold(2, acc1, ACC)
    f3stamp("e1 fold")
    fe1 = f_h(acc1(0), acc1(1), sPF, ACC, "e1")
    st_last = [it for it in fe1 if it[0] == 'm']
    fe1 = [it for it in fe1 if it[0] != 'm']
    gap = max(4, len(fe1) // (len(e1d) + 1))
    for k, it in enumerate(fe1):
        if e1d and k % gap == 1: a.extend(e1d[0][0])
        do_fill(it)
        if e1d and k % gap == 2: a(e1d[0][1]); vm.issue(e1d[0][2]); e1d.pop(0)
    assert not e1d
    for it in st_last: do_fill(it)
    stamp(name="E1")
    WF = 112
    vVR, vVS, vRO, vM = 5, 6, 7, 1
    P2r = 8; KF = [16, 20]; VT = 24; P = 32; S = [40, 56]; NEG = 80; O = 96
    t0, t1, t2 = 24, 25, 26
    MP = [4 + 2 * i for i in range(10)] + [40, 42, 44, 46] + [64, 66]
    a(f"""
    v_and_b32 v{t0}, 31, v{vL}
    v_lshrrev_b32 v{t1}, 5, v{vL}
    v_lshlrev_b32 v{t2}, 2, v{t1}
    v_sub_u32 v{t2}, v{t0}, v{t2}
    """)
    for r in range(16):
        a(f"v_cmp_le_i32 s[{MP[r]}:{MP[r]+1}], {8*(r>>2)+(r&3)}, v{t2}")
    a(f"""
    v_bfe_u32 v{t0}, v{vL}, 2, 2
    v_lshl_add_u32 v{t0}, v{t1}, 2, v{t0}
    v_and_b32 v{t2}, 1, v{vL}
    v_lshlrev_b32 v{t2}, 4, v{t2}
    v_lshl_add_u32 v{vVR}, v{t0}, 5, v{t2}
    v_bfe_u32 v{t2}, v{vL}, 1, 1
    v_lshl_add_u32 v{vVR}, v{t2}, 3, v{vVR}
    v_and_b32 v{t2}, 16, v{vL}
    v_cmp_eq_u32 vcc, 0, v{t2}
    s_add_u32 s{sT0}, s{sLW}, {LV}
    v_mov_b32 v{t0}, {LONE}
    v_mov_b32 v{t1}, s{sT0}
    v_cndmask_b32 v{t0}, v{t0}, v{t1}, vcc
    v_add_u32 v{vVR}, v{vVR}, v{t0}
    v_mov_b32 v{t1}, 0x400
    v_cndmask_b32 v{vVS}, 0, v{t1}, vcc
    v_and_b32 v{t0}, 15, v{vL}
    v_lshrrev_b32 v{t1}, 2, v{t0}
    v_bfe_u32 v{t2}, v{vL}, 4, 1
    v_lshl_add_u32 v{t1}, v{t2}, 2, v{t1}
    v_lshrrev_b32 v{t2}, 1, v{t1}
    v_xor_b32 v{t2}, s{sCT}, v{t2}
    v_lshlrev_b32 v{t2}, 5, v{t2}
    v_and_b32 v{t0}, 3, v{t0}
    v_lshl_add_u32 v{t2}, v{t0}, 3, v{t2}
    v_lshl_add_u32 v{t2}, v{t1}, 7, v{t2}
    s_lshl_b32 s{sT0}, s{sKH}, 14
    v_add_u32 v{t2}, s{sT0}, v{t2}
    v_lshrrev_b32 v{t1}, 5, v{vL}
    v_lshl_add_u32 v{vRO}, v{t1}, 11, v{t2}
    v_mov_b32 v{vM}, {NEGBIG}
    """)
    def wstep(b, extra_wait=None):
        a(lg.drain())
        fstamp(f"att->w{b}")
        if extra_wait: W(vm.wait(extra_wait))
        W(vm.wait(("b", b)))
        a("s_barrier")
        fstamp(f"bar w{b}")
        ar = (b % 3) * SLOT
        if ar + 3 * 4096 + 1024 + 8 > 65535:
            a(f"v_add_u32 v{vPO}, {ar}, v{vRO}"); rb_, off = vPO, 0
        else:
            rb_, off = vRO, ar
        for j in range(4):
            i = 4 * b + j
            for hh in range(2):
                a(f"ds_read_b64_tr_b16 {vr(WF+4*i+2*hh,2)}, v{rb_} offset:{off + j*4096 + hh*1024}"); lg.issue("wf")
        if b >= 1: emit_dma(bdma(b + 2))
    def mf_s(dst, kf): return f"{MF32} {vr(dst,16)}, {vr(kf)}, {vr(QF)}, {vr(NEG,16)}"
    def rdk(j, buf=None):
        a(f"ds_read_b128 {vr(KF[j & 1 if buf is None else buf])}, v{vKR} offset:{j*1024}"); lg.issue(("k", j))
    def cset(val): return "\n".join(val(r) for r in range(16))
    big = lambda r: f"v_mov_b32 v{NEG+r}, {NEGBIG}"
    zero = lambda r: f"v_mov_b32 v{NEG+r}, 0"
    negm = lambda r: f"v_sub_f32 v{NEG+r}, 0, v{vM}"
    def cinit(val):
        a(cset(val))
        rare([f"s_cmp_gt_u32 s{sJS}, 1"], cset(big))
    def cswitch(j, val):
        if j >= 2: rare([f"s_cmp_eq_u32 s{sJS}, {j}"], cset(val))
    def maxred(s):
        for r in range(0, 16, 2): a(f"v_max3_f32 v{vM}, v{s+r}, v{s+r+1}, v{vM}")
    def tile0():
        W(lg.wait(("k", 0)))
        a(mf_s(S[1], KF[1]))
        rare([f"s_cmp_gt_u32 s{sJS}, 0"], "s_nop 15\n" + "\n".join(f"v_mov_b32 v{S[1]+r}, {NEGBIG}" for r in range(16)))
        for r in range(16): a(f"v_cndmask_b32 v{S[0]+r}, v{S[1]+r}, v{S[0]+r}, s[{MP[r]}:{MP[r]+1}]")
    cinit(zero)
    W(vm.wait("kv"))
    wstep(0)
    stamp(name="att setup")
    rdk(1)
    for j in range(1, 9):
        cswitch(j, zero)
        W(lg.wait(("k", j)))
        a(mf_s(S[j & 1], KF[j & 1]))
        if j < 8: rdk(j + 1)
        else: rdk(0, 1)
        if j > 1: maxred(S[(j - 1) & 1])
        if j == 3: wstep(1)
        if j == 6: wstep(2, "e1"); publish(2)
    tile0()
    maxred(S[0])
    a(f"""
    v_mov_b32 v{vPO}, v{vM}
    v_permlane32_swap_b32 v{vM}, v{vPO}
    v_max_f32 v{vM}, v{vM}, v{vPO}
    s_lshr_b32 s{sPB}, s{sMT}, 1
    s_lshl_b32 s{sPB}, s{sPB}, 7
    s_add_u32 s{sPB}, s{sPB}, {WS_F + 4096}
    """)
    cinit(negm)
    wstep(3)
    stamp(name="att p1")
    def rdv(tag):
        for t in range(2):
            for hh in range(2):
                a(f"ds_read_b64_tr_b16 {vr(VT+4*t+2*hh,2)}, v{vVR} offset:{t*512+hh*256}"); lg.issue(tag)
    PB = [P, P2r]
    npv = [0]
    def pv1(p, t):
        npv[0] += 1
        return f"{MF32} {vr(O,16)}, {vr(VT+4*t)}, {vr(p+4*t)}, {vr(O,16) if npv[0] > 1 else 0}"
    rdk(1)
    wsched = {2: 4, 4: 5, 6: 6, 8: 7}
    for j in range(1, 9):
        cswitch(j, negm)
        W(lg.wait(("k", j)))
        a(mf_s(S[j & 1], KF[j & 1]))
        if j < 8: rdk(j + 1)
        else: rdk(0, 1)
        if j > 1:
            sx = S[(j - 1) & 1]; px = PB[(j - 1) & 1]
            ex = [f"v_exp_f32 v{sx+r}, v{sx+r}" for r in range(16)]
            cv = [f"v_cvt_pk_bf16_f32 v{px+r}, v{sx+2*r}, v{sx+2*r+1}" for r in range(8)]
            a.extend(ex[0:5])
            if j > 2:
                W(lg.wait(("v", j - 2))); a(pv1(PB[j & 1], 0))
            a.extend(ex[5:10])
            if j > 2: a(pv1(PB[j & 1], 1))
            a.extend(ex[10:16])
            a(f"v_add_u32 v{vVR}, v{vVR}, v{vVS}")
            rdv(("v", j - 1))
            a.extend(cv)
        if j in wsched:
            if wsched[j] == (7 if OPT["p2late"] else 5): poll_check("p2", sPB, 2)
            wstep(wsched[j])
            if wsched[j] == (5 if OPT["p2late"] else 4): poll_issue("p2", sPB, 2)
            if wsched[j] == 5 and OPT["hpf"]:
                a(f"""
                s_lshl_b32 s{sT0}, s{sCGL}, 3
                s_add_u32 s{sT0}, s{sT0}, s{sW}
                s_mul_i32 s{sT0}, s{sT0}, 56
                v_min_u32 v{vPO}, 55, v{vL}
                v_add_u32 v{vPO}, s{sT0}, v{vPO}
                v_and_b32 v{vPOLL}, 31, v{vPO}
                v_lshrrev_b32 v{vPO}, 5, v{vPO}
                v_lshlrev_b32 v{vPO}, 17, v{vPO}
                v_lshl_add_u32 v{vPO}, v{vPOLL}, 7, v{vPO}
                s_lshl_b32 s{sT0}, s{sMT}, 12
                buffer_load_dword v{O+15}, v{vPO}, {sr(SWS)}, s{sT0} offen
                """)
                vm.issue("hpf")
    tile0()
    W(lg.wait(("v", 7)))
    ex = [f"v_exp_f32 v{S[0]+r}, v{S[0]+r}" for r in range(16)]
    a.extend(ex[0:5]); a(pv1(PB[1], 0)); a.extend(ex[5:10]); a(pv1(PB[1], 1)); a.extend(ex[10:16])
    a(f"v_add_u32 v{vVR}, v{vVR}, v{vVS}")
    rdv(("v", 8))
    for r in range(16): a(f"v_cndmask_b32 v{S[1]+r}, 0, v{S[0]+r}, s[{MP[r]}:{MP[r]+1}]")
    for r in range(8): a(f"v_cvt_pk_bf16_f32 v{PB[0]+r}, v{S[1]+2*r}, v{S[1]+2*r+1}")
    W(lg.wait(("v", 8)))
    a(pv1(PB[0], 0))
    for r in range(8): a(f"v_cndmask_b32 v{S[0]+r}, v{S[0]+r}, 0, s[{MP[r]}:{MP[r]+1}]")
    a(pv1(PB[0], 1))
    a(f"v_lshlrev_b32 v{vPO}, 3, v{vVS}")
    a(f"v_sub_u32 v{vVR}, v{vVR}, v{vPO}")
    rdv(("v", 0))
    for r in range(8, 16): a(f"v_cndmask_b32 v{S[0]+r}, v{S[0]+r}, 0, s[{MP[r]}:{MP[r]+1}]")
    for r in range(8): a(f"v_cvt_pk_bf16_f32 v{PB[1]+r}, v{S[0]+2*r}, v{S[0]+2*r+1}")
    W(lg.wait(("v", 0)))
    a(pv1(PB[1], 0)); a(pv1(PB[1], 1))
    a(f"""
    s_lshr_b32 s{sT0}, s{sHD}, 1
    s_lshl_b32 s{sT0}, s{sT0}, 7
    s_lshl_b32 s{sT1}, s{sQB}, 4
    s_add_u32 s{sT0}, s{sT0}, s{sT1}
    s_lshl_b32 s{sT1}, s{sW}, 1
    s_add_u32 s{sT0}, s{sT0}, s{sT1}
    s_lshl_b32 s{sT0}, s{sT0}, 10
    s_and_b32 s{sT1}, s{sHD}, 1
    s_lshl_b32 s{sT1}, s{sT1}, 9
    s_add_u32 s{sT0}, s{sT0}, s{sT1}
    s_add_u32 s{sT0}, s{sT0}, {WS_O}
    """)
    a(f"v_rcp_f32 v{vM}, v{O+8}")
    for r in range(8): a(f"v_mul_f32 v{O+r}, v{O+r}, v{vM}")
    for r in range(4): a(f"v_cvt_pk_bf16_f32 v{P+r}, v{O+2*r}, v{O+2*r+1}")
    a(f"buffer_store_dwordx4 {vr(P)}, v{vHA}, {sr(SWS)}, s{sT0} offen{SC}")
    vm.issue("o")
    stamp(name="att p2")
    wstep(8)
    vAR, vXO = 1, 4
    XR = 8; ACC2 = 80; ACC3 = 96; TM = 16
    a(f"""
    s_lshl_b32 s{sT0}, s{sKH}, 14
    v_add_u32 v{vAR}, s{sT0}, v{vD}
    v_and_b32 v{TM}, 15, v{vL}
    v_lshrrev_b32 v{TM+1}, 4, v{vL}
    v_lshlrev_b32 v{TM+1}, 3, v{TM+1}
    v_lshl_add_u32 v{vXO}, v{TM}, 10, v{TM+1}
    s_lshl_b32 s{sT0}, s{sMT}, 16
    s_lshl_b32 s{sT1}, s{sKH}, 15
    s_add_u32 s{sT0}, s{sT0}, s{sT1}
    s_lshl_b32 s{sT1}, s{sNT}, 7
    s_add_u32 s{sT0}, s{sT0}, s{sT1}
    s_lshl_b32 s{sT1}, s{sCT}, 5
    s_add_u32 s{sT0}, s{sT0}, s{sT1}
    v_add_u32 v{vXO}, s{sT0}, v{vXO}
    s_movk_i32 s{sT1}, 0x4000
    buffer_load_dwordx2 v[{XR}:{XR+1}], v{vXO}, {sr(SX)}, 0 offen
    buffer_load_dwordx2 v[{XR+2}:{XR+3}], v{vXO}, {sr(SX)}, s{sT1} offen
    s_lshr_b32 s{sPB}, s{sMT}, 2
    s_lshl_b32 s{sPB}, s{sPB}, 7
    s_add_u32 s{sPB}, s{sPB}, {WS_F + 8192}
    """)
    vm.issue("x", 2)
    AFB = [16, 32, 48]
    vA2b = [5, 6]
    def ard(n):
        s_, i = n >> 2, n & 3
        return [(f"ds_read_b128 {vr(AFB[n % 3]+4*rt)}, v{vA2b[s_ & 1]} offset:{i*4096+rt*1024}", ("a", n), 0) for rt in range(4)]
    def abar(s_):
        b = 9 + s_
        a(lg.drain())
        fstamp(f"mm->a{s_}")
        if s_ == 2: W(vm.wait("o"))
        W(vm.wait(("b", b)))
        a("s_barrier")
        if s_ == 2: publish(3)
        a(f"v_add_u32 v{vA2b[s_ & 1]}, {(b % 3)*SLOT}, v{vAR}")
    abar(0)
    for n in range(2):
        for ins, tg, _ in ard(n): a(ins); lg.issue(tg)
    gr, tag = bdma(11); pend = [(pre, ld, tag) for pre, ld in gr]
    for n in range(36):
        s_, i = n >> 2, n & 3
        if i == 2 and s_ < 8:
            b2 = 9 + s_ + 3
            assert not pend
            if b2 == 16: poll_check("p3", sPB, 3)
            abar(s_ + 1)
            if s_ == 3: poll_issue("p3", sPB, 3)
            if b2 <= 17:
                gr, tag = bdma(b2); pend = [(pre, ld, tag) for pre, ld in gr]
        dm = {}
        if pend:
            if n < 2: dm = {0: pend.pop(0), 2: pend.pop(0)}
            else: dm = {1: pend.pop(0)}
        ac = ACC2 if s_ < 7 else ACC3
        mfs = [([("a", n)] if rt == 0 else [], f"{MF16} {vr(ac+4*rt)}, {vr(WF+4*n)}, {vr(AFB[n % 3]+4*rt)}, {vr(ac+4*rt) if n not in (0, 28) else 0}") for rt in range(4)]
        reads = ard(n + 2) if n + 2 < 36 else []
        run_slots(mfs, reads, [], dm, rper=1.0)
    stamp(name="T23")
    vA2 = 5
    a(f"""
    s_lshl_b32 s{sT0}, s{sW}, 12
    s_add_u32 s{sT0}, s{sT0}, {LK}
    v_add_u32 v{vAR}, s{sT0}, v{vD}
    s_cmp_eq_u32 s{sKH}, 0
    s_cbranch_scc0 L_k1
    """)
    for x, ac in enumerate((ACC2, ACC3)):
        for r in range(2): a(f"ds_write_b128 v{vAR}, {vr(ac+4*(2+r))} offset:{x*2048+r*1024}")
    a("s_branch L_k2")
    a.label("L_k1")
    for x, ac in enumerate((ACC2, ACC3)):
        for r in range(2): a(f"ds_write_b128 v{vAR}, {vr(ac+4*r)} offset:{x*2048+r*1024}")
    for x, ac in enumerate((ACC2, ACC3)):
        for i in range(8): a(f"v_mov_b32 v{ac+i}, v{ac+8+i}")
    a.label("L_k2")
    a(f"""
    s_xor_b32 s{sT0}, s{sW}, 4
    s_lshl_b32 s{sT0}, s{sT0}, 12
    s_add_u32 s{sT0}, s{sT0}, {LK}
    v_add_u32 v{vA2}, s{sT0}, v{vD}
    s_waitcnt lgkmcnt(0)
    s_barrier
    """)
    for x in range(2):
        for r in range(2): a(f"ds_read_b128 {vr(TM+8*x+4*r)}, v{vA2} offset:{x*2048+r*1024}")
    a("s_waitcnt vmcnt(0) lgkmcnt(0)")
    for x, ac in enumerate((ACC2, ACC3)):
        for i in range(8): a(f"v_add_f32 v{ac+i}, v{ac+i}, v{TM+8*x+i}")
    Tz = TM + 16
    for i in range(8): a(f"v_mul_f32 v{Tz+i}, {hx(-LOG2E)}, v{ACC2+i}")
    for i in range(8): a(f"v_exp_f32 v{Tz+i}, v{Tz+i}")
    for i in range(8): a(f"v_mul_f32 v{ACC2+i}, v{ACC2+i}, v{ACC3+i}")
    for i in range(8): a(f"v_add_f32 v{Tz+i}, 1.0, v{Tz+i}")
    for i in range(8): a(f"v_rcp_f32 v{Tz+i}, v{Tz+i}")
    for r in range(2):
        for d in range(2):
            a(f"v_lshlrev_b32 v{TM+4*r+2*d}, 16, v{XR+2*r+d}")
            a(f"v_and_b32 v{TM+4*r+2*d+1}, 0xffff0000, v{XR+2*r+d}")
    for i in range(8): a(f"v_fmac_f32 v{TM+i}, v{ACC2+i}, v{Tz+i}")
    for r in range(2):
        a(f"v_cvt_pk_bf16_f32 v{Tz+2*r}, v{TM+4*r}, v{TM+4*r+1}")
        a(f"v_cvt_pk_bf16_f32 v{Tz+2*r+1}, v{TM+4*r+2}, v{TM+4*r+3}")
    a(f"""
    s_movk_i32 s{sT1}, 0x4000
    buffer_store_dwordx2 v[{Tz}:{Tz+1}], v{vXO}, {sr(SOUT)}, 0 offen
    buffer_store_dwordx2 v[{Tz+2}:{Tz+3}], v{vXO}, {sr(SOUT)}, s{sT1} offen
    """)
    if STAMP:
        stamp(name="final"); stamp(True)
        a(f"""
        s_lshl_b32 s{sT0}, s2, 3
        s_add_u32 s{sT0}, s{sT0}, s{sW}
        s_lshl_b32 s{sT0}, s{sT0}, 8
        s_add_u32 s{sT0}, s{sT0}, {WS_STAMP}
        s_mov_b32 s{SWS+2}, {WS_STAMP + (1 << 20)}
        v_lshlrev_b32 v{TM}, 2, v{vL}
        buffer_store_dword v{vSTAMP}, v{TM}, {sr(SWS)}, s{sT0} offen
        """)
        print("stamps:", nstamp[0], file=sys.stderr)
        open("snames.txt", "w").write("\n".join(SNAMES))
    a.label("L_end")
    a("s_endpgm")
    a.items += ool.items
    return dict(lds=LDS_TOTAL, vgpr=256, sgpr=100)

HEADER = open("cdna_kernels/%s.s.ref" % NAME).read().split("; Override launch")[0]

def build(path):
    a = Asm(); info = gen(a)
    items = []; inside = False
    for k, x in a.items:
        if k == 'l' and x == "X_begin": inside = True
        if k == 'l' and x == "X_end": inside = False
        if inside and k == 'i':
            if OPT["x_nodma"] and x.startswith("buffer_load") and x.endswith("lds"): continue
            if OPT["x_nomfma"] and x.startswith("v_mfma"): continue
            if OPT["x_nords"] and x.startswith("ds_read"): continue
            if OPT["x_nostat"] and re.match(r"(v_fmac_f32 v1[67]|v_add_f32 v1[45]|v_lshlrev_b32 v18, 16|v_and_b32 v19, 0xffff0000)", x): continue
        items.append((k, x))
    a.items = items
    txt = a.render()
    label = NAME + "_kernel"
    n = sum(1 for k, _ in a.items if k == 'i')
    print("instrs", n, "nops", a.nnop, file=sys.stderr)
    out = HEADER + f"; @launch grid=(256,1,1) block=(512,1,1) lds={info['lds']}\n"
    out += '.amdgcn_target "amdgcn-amd-amdhsa--gfx950"\n.text\n'
    out += f".globl {label}\n.p2align 8\n.type {label},@function\n{label}:\n"
    out += txt.replace("CODE_BYTES", "(L_code_end - L_pc)")
    out += "L_code_end:\n"
    out += f""".section .rodata,"a"
.p2align 6
.amdhsa_kernel {label}
  .amdhsa_next_free_vgpr {info['vgpr']}
  .amdhsa_next_free_sgpr {info['sgpr']}
  .amdhsa_accum_offset {info['vgpr']}
  .amdhsa_group_segment_fixed_size 0
  .amdhsa_kernarg_size 80
  .amdhsa_user_sgpr_count 2
  .amdhsa_user_sgpr_kernarg_segment_ptr 1
  .amdhsa_system_sgpr_workgroup_id_x 1
.end_amdhsa_kernel
"""
    open(path, "w").write(out)

if __name__ == "__main__":
    path = sys.argv[1]
    for arg in sys.argv[2:]:
        if arg == "stamp": STAMP = True
        elif "=" in arg:
            k, v = arg.split("="); assert k in OPT, k; OPT[k] = int(v)
    build(path)
```

```python
import sys, math, struct, re
sys.path.insert(0, "gen")
from asmlib import Asm

NAME = "recurrent_scan__sliding_block__geglu_ffn__prompt"
WS_H = 0
WS_O = 56 * 128 * 1024
WS_QKV = 72 * 128 * 1024
WS_F = WS_QKV + 96 * 65536
WS_END = WS_F + 4 * 4096
LOG2E = 1.4426950408889634
QSCALE = 0.25 * LOG2E
GK1 = -2.0 * math.sqrt(2.0 / math.pi) * LOG2E
GK2 = GK1 * 0.044715
NEGBIG = "0xf149f2ca"
def f2u(x): return struct.unpack("<I", struct.pack("<f", x))[0]
def hx(x): return "0x%08x" % f2u(x)
def vr(b, n=4): return f"v[{b}:{b+n-1}]"
def sr(b, n=4): return f"s[{b}:{b+n-1}]"

class Cnt:
    def __init__(self, name, mx): self.q = []; self.name = name; self.mx = mx; self.total = 0; self.marks = {}
    def issue(self, tag, n=1): self.q += [tag] * n; self.total += n
    def wait(self, tag):
        idxs = [i for i, t in enumerate(self.q) if t == tag]
        if not idxs: return None
        n = min(len(self.q) - 1 - max(idxs), self.mx)
        self.q = self.q[len(self.q) - n:] if n else []
        return f"s_waitcnt {self.name}({n})"
    def mark(self, tag): self.marks[tag] = self.total
    def peek(self, tag): return f"s_waitcnt {self.name}({min(self.total - self.marks[tag], self.mx)})"
    def drain(self): self.q = []; return f"s_waitcnt {self.name}(0)"
    def save(self): return (list(self.q), self.total, dict(self.marks))
    def restore(self, st): self.q, self.total, self.marks = list(st[0]), st[1], dict(st[2])

STAMP = False
SNAMES = []
WS_STAMP = 32 << 20
OPT = dict(codepf=32, rot=4, rot2=1, fine=0, start=1, fper=3, early_b=2, wpf=1, hpf=0, p2late=1, ck3=4, ck4=13, pub3=1, gdelay=20, grate=40, odel=2, dbgst=0, x_nodma=0, x_nomfma=0, x_nostat=0, x_nords=0)

def gen(a):
    SC = " sc1"
    vm = Cnt("vmcnt", 63); lg = Cnt("lgkmcnt", 15)
    ool = Asm()
    def W(x):
        if x: a(x)
    SX, SU0, SU1, SU2, SPG, SPU, SWS, SDBG = 24, 28, 32, 36, 40, 44, 48, 52
    sW, sMG, sNH, sRB, sCGQ, sCGL, sTB, sRL = 56, 57, 58, 59, 60, 61, 62, 63
    sP12, sKX, sK0, sK12, sT0, sT1, sT2, sT3 = 64, 65, 66, 67, 68, 69, 70, 71
    sLX, sLW, sU0, sPF, sXB, sSC0, sP0, sFL = 72, 73, 74, 75, 76, 77, 78, 79
    sCNT = 80
    SWD, SWO, SOUT = 28, 32, 36
    sHD, sQB, sJS, sMT, sNT, sCT, sKH, sAO = 81, 82, 83, 84, 85, 86, 87, 88
    sWQ, sWL, sROT, sTAG, sE0, sE1 = 89, 90, 91, 96, 97, 98
    sR2 = 63
    STP = 92
    STP = 20
    sPFo = 99
    R2MASK = 7 if OPT['rot2'] else 0
    ROTMASK = {1: 0, 2: 4, 4: 6, 8: 7}[OPT['rot']]
    uid = [0]
    def U(): uid[0] += 1; return uid[0]
    nstamp = [0]
    def fstamp(name):
        if OPT["fine"] == 1: stamp(name=name)
    def f2stamp(name):
        if OPT["fine"] == 2: stamp(name=name)
    def f3stamp(name):
        if OPT["fine"] == 3: stamp(name=name)
    def stamp(real=False, name=""):
        if not STAMP: return
        i = nstamp[0]; nstamp[0] += 1
        SNAMES.append(name)
        a("s_memrealtime s[92:93]" if real else "s_memtime s[92:93]")
        a("s_waitcnt lgkmcnt(0)"); lg.q = []
        a(f"v_writelane_b32 v{vSTAMP}, s92, {i}")
    def rare(cond, body):
        n = U()
        a.extend(cond)
        a(f"s_cbranch_scc1 R{n}")
        a.label(f"B{n}")
        ool.label(f"R{n}")
        ool("s_nop 7"); ool("s_nop 7")
        ool(body)
        ool("s_nop 7")
        ool(f"s_branch B{n}")
    vL, vX0, vX1, vWq, vW12, vWg = 0, 1, 2, 3, 4, 5
    vXR = [6, 7, 8, 9]; vWR = [10, 11, 12, 13]
    vS = [14, 15]; vQ = [16, 17]; vST = [18, 19]
    SEL = 20; CA = [24, 28, 32]
    FR = 36; NF = 9
    vD, vPOLL, vPO, vSTAMP = 72, 73, 74, 75
    SPARE = 76
    vPF, vJK = 74, 73
    ACC = 80; XF = 128; ACC1 = 40
    def xf(s): return XF + s * 4
    def acc(u): return ACC + u * 16
    SLOT = 40960
    SCR = 3 * SLOT
    L_RS = SCR
    L_CSA = SCR + 1024
    L_CSB = SCR + 2560
    LK = SCR + 4096; LV = LK + 16384; LONE = LV + 16384 + 128
    LDS_TOTAL = 163840
    T = [FR + i for i in range(8)]

    a("s_cmp_ge_u32 s2, 256")
    a("s_cbranch_scc1 L_end")
    a("s_load_dwordx16 s[4:19], s[0:1], 0")
    a("s_load_dwordx4 s[20:23], s[0:1], 64")
    if OPT["codepf"]:
        a(f"""
        s_cmp_ge_u32 s2, {OPT["codepf"]}
        s_cbranch_scc1 L_npf
        s_getpc_b64 s[92:93]
        L_pc:
        s_and_b32 s92, s92, 0xffffff00
        s_and_b32 s93, s93, 0xffff
        s_mov_b32 s94, CODE_BYTES
        s_mov_b32 s95, 0x20000
        v_lshlrev_b32 v{T[0]}, 7, v0
        buffer_load_dword v{vPOLL}, v{T[0]}, s[92:95], 0 offen
        L_npf:
        """)
    a(f"""
    v_lshrrev_b32 v{T[0]}, 6, v0
    v_and_b32 v{vL}, 63, v0
    v_readfirstlane_b32 s{sW}, v{T[0]}
    s_and_b32 s{sT0}, s2, 7
    s_lshr_b32 s{sT1}, s2, 3
    s_and_b32 s{sRB}, s{sT0}, 1
    s_lshl_b32 s{sRB}, s{sRB}, 3
    s_and_b32 s{sRL}, s{sT1}, 7
    s_add_u32 s{sRB}, s{sRB}, s{sRL}
    s_lshr_b32 s{sCGQ}, s{sT0}, 1
    s_lshr_b32 s{sCGL}, s{sT1}, 3
    s_lshl_b32 s{sROT}, s{sCGL}, 1
    s_add_u32 s{sROT}, s{sROT}, s{sRL}
    s_and_b32 s{sROT}, s{sROT}, {ROTMASK}
    s_lshl_b32 s{sLX}, s{sW}, 11
    s_lshl_b32 s{sLW}, s{sW}, 10
    s_lshl_b32 s{sXB}, s{sRB}, 17
    s_mul_i32 s{sT0}, s{sCGQ}, 3
    s_add_u32 s{sT1}, s{sT0}, s{sCGL}
    s_add_u32 s{sT2}, s{sT0}, 12
    s_mov_b32 s{sP0}, s{sT1}
    s_add_u32 s{sT3}, s{sP0}, 12
    s_add_u32 s{sPF}, s{sCGQ}, 24
    s_movk_i32 s{sP12}, 3584
    s_cmp_eq_u32 s{sCGL}, 3
    s_cselect_b32 s{sTB}, 1, 0
    s_cselect_b32 s{sU0}, s{sT2}, s{sT1}
    s_cselect_b32 s{sPF}, s{sPF}, s{sT3}
    s_cselect_b32 s{sP12}, 3072, s{sP12}
    """)
    if STAMP: a(f"v_mov_b32 v{vSTAMP}, 0")
    a(f"""
    v_lshrrev_b32 v{T[0]}, 3, v{vL}
    v_and_b32 v{T[1]}, 7, v{vL}
    v_lshrrev_b32 v{T[2]}, 4, v{vL}
    v_xor_b32 v{T[3]}, v{T[1]}, v{T[2]}
    s_lshl_b32 s{sT0}, s{sW}, 4
    v_add_u32 v{T[4]}, s{sT0}, v{T[0]}
    v_lshlrev_b32 v{T[4]}, 10, v{T[4]}
    v_lshl_add_u32 v{vX0}, v{T[3]}, 4, v{T[4]}
    v_xor_b32 v{vX1}, 64, v{vX0}
    v_add_u32 v{vX1}, 0x2000, v{vX1}
    s_lshl_b32 s{sT0}, s{sW}, 3
    v_add_u32 v{T[4]}, s{sT0}, v{T[0]}
    v_and_b32 v{T[2]}, 1, v{T[2]}
    v_lshlrev_b32 v{T[2]}, 2, v{T[2]}
    v_xor_b32 v{T[5]}, v{T[1]}, v{T[2]}
    v_lshlrev_b32 v{T[5]}, 4, v{T[5]}
    v_mul_u32_u24 v{vWq}, 3072, v{T[4]}
    v_add_u32 v{vWq}, v{vWq}, v{T[5]}
    v_mul_u32_u24 v{vWg}, 3584, v{T[4]}
    v_add_u32 v{vWg}, v{vWg}, v{T[5]}
    v_mul_u32_u24 v{vW12}, s{sP12}, v{T[4]}
    v_add_u32 v{vW12}, v{vW12}, v{T[5]}
    s_lshl_b32 s{sP12}, s{sP12}, 6
    s_mov_b32 s{SX+2}, {2048*1024}
    s_mov_b32 s{SX+3}, 0x20000
    s_mov_b32 s{SU0+3}, 0x20000
    s_mov_b32 s{SU1+3}, 0x20000
    s_mov_b32 s{SU2+3}, 0x20000
    s_waitcnt lgkmcnt(0)
    """)
    stamp(); stamp(True)
    QSZ, GSZ = 512 * 3072, 512 * 3584
    a(f"""
    s_mov_b32 s{SX}, s4
    s_and_b32 s{SX+1}, s5, 0xffff
    s_lshl_b32 s{sT0}, s{sU0}, 7
    s_add_u32 s{SU0}, s6, s{sT0}
    s_addc_u32 s{SU0+1}, s7, 0
    s_and_b32 s{SU0+1}, s{SU0+1}, 0xffff
    s_sub_u32 s{SU0+2}, {QSZ}, s{sT0}
    """)
    for k, (S, plo) in enumerate(((SU1, 12), (SU2, 14))):
        a(f"""
        s_lshl_b32 s{sT0}, s{sP0}, 7
        s_add_u32 s{sT1}, s{sU0}, {k+1}
        s_lshl_b32 s{sT1}, s{sT1}, 7
        s_mov_b32 s{S+2}, {GSZ}
        s_cmp_eq_u32 s{sTB}, 1
        s_cselect_b32 s{sT0}, s{sT1}, s{sT0}
        s_cselect_b32 s{S}, s6, s{plo}
        s_cselect_b32 s{S+1}, s7, s{plo+1}
        s_cselect_b32 s{S+2}, {QSZ}, s{S+2}
        s_add_u32 s{S}, s{S}, s{sT0}
        s_addc_u32 s{S+1}, s{S+1}, 0
        s_and_b32 s{S+1}, s{S+1}, 0xffff
        s_sub_u32 s{S+2}, s{S+2}, s{sT0}
        """)
    def dma_p0(t):
        sl = (t % 3) * SLOT
        pre = [f"s_add_u32 s{sT3}, s{sROT}, {t}", f"s_and_b32 s{sT3}, s{sT3}, 7", f"s_lshl_b32 s{sKX}, s{sT3}, 7",
               f"s_add_u32 s{sKX}, s{sKX}, s{sXB}", f"s_mul_i32 s{sK0}, s{sT3}, {64*3072}", f"s_mul_i32 s{sK12}, s{sP12}, s{sT3}"]
        g = [(pre + [f"s_add_u32 m0, s{sLX}, {sl}"], f"buffer_load_dwordx4 v{vX0}, {sr(SX)}, s{sKX} offen lds"),
             ([f"s_add_u32 m0, s{sLX}, {sl+1024}"], f"buffer_load_dwordx4 v{vX1}, {sr(SX)}, s{sKX} offen lds"),
             ([f"s_add_u32 m0, s{sLW}, {sl+16384}"], f"buffer_load_dwordx4 v{vWq}, {sr(SU0)}, s{sK0} offen lds"),
             ([f"s_add_u32 m0, s{sLW}, {sl+24576}"], f"buffer_load_dwordx4 v{vW12}, {sr(SU1)}, s{sK12} offen lds"),
             ([f"s_add_u32 m0, s{sLW}, {sl+32768}"], f"buffer_load_dwordx4 v{vW12}, {sr(SU2)}, s{sK12} offen lds")]
        return g, ("st", t)
    def dma_p1(Tq):
        sl = ((8 + Tq) % 3) * SLOT
        g = []
        for c2 in range(2):
            sk = sK0 if c2 == 0 else sK12
            pre = [f"s_add_u32 s{sT3}, s{sROT}, {2*Tq+c2}", f"s_and_b32 s{sT3}, s{sT3}, 7", f"s_mul_i32 s{sk}, s{sT3}, {64*3584}"]
            g += [(pre + [f"s_add_u32 m0, s{sLW}, {sl+c2*16384}"], f"buffer_load_dwordx4 v{vWg}, {sr(SPG)}, s{sk} offen lds"),
                  ([f"s_add_u32 m0, s{sLW}, {sl+c2*16384+8192}"], f"buffer_load_dwordx4 v{vWg}, {sr(SPU)}, s{sk} offen lds")]
        return g, ("st", 8 + Tq)
    def emit_dma(d):
        g, tag = d
        for pre, ld in g:
            a.extend(pre); a(ld); vm.issue(tag)
    emit_dma(dma_p0(0))
    if OPT["start"] == 0: emit_dma(dma_p0(1))
    for S, plo in ((SPG, 12), (SPU, 14)):
        a(f"""
        s_lshl_b32 s{sT0}, s{sPF}, 7
        s_add_u32 s{S}, s{plo}, s{sT0}
        s_addc_u32 s{S+1}, s{plo+1}, 0
        s_and_b32 s{S+1}, s{S+1}, 0xffff
        s_sub_u32 s{S+2}, {GSZ}, s{sT0}
        s_mov_b32 s{S+3}, 0x20000
        """)
    a(f"""
    s_mov_b32 s{SWS}, s22
    s_and_b32 s{SWS+1}, s23, 0xffff
    s_mov_b32 s{SWS+2}, {WS_END}
    s_mov_b32 s{SWS+3}, 0x20000
    s_mov_b32 s{SDBG}, s20
    s_and_b32 s{SDBG+1}, s21, 0xffff
    s_movk_i32 s{SDBG+2}, 256
    s_mov_b32 s{SDBG+3}, 0x20000
    s_lshr_b32 s{sMG}, s{sW}, 1
    s_and_b32 s{sNH}, s{sW}, 1
    """)
    rare([f"s_or_b32 s{sT0}, s2, s{sW}", f"s_cmp_eq_u32 s{sT0}, 0"], f"""
    s_memrealtime s[92:93]
    s_waitcnt lgkmcnt(0)
    s_or_b32 s92, s92, 1
    v_mov_b32 v{T[0]}, s92
    s_mov_b64 exec, 1
    buffer_store_dword v{T[0]}, off, {sr(SDBG)}, 0{SC}
    s_mov_b64 exec, -1
    """)
    a(f"""
    s_and_b32 s{sT0}, s{sMG}, 1
    s_lshl_b32 s{sT0}, s{sT0}, 1
    s_lshr_b32 s{sT1}, s{sMG}, 1
    s_xor_b32 s{sT1}, s{sT1}, s{sNH}
    s_add_u32 s{sT0}, s{sT0}, s{sT1}
    v_and_b32 v{T[0]}, 31, v{vL}
    v_lshrrev_b32 v{T[1]}, 5, v{vL}
    v_bfe_u32 v{T[2]}, v{vL}, 1, 3
    v_xor_b32 v{T[2]}, v{T[2]}, v{T[1]}
    v_lshlrev_b32 v{T[2]}, 4, v{T[2]}
    v_lshl_add_u32 v{T[2]}, v{T[0]}, 7, v{T[2]}
    s_lshl_b32 s{sT1}, s{sMG}, 12
    v_add_u32 v{T[2]}, s{sT1}, v{T[2]}
    s_lshl_b32 s{sT1}, s{sT0}, 5
    v_xor_b32 v{vXR[0]}, s{sT1}, v{T[2]}
    v_xor_b32 v{vXR[1]}, 32, v{vXR[0]}
    v_xor_b32 v{vXR[2]}, 64, v{vXR[0]}
    v_xor_b32 v{vXR[3]}, 0x60, v{vXR[0]}
    """)
    a(f"""
    v_bfe_u32 v{T[2]}, v{vL}, 2, 2
    v_lshl_add_u32 v{T[3]}, v{T[1]}, 3, v{T[2]}
    v_lshlrev_b32 v{T[3]}, 7, v{T[3]}
    v_lshrrev_b32 v{T[2]}, 1, v{T[2]}
    v_xor_b32 v{T[2]}, s{sNH}, v{T[2]}
    v_lshl_add_u32 v{T[3]}, v{T[2]}, 6, v{T[3]}
    v_bfe_u32 v{T[2]}, v{vL}, 4, 1
    v_lshl_add_u32 v{T[3]}, v{T[2]}, 5, v{T[3]}
    v_and_b32 v{T[2]}, 3, v{vL}
    v_lshl_add_u32 v{T[3]}, v{T[2]}, 3, v{T[3]}
    s_lshl_b32 s{sT1}, s{sT0}, 11
    v_xor_b32 v{vWR[0]}, s{sT1}, v{T[3]}
    v_xor_b32 v{vWR[1]}, 0x800, v{vWR[0]}
    v_xor_b32 v{vWR[2]}, 0x1000, v{vWR[0]}
    v_xor_b32 v{vWR[3]}, 0x1800, v{vWR[0]}
    v_lshlrev_b32 v{vD}, 4, v{vL}
    """)
    a(f"""
    v_lshrrev_b32 v{T[2]}, 4, v{vL}
    v_xor_b32 v{T[2]}, v{T[2]}, v{vL}
    v_and_b32 v{T[2]}, 1, v{T[2]}
    v_cmp_eq_u32 vcc, 0, v{T[2]}
    v_mov_b32 v{T[3]}, 0x3f803f80
    v_cndmask_b32 v{SEL}, 0, v{T[3]}, vcc
    v_mov_b32 v{SEL+1}, v{SEL}
    v_mov_b32 v{SEL+2}, v{SEL}
    v_mov_b32 v{SEL+3}, v{SEL}
    v_mov_b32 v{T[4]}, v{T[3]}
    v_mov_b32 v{T[5]}, v{T[3]}
    v_mov_b32 v{T[6]}, v{T[3]}
    v_mov_b32 v{T[7]}, v{T[3]}
    v_add_u32 v{T[0]}, {LONE}, v{vD}
    ds_write_b128 v{T[0]}, {vr(T[4])}
    """)
    for r in vS + vQ: a(f"v_mov_b32 v{r}, 0")
    lg.issue("misc", 1)
    if OPT["start"] == 0: emit_dma(dma_p0(2))
    else: emit_dma(dma_p0(1))
    def lds(lst):
        for ins, tag in lst: a(ins); lg.issue(tag)
    def run_slots(mfs, reads=(), valu=(), dmas=None, rstart=0, rper=2.0, vper=2, fill=None, fper=0):
        ri = vi = 0
        for k, (tags, ins) in enumerate(mfs):
            for tg in tags: W(lg.wait(tg))
            a(ins)
            if dmas and k in dmas: a.extend(dmas[k][0])
            for _ in range(vper):
                if vi < len(valu): a(valu[vi]); vi += 1
            if k >= rstart:
                lim = int(rper * (k - rstart + 1) + 0.999)
                while ri < len(reads) and ri < lim and reads[ri][2] <= k:
                    a(reads[ri][0]); lg.issue(reads[ri][1]); ri += 1
            if fill is not None:
                n = 0
                while fill and n < fper:
                    n += do_fill(fill.pop(0))
            if dmas and k in dmas: a(dmas[k][1]); vm.issue(dmas[k][2])
        while vi < len(valu): a(valu[vi]); vi += 1
        while ri < len(reads): a(reads[ri][0]); lg.issue(reads[ri][1]); ri += 1
    def do_fill(it):
        kind = it[0]
        if kind == 'v': a(it[1]); return 2 if it[1].startswith(("v_exp", "v_rcp")) else 1
        if kind == 's': a(it[1]); return 0.5
        if kind == 'm': a(it[1]); vm.issue(it[2]); return 1
        raise ValueError
    def slot_adv(t_next, regs):
        d = SLOT if (t_next % 3) else -2 * SLOT
        return [f"v_add_u32 v{r}, {d & 0xffffffff}, v{r}" for r in regs]
    MF32 = "v_mfma_f32_32x32x16_bf16"; MF16 = "v_mfma_f32_16x16x32_bf16"

    a(f"""
    v_and_b32 v{vPO}, 3, v{vL}
    v_lshlrev_b32 v{vPO}, 7, v{vPO}
    s_lshr_b32 s{sPFo}, s2, 3
    s_lshl_b32 s{sPFo}, s{sPFo}, 3
    s_add_u32 s{sPFo}, s{sPFo}, s{sW}
    s_lshl_b32 s{sPFo}, s{sPFo}, 10
    s_and_b32 s{sT0}, s2, 1
    s_lshl_b32 s{sT0}, s{sT0}, 9
    s_add_u32 s{sPFo}, s{sPFo}, s{sT0}
    v_add_u32 v{vPF}, s{sPFo}, v{vPO}
    s_mov_b32 s{STP}, s8
    s_and_b32 s{STP+1}, s9, 0xffff
    s_mov_b32 s{STP+2}, {512*1024}
    s_mov_b32 s{STP+3}, 0x20000
    """)
    def wtouch(k):
        pre = []
        if k == 2: pre = [f"s_mov_b32 s{STP}, s16", f"s_and_b32 s{STP+1}, s17, 0xffff", f"s_mov_b32 s{STP+2}, {1792*1024}"]
        kk = k if k < 2 else k - 2
        pre += [f"s_mov_b32 m0, {LONE + 1280}", f"s_mov_b32 s{sPFo}, {kk << 18}"]
        a.extend(pre)
        a(f"buffer_load_dword v{vPF}, {sr(STP)}, s{sPFo} offen lds"); vm.issue("wpf")
    def fslot(n): return FR + (n % NF) * 4
    def rd_x(s): return [(f"ds_read_b128 {vr(xf(s))}, v{vXR[s & 3]}", ("x", s))]
    def rd_w0(s, u):
        f = fslot(3 * s + u)
        return [(f"ds_read_b64_tr_b16 {vr(f+2*hh, 2)}, v{vWR[s & 3]} offset:{16384+u*8192+hh*512}", ("w", s, u)) for hh in range(2)]
    def stat_ops(s):
        o = []
        for j in range(4):
            x = xf(s) + j
            o += [f"v_lshlrev_b32 v{vST[0]}, 16, v{x}", f"v_and_b32 v{vST[1]}, 0xffff0000, v{x}",
                  f"v_add_f32 v{vS[0]}, v{vS[0]}, v{vST[0]}", f"v_add_f32 v{vS[1]}, v{vS[1]}, v{vST[1]}",
                  f"v_fmac_f32 v{vQ[0]}, v{vST[0]}, v{vST[0]}", f"v_fmac_f32 v{vQ[1]}, v{vST[1]}, v{vST[1]}"]
        return o
    stamp(name="setup")
    W(vm.wait(("st", 0)))
    if OPT["start"] == 1: emit_dma(dma_p0(2))
    a(lg.drain())
    a("s_barrier")
    stamp(name="wait st0")
    a.label("X_begin")
    for s in range(2):
        lds(rd_x(s))
        for u in range(3): lds(rd_w0(s, u))
    pend = []
    WTH = [3, 5, 7, 9, 11, 13, 15]
    for h in range(16):
        t = h >> 1; odd = h & 1
        valu = []
        if odd:
            if t < 7: valu = slot_adv(t + 1, [vXR[0], vWR[0], vXR[1], vWR[1], vXR[2], vWR[2], vXR[3], vWR[3]])
            else: valu = slot_adv(t + 1, vWR)
            g, tag = dma_p0(t + 3) if t + 3 < 8 else dma_p1(t + 3 - 8)
            pend = [(pre, ld, tag) for pre, ld in g]
        valu += stat_ops(2 * h)
        dm = {}
        if h >= 1:
            if odd and h < 15: now = pend[:3]; pend = pend[3:]; sl_ = [0, 2, 4]
            elif odd: now = pend; pend = []; sl_ = [0, 2, 3, 5]
            else: now = pend; pend = []; sl_ = [1, 5]
            dm = dict(zip(sl_, now))

        mfs = []
        for ss in range(2):
            s = 2 * h + ss
            for u in range(3):
                tags = ([("x", s)] if u == 0 else []) + [("w", s, u)]
                mfs.append((tags, f"{MF32} {vr(acc(u),16)}, {vr(fslot(3*s+u))}, {vr(xf(s))}, {vr(acc(u),16) if s else 0}"))
                if (s & 3) == 0:
                    mfs.append(([], f"{MF16} {vr(CA[u])}, {vr(fslot(3*s+u))}, {vr(SEL)}, {vr(CA[u]) if s else 0}"))
        free = {}
        idx = 0
        for ss in range(2):
            for u in range(3):
                idx += 2 if ((2 * h + ss) & 3) == 0 else 1
                free[(ss, u)] = idx - 1
        reads = []
        if h + 1 < 16:
            s0 = 2 * h + 2
            reads += [(i_, tg, 0) for i_, tg in rd_x(s0)]
            for u in range(3): reads += [(i_, tg, 0) for i_, tg in rd_w0(s0, u)]
            reads += [(i_, tg, 0) for i_, tg in rd_x(s0 + 1)]
            for u in range(3): reads += [(i_, tg, free[(0, u)]) for i_, tg in rd_w0(s0 + 1, u)]
        if h == 7:
            rare([f"s_cmp_eq_u32 s{sW}, 0"], f"buffer_load_dword v{vPOLL}, off, {sr(SDBG)}, 0")
            vm.mark("nonce")
        if OPT["wpf"] and h in WTH: wtouch(WTH.index(h))
        n = len(mfs)
        run_slots(mfs, reads, valu, dm, rstart=0, rper=(3.0 if odd else 2.0), vper=(6 if odd else 3))
        if not odd:
            a(lg.drain())
            W(vm.wait(("st", t + 1)))
            a("s_barrier")
    a.label("X_end")
    stamp(name="pass0")
    a(f"""
    s_lshl_b32 s{sFL}, s{sRB}, 4
    s_lshl_b32 s{sT0}, s{sCGQ}, 2
    s_add_u32 s{sT0}, s{sT0}, s{sCGL}
    s_add_u32 s{sFL}, s{sFL}, s{sT0}
    s_lshr_b32 s{sQB}, s{sRB}, 1
    s_and_b32 s{sHD}, s{sFL}, 31
    s_lshl_b32 s{sMT}, s{sCGQ}, 3
    s_add_u32 s{sMT}, s{sMT}, s{sRL}
    s_and_b32 s{sNT}, s2, 1
    s_lshl_b32 s{sNT}, s{sNT}, 2
    s_add_u32 s{sNT}, s{sNT}, s{sCGL}
    s_and_b32 s{sCT}, s{sW}, 3
    s_lshr_b32 s{sKH}, s{sW}, 2
    s_sub_u32 s{sJS}, 8, s{sW}
    s_cmp_eq_u32 s{sQB}, 0
    s_cselect_b32 s{sJS}, s{sJS}, 0
    """)

    E = 40
    vNM, vVE, vA_, vC1, vC2 = vS[0], vQ[0], vS[1], vQ[1], vST[0]
    vQA, vHA = vX0, vX1
    rare([f"s_cmp_eq_u32 s{sW}, 0"], f"""
    {vm.peek("nonce")}
    s_mov_b32 s{sCNT}, 0
    L_nc:
    v_readfirstlane_b32 s{sTAG}, v{vPOLL}
    s_nop 3
    s_cmp_lg_u32 s{sTAG}, 0
    s_cbranch_scc1 L_nd
    s_add_u32 s{sCNT}, s{sCNT}, 1
    s_cmp_gt_u32 s{sCNT}, 0x8000
    s_cbranch_scc1 L_nd
    s_sleep 2
    buffer_load_dword v{vPOLL}, off, {sr(SDBG)}, 0{SC}
    s_waitcnt vmcnt(0)
    s_branch L_nc
    L_nd:
    """)
    def cs_publish(nu, base):
        a(f"""
        v_lshrrev_b32 v{FR}, 4, v{vL}
        v_lshlrev_b32 v{FR}, 4, v{FR}
        v_and_b32 v{FR+1}, 1, v{vL}
        v_lshl_add_u32 v{FR}, v{FR+1}, 6, v{FR}
        s_lshl_b32 s{sT0}, s{sNH}, 2
        s_add_u32 s{sT0}, s{sT0}, s{sMG}
        s_mul_i32 s{sT0}, s{sT0}, {nu*128}
        s_add_u32 s{sT0}, s{sT0}, {base}
        v_add_u32 v{FR}, s{sT0}, v{FR}
        """)
        for u in range(nu): a(f"ds_write_b128 v{FR}, {vr(CA[u])} offset:{u*128}")
        a(f"""
        v_min_u32 v{FR+1}, {nu*16-1}, v{vL}
        v_lshlrev_b32 v{FR+1}, 3, v{FR+1}
        s_mul_i32 s{sT0}, s{sW}, {nu*128}
        s_add_u32 s{sT0}, s{sT0}, {base + 8*nu*128}
        v_add_u32 v{FR}, s{sT0}, v{FR+1}
        s_mul_i32 s{sT1}, s{sNH}, {4*nu*128}
        s_add_u32 s{sT1}, s{sT1}, {base}
        v_add_u32 v{FR+1}, s{sT1}, v{FR+1}
        v_lshrrev_b32 v{FR+3}, 5, v{vL}
        v_lshlrev_b32 v{FR+3}, 4, v{FR+3}
        v_add_u32 v{FR+3}, s{sT0}, v{FR+3}
        """)
    def cs_reduce_issue(nu, tmp):
        for m in range(4):
            a(f"ds_read_b64 {vr(tmp+2*m,2)}, v{FR+1} offset:{m*nu*128}"); lg.issue("cp")
    def cs_reduce(nu, tmp):
        W(lg.wait("cp"))
        a(f"""
        v_add_f32 v{tmp}, v{tmp}, v{tmp+2}
        v_add_f32 v{tmp+1}, v{tmp+1}, v{tmp+3}
        v_add_f32 v{tmp+4}, v{tmp+4}, v{tmp+6}
        v_add_f32 v{tmp+5}, v{tmp+5}, v{tmp+7}
        v_add_f32 v{tmp}, v{tmp}, v{tmp+4}
        v_add_f32 v{tmp+1}, v{tmp+1}, v{tmp+5}
        ds_write_b64 v{FR}, {vr(tmp,2)}
        """)
        lg.issue("ct")
    def cs_fold(nu, accf, tmp):
        def rd(u):
            for q in range(4):
                a(f"ds_read_b128 {vr(tmp+16*(u&1)+4*q)}, v{FR+3} offset:{u*128+q*32}"); lg.issue(("cf", u))
        rd(0); rd(1)
        for u in range(nu):
            W(lg.wait(("cf", u)))
            for r in range(16): a(f"v_fmac_f32 v{accf(u)+r}, v{vNM}, v{tmp+16*(u&1)+r}")
            if u + 2 < nu: rd(u + 2)
    L_RS = LK + 8192
    a(f"""
    v_add_f32 v{vS[0]}, v{vS[0]}, v{vS[1]}
    v_add_f32 v{vQ[0]}, v{vQ[0]}, v{vQ[1]}
    v_mov_b32 v{vS[1]}, v{vS[0]}
    v_mov_b32 v{vQ[1]}, v{vQ[0]}
    v_and_b32 v{FR+2}, 31, v{vL}
    v_lshlrev_b32 v{FR+2}, 3, v{FR+2}
    v_permlane32_swap_b32 v{vS[0]}, v{vS[1]}
    v_permlane32_swap_b32 v{vQ[0]}, v{vQ[1]}
    s_lshl_b32 s{sT0}, s{sW}, 8
    s_add_u32 s{sT0}, s{sT0}, {L_RS}
    v_add_u32 v{FR+2}, s{sT0}, v{FR+2}
    v_add_f32 v{vS[0]}, v{vS[0]}, v{vS[1]}
    v_add_f32 v{vS[1]}, v{vQ[0]}, v{vQ[1]}
    ds_write_b64 v{FR+2}, v[{vS[0]}:{vS[1]}]
    v_xor_b32 v{FR+2}, 0x100, v{FR+2}
    """)
    cs_publish(3, LK)
    a(f"""
    v_and_b32 v{vQA}, 31, v{vL}
    v_lshrrev_b32 v{E}, 5, v{vL}
    v_lshlrev_b32 v{vHA}, 4, v{E}
    v_lshl_add_u32 v{vQA}, v{vQA}, 5, v{vHA}
    s_lshl_b32 s{sT0}, s{sRB}, 12
    s_lshl_b32 s{sT1}, s{sMG}, 10
    s_add_u32 s{sT0}, s{sT0}, s{sT1}
    v_add_u32 v{vQA}, s{sT0}, v{vQA}
    s_waitcnt lgkmcnt(0)
    s_barrier
    """)
    lg.q = []
    cs_reduce_issue(3, E)
    a(f"ds_read_b64 v[{vQ[0]}:{vQ[1]}], v{FR+2}"); lg.issue("rs")
    cs_reduce(3, E)
    W(lg.wait("rs"))
    a(f"""
    v_add_f32 v{vS[0]}, v{vS[0]}, v{vQ[0]}
    v_add_f32 v{vS[1]}, v{vS[1]}, v{vQ[1]}
    v_mul_f32 v{vNM}, {hx(-1.0/512)}, v{vS[0]}
    v_mul_f32 v{vQ[1]}, v{vNM}, v{vNM}
    v_mov_b32 v{vST[1]}, {hx(1.0/512)}
    v_fma_f32 v{vVE}, v{vS[1]}, v{vST[1]}, -v{vQ[1]}
    v_max_f32 v{vVE}, 0, v{vVE}
    v_add_f32 v{vVE}, {hx(1e-5)}, v{vVE}
    v_rsq_f32 v{vA_}, v{vVE}
    v_mul_f32 v{vC1}, {hx(GK1)}, v{vA_}
    v_mul_f32 v{vC2}, v{vA_}, v{vA_}
    v_mul_f32 v{vC2}, v{vC2}, v{vA_}
    v_mul_f32 v{vC2}, {hx(GK2)}, v{vC2}
    """)
    cs_fold(3, acc, E)
    stamp(name="E0 serial")
    def f_qkv(x, uadd, tmp, tag):
        o = [('s', f"s_add_u32 s{sE0}, s{sU0}, {uadd}"), ('s', f"s_cmp_lt_u32 s{sE0}, 8\ns_cselect_b32 s{sSC0}, {hx(QSCALE)}, 1.0"),
             ('s', f"s_lshl_b32 s{sE0}, s{sE0}, 2"), ('s', f"s_lshl_b32 s{sE1}, s{sNH}, 1"), ('s', f"s_add_u32 s{sE0}, s{sE0}, s{sE1}"),
             ('s', f"s_lshl_b32 s{sE0}, s{sE0}, 16"), ('s', f"s_add_u32 s{sE0}, s{sE0}, {WS_QKV}"), ('s', f"s_add_u32 s{sE1}, s{sE0}, 0x10000"),
             ('v', f"v_mul_f32 v{tmp+8}, s{sSC0}, v{vA_}")]
        for e in range(2):
            for r in range(8): o.append(('v', f"v_mul_f32 v{x+8*e+r}, v{tmp+8}, v{x+8*e+r}"))
            for r in range(4): o.append(('v', f"v_cvt_pk_bf16_f32 v{tmp+4*e+r}, v{x+8*e+2*r}, v{x+8*e+2*r+1}"))
            o.append(('m', f"buffer_store_dwordx4 {vr(tmp+4*e)}, v{vQA}, {sr(SWS)}, s{sE0 if e == 0 else sE1} offen{SC}", tag))
        return o
    def f_h(g, u, spair, tmp, tag):
        o = [('s', f"s_lshl_b32 s{sE0}, s{spair}, 1"), ('s', f"s_add_u32 s{sE0}, s{sE0}, s{sNH}"), ('s', f"s_lshl_b32 s{sE0}, s{sE0}, 7"),
             ('s', f"s_lshl_b32 s{sE1}, s{sRB}, 2"), ('s', f"s_add_u32 s{sE0}, s{sE0}, s{sE1}"),
             ('s', f"s_add_u32 s{sE0}, s{sE0}, s{sMG}"), ('s', f"s_lshl_b32 s{sE0}, s{sE0}, 10"), ('s', f"s_add_u32 s{sE1}, s{sE0}, 0x10000")]
        t = tmp + 8
        for e in range(2):
            for q in range(2):
                G_, U_ = g + 8 * e + 4 * q, u + 8 * e + 4 * q
                for r in range(4): o.append(('v', f"v_mul_f32 v{t+r}, v{G_+r}, v{G_+r}"))
                for r in range(4): o.append(('v', f"v_fma_f32 v{t+r}, v{t+r}, v{vC2}, v{vC1}"))
                for r in range(4): o.append(('v', f"v_mul_f32 v{t+r}, v{t+r}, v{G_+r}"))
                for r in range(4): o.append(('v', f"v_exp_f32 v{t+r}, v{t+r}"))
                for r in range(4): o.append(('v', f"v_mul_f32 v{G_+r}, v{G_+r}, v{U_+r}"))
                for r in range(4): o.append(('v', f"v_fma_f32 v{t+r}, v{t+r}, v{vVE}, v{vVE}"))
                for r in range(4): o.append(('v', f"v_rcp_f32 v{t+r}, v{t+r}"))
                for r in range(4): o.append(('v', f"v_mul_f32 v{G_+r}, v{G_+r}, v{t+r}"))
                o.append(('v', f"v_cvt_pk_bf16_f32 v{tmp+4*e+2*q}, v{G_}, v{G_+1}"))
                o.append(('v', f"v_cvt_pk_bf16_f32 v{tmp+4*e+2*q+1}, v{G_+2}, v{G_+3}"))
            o.append(('m', f"buffer_store_dwordx4 {vr(tmp+4*e)}, v{vD}, {sr(SWS)}, s{sE0 if e == 0 else sE1} offen{SC}", tag))
        return o
    vWS, vWS2 = vWq, vX1
    sRE, sRLt, sB6, sB8 = sR2, sWQ, sWL, sCGQ
    a(f"""
    v_lshrrev_b32 v{E}, 3, v{vL}
    v_and_b32 v{E+1}, 7, v{vL}
    v_bfe_u32 v{E+2}, v{vL}, 4, 1
    v_lshlrev_b32 v{E+2}, 2, v{E+2}
    v_xor_b32 v{E+1}, v{E+1}, v{E+2}
    v_lshlrev_b32 v{E+1}, 4, v{E+1}
    v_lshl_add_u32 v{vWS}, v{E}, 10, v{E+1}
    s_lshl_b32 s{sT0}, s{sNT}, 7
    s_lshl_b32 s{sT1}, s{sCT}, 14
    s_add_u32 s{sT0}, s{sT0}, s{sT1}
    v_add_u32 v{vWS}, s{sT0}, v{vWS}
    v_add_u32 v{vWS2}, {8192-1024}, v{vWS}
    s_mov_b32 s{SWD}, s16
    s_and_b32 s{SWD+1}, s17, 0xffff
    s_mov_b32 s{SWD+2}, {1792*1024}
    s_mov_b32 s{SWO}, s8
    s_and_b32 s{SWO+1}, s9, 0xffff
    s_mov_b32 s{SWO+2}, {512*1024}
    s_mov_b32 s{SOUT}, s18
    s_and_b32 s{SOUT+1}, s19, 0xffff
    s_mov_b32 s{SOUT+2}, {2048*1024}
    s_lshl_b32 s{sAO}, s{sMT}, 11
    s_lshl_b32 s{sT0}, s{sCT}, 16
    s_add_u32 s{sAO}, s{sAO}, s{sT0}
    s_lshl_b32 s{sT0}, s{sCGL}, 1
    s_add_u32 s{sRLt}, s{sR2}, s{sT0}
    s_and_b32 s{sRLt}, s{sRLt}, {R2MASK}
    s_mov_b32 s{sRE}, s{sRLt}
    s_sub_u32 s{sT0}, s{sRE}, 6
    s_cmp_ge_u32 s{sRE}, 6
    s_cselect_b32 s{sRE}, s{sT0}, s{sRE}
    s_mul_i32 s{sB6}, s{sKH}, 6
    s_lshl_b32 s{sB8}, s{sKH}, 3
    s_add_u32 s{sB8}, s{sB8}, 12
    """)
    AREAS = [0, SLOT, 2 * SLOT]
    def unit_calc(sg):
        if sg < 6:
            return [f"s_add_u32 s{sT2}, s{sRE}, {sg}", f"s_sub_u32 s{sT3}, s{sT2}, 6", f"s_min_u32 s{sT2}, s{sT2}, s{sT3}", f"s_add_u32 s{sT2}, s{sT2}, s{sB6}"]
        return [f"s_add_u32 s{sT2}, s{sRLt}, {sg-6}", f"s_and_b32 s{sT2}, s{sT2}, 7", f"s_add_u32 s{sT2}, s{sT2}, s{sB8}"]
    def wdma(sg):
        ar = AREAS[sg % 3]
        S = SWD if sg < 14 else SWO
        pre = unit_calc(sg) + [f"s_add_u32 m0, s{sLX}, {ar+16384}", f"s_lshl_b32 s{sT0}, s{sT2}, 16"]
        return [(pre, f"buffer_load_dwordx4 v{vWS}, {sr(S)}, s{sT0} offen lds"),
                ([], f"buffer_load_dwordx4 v{vWS2}, {sr(S)}, s{sT0} offen offset:1024 lds")], ("g", sg)
    def wodma(pz):
        ar = AREAS[pz]; g = []
        for q in range(2):
            pre = [f"s_add_u32 m0, s{sLX}, {ar+q*16384}", f"s_lshl_b32 s{sT0}, s{sKH}, 18", f"s_add_u32 s{sT0}, s{sT0}, {(2*pz+q) << 16}"]
            g += [(pre, f"buffer_load_dwordx4 v{vWS}, {sr(SWO)}, s{sT0} offen lds"),
                  ([], f"buffer_load_dwordx4 v{vWS2}, {sr(SWO)}, s{sT0} offen offset:1024 lds")]
        return g, ("wo", pz)
    def odma(pz, ar):
        g = []
        for q in range(2):
            pre = [f"s_add_u32 m0, s{sLX}, {ar+q*16384}", f"s_lshl_b32 s{sT0}, s{sKH}, 20", f"s_add_u32 s{sT0}, s{sT0}, s{sAO}",
                   f"s_add_u32 s{sT0}, s{sT0}, {WS_O + ((2*pz+q) << 18)}"]
            g += [(pre, f"buffer_load_dwordx4 v{vD}, {sr(SWS)}, s{sT0} offen lds"),
                  ([], f"buffer_load_dwordx4 v{vD}, {sr(SWS)}, s{sT0} offen offset:1024 lds")]
        return g, ("od", pz)
    def adma(sg, calc=True):
        ar = AREAS[sg % 3]
        pre = (unit_calc(sg) if calc else []) + [f"s_add_u32 m0, s{sLX}, {ar}", f"s_lshl_b32 s{sT0}, s{sT2}, 18", f"s_add_u32 s{sT0}, s{sT0}, s{sAO}"]
        if sg >= 14: pre.append(f"s_add_u32 s{sT0}, s{sT0}, {WS_O}")
        return [(pre, f"buffer_load_dwordx4 v{vD}, {sr(SWS)}, s{sT0} offen lds"),
                ([], f"buffer_load_dwordx4 v{vD}, {sr(SWS)}, s{sT0} offen offset:1024 lds")], ("g", sg)
    W0 = [f"s_cmp_eq_u32 s{sW}, 0"]
    def publish(level):
        if level < 4:
            adr = f"""s_lshr_b32 s92, s{sFL}, 4
            s_lshl_b32 s92, s92, 7
            s_and_b32 s93, s{sFL}, 15
            s_lshl_b32 s93, s93, 2
            s_add_u32 s92, s92, s93"""
        else:
            adr = f"s_lshl_b32 s92, s{sFL}, 2"
        rare(W0, f"""
        {adr}
        s_add_u32 s92, s92, {WS_F + (level-1)*4096}
        v_mov_b32 v{vPOLL}, s{sTAG}
        s_mov_b64 exec, 1
        buffer_store_dword v{vPOLL}, off, {sr(SWS)}, s92{SC}
        s_mov_b64 exec, -1
        """)
    def poll_addr(kind):
        if kind == 1:
            return f"""v_lshrrev_b32 v{vPO}, 4, v{vL}
            v_lshlrev_b32 v{vPO}, 7, v{vPO}
            v_and_b32 v{vPOLL}, 15, v{vL}
            v_lshl_add_u32 v{vPO}, v{vPOLL}, 2, v{vPO}"""
        m = 15 if kind == 2 else 31
        return f"""v_and_b32 v{vPO}, {m}, v{vL}
            v_lshlrev_b32 v{vPO}, 2, v{vPO}"""
    def poll_issue(tag, sbase, kind):
        rare(W0, f"""
        {poll_addr(kind)}
        buffer_load_dword v{vPOLL}, v{vPO}, {sr(SWS)}, s{sbase} offen{SC}
        """)
        vm.mark(tag)
    def poll_check(tag, sbase, kind):
        n = U()
        rare(W0, f"""
        {vm.peek(tag)}
        s_mov_b32 s{sCNT}, 0
        L_pl{n}:
        v_cmp_ne_u32 vcc, s{sTAG}, v{vPOLL}
        s_nop 4
        s_cbranch_vccz L_pd{n}
        s_add_u32 s{sCNT}, s{sCNT}, 1
        s_cmp_gt_u32 s{sCNT}, 0x8000
        s_cbranch_scc1 L_pd{n}
        s_sleep 2
        {poll_addr(kind)}
        buffer_load_dword v{vPOLL}, v{vPO}, {sr(SWS)}, s{sbase} offen{SC}
        s_waitcnt vmcnt(0)
        s_branch L_pl{n}
        L_pd{n}:
        """)
        fstamp(f"poll {tag}")
    sPB = sXB
    for it in f_qkv(acc(0), 0, E, "eq"): do_fill(it)
    def acc1_init():
        pass
    R1 = [36, SPARE, 6, CA[2], xf(0), xf(1)]
    def f1(s, u): return R1[(2 * s + u) % 6]
    def acc1(u): return ACC1 + 16 * u
    def rd_w1(s):
        c2 = (s >> 2) & 1
        return [(f"ds_read_b64_tr_b16 {vr(f1(s,u)+2*hh,2)}, v{vWR[s & 3]} offset:{c2*16384+u*8192+hh*512}", ("w1", s, u)) for u in range(2) for hh in range(2)]
    PFS = [0, 3, 10, 13, 19]
    def pass1(fill, nq):
        lds(rd_w1(0)); lds(rd_w1(1))
        for s in range(32):
            Tq, r8 = s >> 3, s & 7; g = 8 + Tq
            valu = []; dm = {}
            if r8 == 6 and Tq < 3:
                a(lg.drain())
                f2stamp(f"p1 mm{Tq}")
                if Tq == 1: W(vm.wait("eq"))
                W(vm.wait(("st", g + 1)))
                f2stamp(f"p1 vmwait{Tq}")
                a("s_barrier")
                f2stamp(f"p1 bar{Tq}")
                if OPT["wpf"] and Tq < 2: wtouch(7 + Tq)
                if Tq == 1: publish(1)
                valu = slot_adv(g + 1, vWR)
                if Tq <= OPT["early_b"]:
                    gr, tag = dma_p1(3) if Tq == 0 else wodma(Tq - 1)
                    pass1.pend = [(pre, ld, tag) for pre, ld in gr]
            if getattr(pass1, "pend", None) and (r8 in (6, 7, 0, 1)):
                dm = {1: pass1.pend.pop(0)}
            mfs = []
            for u in range(2):
                mfs.append(([("w1", s, u)], f"{MF32} {vr(acc1(u),16)}, {vr(f1(s,u))}, {vr(xf(s))}, {vr(acc1(u),16) if s else 0}"))
                if (s & 3) == 0:
                    mfs.append(([], f"{MF16} {vr(CA[u])}, {vr(f1(s,u))}, {vr(SEL)}, {vr(CA[u]) if s else 0}"))
            last = len(mfs) - 1
            reads = []
            if s + 2 < 32:
                e = last if s == 0 else 0
                if s == 0:
                    reads = [(i_, tg, last) for i_, tg in rd_w1(2)[:2]]
                elif s == 1:
                    reads = [(i_, tg, last) for i_, tg in rd_w1(2)[2:]] + [(i_, tg, last) for i_, tg in rd_w1(3)]
                else:
                    reads = [(i_, tg, 0) for i_, tg in rd_w1(s + 2)]
            run_slots(mfs, reads, valu, dm, rper=2.0 if s > 1 else 8.0, vper=4, fill=(fill if s >= 5 else None), fper=OPT["fper"])
            if s == 26:
                a(f"""
                s_lshl_b32 s{sPB}, s{sQB}, 8
                s_sub_i32 s{sPB}, s{sPB}, 256
                s_max_i32 s{sPB}, s{sPB}, 0
                s_add_u32 s{sPB}, s{sPB}, {WS_F}
                """)
                poll_issue("p1", sPB, 1)
        while fill: do_fill(fill.pop(0))
    TF = xf(2)
    fillA = f_h(acc(1), acc(2), sP0, TF, "eh")
    fillB = []
    sv, sl0, sn = vm.save(), lg.save(), nstamp[0]
    a(f"s_cmp_eq_u32 s{sTB}, 1")
    a("s_cbranch_scc1 L_p1b")
    acc1_init()
    pass1.pend = []
    pass1(fillA, 2)
    W(vm.wait("eh"))
    stA = vm.save()
    a("s_branch L_e1")
    a.label("L_p1b")
    vm.restore(sv); lg.restore(sl0); nstamp[0] = sn; del SNAMES[sn:]
    for it in f_qkv(acc(1), 1, E + 12, "eq") + f_qkv(acc(2), 2, E, "eq"): do_fill(it)
    acc1_init()
    pass1.pend = []
    pass1(fillB, 6)
    stB = vm.save()
    a.label("L_e1")
    qa = [t for t in stA[0] if t not in ("eq", "eh")]; qb_ = [t for t in stB[0] if t not in ("eq", "eh")]
    if len(qb_) > len(qa): qa, qb_ = qb_, qa
    assert qa[len(qa) - len(qb_):] == qb_, (qa, qb_)
    vm.q = list(qa)
    def after_mark(st):
        n = st[1] - st[2]["p1"]; tail = st[0][len(st[0]) - n:] if n <= len(st[0]) else st[0]
        return len([t for t in tail if t not in ("eq", "eh")])
    vm.total = 1000; vm.marks = {"p1": 1000 - min(after_mark(stA), after_mark(stB))}
    stamp(name="pass1")
    cs_publish(2, SCR)
    poll_check("p1", sPB, 1)
    f3stamp("e1 poll")
    a(lg.drain())
    a("s_barrier")
    f3stamp("e1 bar")
    publish(2)
    cs_reduce_issue(2, ACC)
    vKR = vW12; QF = SPARE
    a(f"""
    s_lshl_b32 s{sT0}, s{sQB}, 8
    s_lshl_b32 s{sT1}, s{sW}, 6
    s_add_u32 s{sT1}, s{sT1}, s{sT0}
    s_sub_i32 s{sT1}, s{sT1}, 256
    s_max_i32 s{sT1}, s{sT1}, 0
    s_lshl_b32 s{sT1}, s{sT1}, 5
    s_lshl_b32 s{sT2}, s{sHD}, 16
    s_add_u32 m0, s{sLX}, {LK}
    s_add_u32 s{sT1}, s{sT1}, s{sT2}
    s_add_u32 s{sT3}, s{sT1}, {WS_QKV + 64*65536}
    s_add_u32 s{sT1}, s{sT1}, {WS_QKV + 32*65536}
    buffer_load_dwordx4 v{vD}, {sr(SWS)}, s{sT1} offen lds
    buffer_load_dwordx4 v{vD}, {sr(SWS)}, s{sT1} offen offset:1024 lds
    s_add_u32 m0, s{sLX}, {LV}
    v_and_b32 v{FR+2}, 31, v{vL}
    buffer_load_dwordx4 v{vD}, {sr(SWS)}, s{sT3} offen lds
    buffer_load_dwordx4 v{vD}, {sr(SWS)}, s{sT3} offen offset:1024 lds
    v_lshrrev_b32 v{vKR}, 5, v{vL}
    v_lshlrev_b32 v{vKR}, 4, v{vKR}
    v_lshl_add_u32 v{vKR}, v{FR+2}, 5, v{vKR}
    s_lshl_b32 s{sT1}, s{sW}, 5
    s_add_u32 s{sT1}, s{sT1}, s{sT0}
    s_lshl_b32 s{sT1}, s{sT1}, 5
    s_add_u32 s{sT1}, s{sT1}, s{sT2}
    s_add_u32 s{sT1}, s{sT1}, {WS_QKV}
    buffer_load_dwordx4 {vr(QF)}, v{vKR}, {sr(SWS)}, s{sT1} offen
    s_add_u32 s{sT0}, s{sLW}, {LK}
    v_add_u32 v{vKR}, s{sT0}, v{vKR}
    """)
    vm.issue("kv", 5)
    vXO = 182; XR = 184
    a(f"""
    v_lshlrev_b32 v{vXO}, 10, v{FR+2}
    v_lshrrev_b32 v{XR}, 5, v{vL}
    v_lshl_add_u32 v{vXO}, v{XR}, 3, v{vXO}
    s_lshl_b32 s{sT1}, s{sMT}, 16
    s_lshl_b32 s{sT2}, s{sNH}, 15
    s_add_u32 s{sT1}, s{sT1}, s{sT2}
    s_lshl_b32 s{sT2}, s{sNT}, 7
    s_add_u32 s{sT1}, s{sT1}, s{sT2}
    s_bfe_u32 s{sT0}, s{sW}, 0x10001
    s_lshl_b32 s{sT2}, s{sT0}, 6
    s_add_u32 s{sT1}, s{sT1}, s{sT2}
    s_lshl_b32 s{sT2}, s{sKH}, 5
    s_add_u32 s{sT1}, s{sT1}, s{sT2}
    v_add_u32 v{vXO}, s{sT1}, v{vXO}
    buffer_load_dwordx2 v[{XR}:{XR+1}], v{vXO}, {sr(SX)}, 0 offen
    buffer_load_dwordx2 v[{XR+2}:{XR+3}], v{vXO}, {sr(SX)}, 0 offen offset:16
    """)
    vm.issue("x", 2)
    f3stamp("e1 kv")
    cs_reduce(2, ACC)
    e1d = []
    assert OPT["early_b"] == 2
    gr, tag = wdma(2); e1d += [(pre, ld, tag) for pre, ld in gr]
    cs_fold(2, acc1, ACC)
    f3stamp("e1 fold")
    fe1 = f_h(acc1(0), acc1(1), sPF, ACC, "e1")
    st_last = [it for it in fe1 if it[0] == 'm']
    fe1 = [it for it in fe1 if it[0] != 'm']
    gap = max(4, len(fe1) // (len(e1d) + 1))
    for k, it in enumerate(fe1):
        if e1d and k % gap == 1: a.extend(e1d[0][0])
        do_fill(it)
        if e1d and k % gap == 2: a(e1d[0][1]); vm.issue(e1d[0][2]); e1d.pop(0)
    assert not e1d
    a(f"""
    s_lshr_b32 s{sPB}, s{sMT}, 1
    s_lshl_b32 s{sPB}, s{sPB}, 7
    s_add_u32 s{sPB}, s{sPB}, {WS_F + 4096}
    """)
    poll_issue("pe", sPB, 2)
    for it in st_last: do_fill(it)
    stamp(name="E1")
    vVR, vVS, vM = 5, 6, 1
    P2r = 8; KF = [16, 20]; VT = 24; P = 32; S = [40, 56]; NEG = 80; O = 96
    ACC2, ACC3 = 112, 128
    GF = 144
    vAR, vWRd = 176, 177
    vAa = [178, 179]; vWa = [180, 181]
    vXO = 182; XR = 184; TM = 40
    t0, t1, t2 = 24, 25, 26
    MP = [4 + 2 * i for i in range(10)] + [40, 42, 44, 46] + [64, 66]
    a(f"""
    v_and_b32 v{t0}, 31, v{vL}
    v_lshrrev_b32 v{t1}, 5, v{vL}
    v_lshlrev_b32 v{t2}, 2, v{t1}
    v_sub_u32 v{t2}, v{t0}, v{t2}
    """)
    for r in range(16):
        a(f"v_cmp_le_i32 s[{MP[r]}:{MP[r]+1}], {8*(r>>2)+(r&3)}, v{t2}")
    a(f"""
    v_bfe_u32 v{t0}, v{vL}, 2, 2
    v_lshl_add_u32 v{t0}, v{t1}, 2, v{t0}
    v_and_b32 v{t2}, 1, v{vL}
    v_lshlrev_b32 v{t2}, 4, v{t2}
    v_lshl_add_u32 v{vVR}, v{t0}, 5, v{t2}
    v_bfe_u32 v{t2}, v{vL}, 1, 1
    v_lshl_add_u32 v{vVR}, v{t2}, 3, v{vVR}
    v_lshlrev_b32 v{vWRd}, 7, v{t0}
    v_bfe_u32 v{t2}, v{vL}, 3, 1
    s_bfe_u32 s{sT0}, s{sW}, 0x10001
    v_xor_b32 v{t2}, s{sT0}, v{t2}
    v_lshl_add_u32 v{vWRd}, v{t2}, 6, v{vWRd}
    v_bfe_u32 v{t2}, v{vL}, 4, 1
    v_lshl_add_u32 v{vWRd}, v{t2}, 5, v{vWRd}
    v_and_b32 v{t2}, 3, v{vL}
    v_lshl_add_u32 v{vWRd}, v{t2}, 3, v{vWRd}
    s_lshl_b32 s{sT1}, s{sKH}, 13
    s_add_u32 s{sT2}, s{sT1}, 16384
    v_add_u32 v{vWRd}, s{sT2}, v{vWRd}
    s_lshl_b32 s{sT2}, s{sNH}, 10
    s_add_u32 s{sT1}, s{sT1}, s{sT2}
    v_add_u32 v{vAR}, s{sT1}, v{vD}
    v_and_b32 v{t2}, 16, v{vL}
    v_cmp_eq_u32 vcc, 0, v{t2}
    s_add_u32 s{sT1}, s{sLW}, {LV}
    v_mov_b32 v{t0}, {LONE}
    v_mov_b32 v{t1}, s{sT1}
    v_cndmask_b32 v{t0}, v{t0}, v{t1}, vcc
    v_add_u32 v{vVR}, v{vVR}, v{t0}
    v_mov_b32 v{t1}, 0x400
    v_cndmask_b32 v{vVS}, 0, v{t1}, vcc
    v_mov_b32 v{vM}, {NEGBIG}
    """)
    def ga(n): return GF + (n % 4) * 8
    def gw(n): return GF + (n % 4) * 8 + 4
    atoms = []
    def AT(fn): atoms.append(fn)
    def at_l(ins, tag): AT(lambda: (a(ins), lg.issue(tag)))
    def at_dma(pre, ld, tag):
        if pre: AT(lambda: a.extend(pre))
        AT(lambda: (a(ld), vm.issue(tag)))
    def g_reads(n):
        sg, i = n >> 2, n & 3
        at_l(f"ds_read_b128 {vr(ga(n))}, v{vAa[sg & 1]} offset:{i*2048}", ("ga", n))
        for hh in range(2):
            at_l(f"ds_read_b64_tr_b16 {vr(gw(n)+2*hh,2)}, v{vWa[sg & 1]} offset:{i*2048+hh*1024}", ("ga", n))
    state = {"o_done": False, "pub4": None}
    WOF = 192
    OAR = [LK, AREAS[2] if OPT["ck4"] == 12 else AREAS[0]]
    def sync_extra(sg):
        if sg == OPT["ck3"]: poll_check("p2", sPB, 2)
        if sg == OPT["ck4"]: poll_check("p3", sPB, 3)
        pub = None
        if sg == OPT["pub3"]: W(vm.wait("e1")); pub = 3
        if state["o_done"] and state["pub4"] is None:
            state["o_cnt"] = state.get("o_cnt", 0) + 1
            if state["o_cnt"] == OPT["odel"]: W(vm.wait("o")); pub = 4; state["pub4"] = sg
        return pub
    def sync_after(sg, pub):
        if pub: publish(pub)
        if sg == OPT["ck3"] - 1:
            a(f"s_add_u32 s{sPB}, s{sPB}, 4096")
            poll_issue("p2", sPB, 2)
        if sg == OPT["ck4"] - 1:
            assert state["pub4"] is not None, "o must be published before polling"
            a(f"""
            s_lshr_b32 s{sPB}, s{sMT}, 2
            s_lshl_b32 s{sPB}, s{sPB}, 7
            s_add_u32 s{sPB}, s{sPB}, {WS_F + 3*4096}
            """)
            poll_issue("p3", sPB, 3)
    def g_bar(sg):
        def f():
            if sg > 0: W(lg.wait(("ga", 4 * sg - 1)))
            fstamp(f"->g{sg}")
            pub = sync_extra(sg)
            if sg < 14: W(vm.wait(("g", sg)))
            a("s_barrier")
            fstamp(f"bar g{sg}")
            sync_after(sg, pub)
            if sg < 14:
                a(f"v_add_u32 v{vAa[sg & 1]}, {AREAS[sg % 3]}, v{vAR}")
                a(f"v_add_u32 v{vWa[sg & 1]}, {AREAS[sg % 3]}, v{vWRd}")
        AT(f)
    nfirst = 0
    for sg in (2, 0, 1):
        lst = (wdma(sg)[0] if sg < 2 else []) + adma(sg, calc=(sg == 2))[0]
        for pre, ld in lst: at_dma(pre, ld, ("g", sg))
    nfirst = len(atoms)
    for _ in range(OPT["gdelay"]): AT(lambda: None)
    g_bar(0); g_reads(0); g_reads(1)
    pend = []
    for n in range(56):
        sg, i = n >> 2, n & 3
        if i == 2:
            g_bar(sg + 1)
            s3 = sg + 3
            assert not pend
            if s3 < 14:
                assert s3 < 6 or sg + 1 >= OPT["ck3"]
                pend = [(pre, ld, ("g", s3)) for pre, ld in wdma(s3)[0] + adma(s3, calc=False)[0]]
            if sg + 1 == OPT["ck4"]:
                for pz in range(2): pend += [(pre, ld, ("od", pz)) for pre, ld in odma(pz, OAR[pz])[0]]
        c = vr(ACC2, 16) if n else "0"
        def mf(n=n, c=c):
            W(lg.wait(("ga", n)))
            a(f"{MF32} {vr(ACC2,16)}, {vr(gw(n))}, {vr(ga(n))}, {c}")
        AT(mf)
        if n + 2 < 56: g_reads(n + 2)
        rem = 4 - ((i + 2) & 3) if n < 54 else 56 - n
        k = (len(pend) + rem - 1) // rem
        for _ in range(k):
            if pend: at_dma(*pend.pop(0))
    assert not pend
    def g3():
        for pz in range(2):
            W(vm.wait(("od", pz)))
            a("s_barrier")
            fstamp(f"bar o{pz}")
            a(f"v_add_u32 v{vAa[pz]}, {OAR[pz]}, v{vAR}")
            for m in range(8):
                a(f"ds_read_b128 {vr(GF+4*m)}, v{vAa[pz]} offset:{(m>>2)*16384+(m&3)*2048}"); lg.issue(("o3", pz, m))
            for m in range(8):
                W(lg.wait(("o3", pz, m)))
                c = vr(ACC3, 16) if (pz or m) else "0"
                a(f"{MF32} {vr(ACC3,16)}, {vr(WOF+4*(8*pz+m))}, {vr(GF+4*m)}, {c}")
    AT(g3)
    credit = [0.0]
    def A(ins, w=1.0):
        a(ins)
        credit[0] += w * OPT["grate"] / 100.0
        while credit[0] >= 1.0 and atoms:
            atoms.pop(0)(); credit[0] -= 1.0
    def mf_s(dst, kf): return f"{MF32} {vr(dst,16)}, {vr(kf)}, {vr(QF)}, {vr(NEG,16)}"
    def rdk(j, buf=None):
        a(f"ds_read_b128 {vr(KF[j & 1 if buf is None else buf])}, v{vKR} offset:{j*1024}"); lg.issue(("k", j))
    def cset(val): return "\n".join(val(r) for r in range(16))
    big = lambda r: f"v_mov_b32 v{NEG+r}, {NEGBIG}"
    zero = lambda r: f"v_mov_b32 v{NEG+r}, 0"
    negm = lambda r: f"v_sub_f32 v{NEG+r}, 0, v{vM}"
    def cinit(val):
        a(cset(val))
        rare([f"s_cmp_gt_u32 s{sJS}, 1"], cset(big))
    def cswitch(j, val):
        if j >= 2: rare([f"s_cmp_eq_u32 s{sJS}, {j}"], cset(val))
    cinit(zero)
    W(vm.wait("kv"))
    a("s_barrier")
    a(f"v_add_u32 v{vWa[0]}, {(-16384) & 0xffffffff}, v{vWRd}")
    a(f"v_add_u32 v{vWa[1]}, {SLOT-16384}, v{vWRd}")
    for pz in range(2):
        for m in range(8):
            for hh in range(2):
                a(f"ds_read_b64_tr_b16 {vr(192+4*(8*pz+m)+2*hh,2)}, v{vWa[pz]} offset:{(m>>2)*16384+(m&3)*2048+hh*1024}"); lg.issue("wof")
    stamp(name="att setup")
    S3 = [S[0], S[1], O]
    K4 = [KF[0], KF[1], VT, VT + 4]
    order = [1, 2, 3, 4, 5, 6, 7, 8, 0]
    def rdk1(n):
        a(f"ds_read_b128 {vr(K4[n % 4])}, v{vKR} offset:{order[n]*1024}"); lg.issue(("k1", n))
    def maxredA(s_):
        for r in range(0, 16, 2): A(f"v_max3_f32 v{vM}, v{s_+r}, v{s_+r+1}, v{vM}")
    rdk1(0); rdk1(1); rdk1(2)
    hold = atoms[:]; del atoms[:]
    for n in range(9):
        if n == 2:
            W(lg.wait("wof"))
            poll_check("pe", sPB, 2)
            a("s_barrier")
            atoms.extend(hold)
            for _ in range(nfirst): atoms.pop(0)()
        j = order[n]
        if j: cswitch(j, zero)
        W(lg.wait(("k1", n)))
        a(mf_s(S3[n % 3], K4[n % 4]))
        if n + 3 < 9: rdk1(n + 3)
        if n >= 2: maxredA(S3[(n - 2) % 3])
    rare([f"s_cmp_gt_u32 s{sJS}, 0"], "s_nop 15\n" + "\n".join(f"v_mov_b32 v{S3[2]+r}, {NEGBIG}" for r in range(16)))
    for r in range(16): A(f"v_cndmask_b32 v{S3[1]+r}, v{S3[2]+r}, v{S3[1]+r}, s[{MP[r]}:{MP[r]+1}]")
    maxredA(S3[1])
    a(f"""
    v_mov_b32 v{VT}, v{vM}
    v_permlane32_swap_b32 v{vM}, v{VT}
    v_max_f32 v{vM}, v{vM}, v{VT}
    """)
    rdk(1)
    cinit(negm)
    stamp(name="att p1")
    def rdv(tag):
        for t in range(2):
            for hh in range(2):
                a(f"ds_read_b64_tr_b16 {vr(VT+4*t+2*hh,2)}, v{vVR} offset:{t*512+hh*256}"); lg.issue(tag)
    PB = [P, P2r]
    npv = [0]
    def pv1(p, t):
        npv[0] += 1
        return f"{MF32} {vr(O,16)}, {vr(VT+4*t)}, {vr(p+4*t)}, {vr(O,16) if npv[0] > 1 else 0}"
    for j in range(1, 9):
        cswitch(j, negm)
        W(lg.wait(("k", j)))
        a(mf_s(S[j & 1], KF[j & 1]))
        if j < 8: rdk(j + 1)
        else: rdk(0, 1)
        if j > 1:
            sx = S[(j - 1) & 1]; px = PB[(j - 1) & 1]
            ex = [f"v_exp_f32 v{sx+r}, v{sx+r}" for r in range(16)]
            cv = [f"v_cvt_pk_bf16_f32 v{px+r}, v{sx+2*r}, v{sx+2*r+1}" for r in range(8)]
            for x in ex[0:5]: A(x, 2)
            if j > 2:
                W(lg.wait(("v", j - 2))); a(pv1(PB[j & 1], 0))
            for x in ex[5:10]: A(x, 2)
            if j > 2: a(pv1(PB[j & 1], 1))
            A(ex[10], 2); A(ex[11], 2)
            a(f"v_add_u32 v{vVR}, v{vVR}, v{vVS}")
            for q in range(4):
                a(ex[12 + q])
                a(f"ds_read_b64_tr_b16 {vr(VT+2*q,2)}, v{vVR} offset:{(q>>1)*512+(q&1)*256}"); lg.issue(("v", j - 1))
            for x in cv: A(x)
    W(lg.wait(("k", 0)))
    a(mf_s(S[1], KF[1]))
    rare([f"s_cmp_gt_u32 s{sJS}, 0"], "s_nop 15\n" + "\n".join(f"v_mov_b32 v{S[1]+r}, {NEGBIG}" for r in range(16)))
    W(lg.wait(("v", 7)))
    a(pv1(PB[1], 0)); a(pv1(PB[1], 1))
    for r in range(16): A(f"v_cndmask_b32 v{S[0]+r}, v{S[1]+r}, v{S[0]+r}, s[{MP[r]}:{MP[r]+1}]")
    a(f"v_add_u32 v{vVR}, v{vVR}, v{vVS}")
    rdv(("v", 8))
    for r in range(16): A(f"v_exp_f32 v{S[0]+r}, v{S[0]+r}", 2)
    for r in range(16): A(f"v_cndmask_b32 v{S[1]+r}, 0, v{S[0]+r}, s[{MP[r]}:{MP[r]+1}]")
    for r in range(8): a(f"v_cvt_pk_bf16_f32 v{PB[0]+r}, v{S[1]+2*r}, v{S[1]+2*r+1}")
    W(lg.wait(("v", 8)))
    a(pv1(PB[0], 0))
    for r in range(8): a(f"v_cndmask_b32 v{S[0]+r}, v{S[0]+r}, 0, s[{MP[r]}:{MP[r]+1}]")
    a(pv1(PB[0], 1))
    a(f"v_lshlrev_b32 v{KF[0]}, 3, v{vVS}")
    a(f"v_sub_u32 v{vVR}, v{vVR}, v{KF[0]}")
    rdv(("v", 0))
    for r in range(8, 16): a(f"v_cndmask_b32 v{S[0]+r}, v{S[0]+r}, 0, s[{MP[r]}:{MP[r]+1}]")
    for r in range(8): a(f"v_cvt_pk_bf16_f32 v{PB[1]+r}, v{S[0]+2*r}, v{S[0]+2*r+1}")
    W(lg.wait(("v", 0)))
    a(pv1(PB[1], 0)); a(pv1(PB[1], 1))
    a(f"""
    s_lshl_b32 s{sE0}, s{sHD}, 6
    s_lshl_b32 s{sE1}, s{sQB}, 3
    s_add_u32 s{sE0}, s{sE0}, s{sE1}
    s_add_u32 s{sE0}, s{sE0}, s{sW}
    s_lshl_b32 s{sE0}, s{sE0}, 10
    s_add_u32 s{sE0}, s{sE0}, {WS_O}
    """)
    a(f"v_rcp_f32 v{vM}, v{O+8}")
    for r in range(8): a(f"v_mul_f32 v{O+r}, v{O+r}, v{vM}")
    for r in range(4): a(f"v_cvt_pk_bf16_f32 v{P+r}, v{O+2*r}, v{O+2*r+1}")
    a(f"buffer_store_dwordx4 {vr(P)}, v{vD}, {sr(SWS)}, s{sE0} offen{SC}")
    vm.issue("o"); state["o_done"] = True
    print("atoms left after attention:", len(atoms), file=sys.stderr)
    stamp(name="att p2")
    while atoms: atoms.pop(0)()
    stamp(name="G23 rest")
    vA2 = vAa[0]
    a(f"""
    s_lshl_b32 s{sT0}, s{sW}, 12
    s_add_u32 s{sT0}, s{sT0}, {SLOT}
    v_add_u32 v{vAR}, s{sT0}, v{vD}
    s_cmp_eq_u32 s{sKH}, 0
    s_cbranch_scc0 L_k1
    """)
    for x, ac in enumerate((ACC2, ACC3)):
        for r in range(2): a(f"ds_write_b128 v{vAR}, {vr(ac+8+4*r)} offset:{x*2048+r*1024}")
    a("s_branch L_k2")
    a.label("L_k1")
    for x, ac in enumerate((ACC2, ACC3)):
        for r in range(2): a(f"ds_write_b128 v{vAR}, {vr(ac+4*r)} offset:{x*2048+r*1024}")
    for x, ac in enumerate((ACC2, ACC3)):
        for i in range(8): a(f"v_mov_b32 v{ac+i}, v{ac+8+i}")
    a.label("L_k2")
    a(f"""
    s_xor_b32 s{sT0}, s{sW}, 4
    s_lshl_b32 s{sT0}, s{sT0}, 12
    s_add_u32 s{sT0}, s{sT0}, {SLOT}
    v_add_u32 v{vA2}, s{sT0}, v{vD}
    s_waitcnt lgkmcnt(0)
    s_barrier
    """)
    for x in range(2):
        for r in range(2): a(f"ds_read_b128 {vr(TM+8*x+4*r)}, v{vA2} offset:{x*2048+r*1024}")
    a("s_waitcnt vmcnt(0) lgkmcnt(0)")
    for x, ac in enumerate((ACC2, ACC3)):
        for i in range(8): a(f"v_add_f32 v{ac+i}, v{ac+i}, v{TM+8*x+i}")
    Tz = TM + 16
    for i in range(8): a(f"v_mul_f32 v{Tz+i}, {hx(-LOG2E)}, v{ACC2+i}")
    for i in range(8): a(f"v_exp_f32 v{Tz+i}, v{Tz+i}")
    for i in range(8): a(f"v_mul_f32 v{ACC2+i}, v{ACC2+i}, v{ACC3+i}")
    for i in range(8): a(f"v_add_f32 v{Tz+i}, 1.0, v{Tz+i}")
    for i in range(8): a(f"v_rcp_f32 v{Tz+i}, v{Tz+i}")
    for r in range(2):
        for d in range(2):
            a(f"v_lshlrev_b32 v{TM+4*r+2*d}, 16, v{XR+2*r+d}")
            a(f"v_and_b32 v{TM+4*r+2*d+1}, 0xffff0000, v{XR+2*r+d}")
    for i in range(8): a(f"v_fmac_f32 v{TM+i}, v{ACC2+i}, v{Tz+i}")
    for r in range(2):
        a(f"v_cvt_pk_bf16_f32 v{Tz+2*r}, v{TM+4*r}, v{TM+4*r+1}")
        a(f"v_cvt_pk_bf16_f32 v{Tz+2*r+1}, v{TM+4*r+2}, v{TM+4*r+3}")
    a(f"""
    buffer_store_dwordx2 v[{Tz}:{Tz+1}], v{vXO}, {sr(SOUT)}, 0 offen
    buffer_store_dwordx2 v[{Tz+2}:{Tz+3}], v{vXO}, {sr(SOUT)}, 0 offen offset:16
    """)
    if STAMP:
        stamp(name="final"); stamp(True)
        a(f"""
        s_lshl_b32 s{sT0}, s2, 3
        s_add_u32 s{sT0}, s{sT0}, s{sW}
        s_lshl_b32 s{sT0}, s{sT0}, 8
        s_add_u32 s{sT0}, s{sT0}, {WS_STAMP}
        s_mov_b32 s{SWS+2}, {WS_STAMP + (1 << 20)}
        v_lshlrev_b32 v{TM}, 2, v{vL}
        buffer_store_dword v{vSTAMP}, v{TM}, {sr(SWS)}, s{sT0} offen
        """)
        if OPT["dbgst"]:
            a(f"""
            s_lshl_b32 s{sT0}, s2, 3
            s_add_u32 s{sT0}, s{sT0}, s{sW}
            s_cmp_eq_u32 s{sT0}, {OPT["dbgst"]}
            s_cbranch_scc0 L_end
            v_add_u32 v{TM}, 4, v{TM}
            s_mov_b64 exec, 0x7fff
            buffer_store_dword v{vSTAMP}, v{TM}, {sr(SDBG)}, 0 offen
            """)
        print("stamps:", nstamp[0], file=sys.stderr)
        open("snames.txt", "w").write("\n".join(SNAMES))
    a.label("L_end")
    a("s_endpgm")
    a.items += ool.items
    return dict(lds=LDS_TOTAL, vgpr=256, sgpr=100)

HEADER = open("cdna_kernels/%s.s.ref" % NAME).read().split("; Override launch")[0]

def build(path):
    a = Asm(); info = gen(a)
    items = []; inside = False
    for k, x in a.items:
        if k == 'l' and x == "X_begin": inside = True
        if k == 'l' and x == "X_end": inside = False
        if inside and k == 'i':
            if OPT["x_nodma"] and x.startswith("buffer_load") and x.endswith("lds"): continue
            if OPT["x_nomfma"] and x.startswith("v_mfma"): continue
            if OPT["x_nords"] and x.startswith("ds_read"): continue
            if OPT["x_nostat"] and re.match(r"(v_fmac_f32 v1[67]|v_add_f32 v1[45]|v_lshlrev_b32 v18, 16|v_and_b32 v19, 0xffff0000)", x): continue
        items.append((k, x))
    a.items = items
    txt = a.render()
    label = NAME + "_kernel"
    n = sum(1 for k, _ in a.items if k == 'i')
    print("instrs", n, "nops", a.nnop, file=sys.stderr)
    out = HEADER + f"; @launch grid=(256,1,1) block=(512,1,1) lds={info['lds']}\n"
    out += '.amdgcn_target "amdgcn-amd-amdhsa--gfx950"\n.text\n'
    out += f".globl {label}\n.p2align 8\n.type {label},@function\n{label}:\n"
    out += txt.replace("CODE_BYTES", "(L_code_end - L_pc)")
    out += "L_code_end:\n"
    out += f""".section .rodata,"a"
.p2align 6
.amdhsa_kernel {label}
  .amdhsa_next_free_vgpr {info['vgpr']}
  .amdhsa_next_free_sgpr {info['sgpr']}
  .amdhsa_accum_offset {info['vgpr']}
  .amdhsa_group_segment_fixed_size 0
  .amdhsa_kernarg_size 80
  .amdhsa_user_sgpr_count 2
  .amdhsa_user_sgpr_kernarg_segment_ptr 1
  .amdhsa_system_sgpr_workgroup_id_x 1
.end_amdhsa_kernel
"""
    open(path, "w").write(out)

if __name__ == "__main__":
    path = sys.argv[1]
    for arg in sys.argv[2:]:
        if arg == "stamp": STAMP = True
        elif "=" in arg:
            k, v = arg.split("="); assert k in OPT, k; OPT[k] = int(v)
    build(path)
```

```python
import sys, math, struct, re
sys.path.insert(0, "gen")
from asmlib import Asm, Ins

NAME = "recurrent_scan__sliding_block__geglu_ffn__prompt"
WS_H = 0
WS_O = 56 * 128 * 1024
WS_QKV = 72 * 128 * 1024
WS_F = WS_QKV + 96 * 65536
WS_END = WS_F + 4 * 4096
LOG2E = 1.4426950408889634
QSCALE = 0.25 * LOG2E
GK1 = -2.0 * math.sqrt(2.0 / math.pi) * LOG2E
GK2 = GK1 * 0.044715
NEGBIG = "0xf149f2ca"
def f2u(x): return struct.unpack("<I", struct.pack("<f", x))[0]
def hx(x): return "0x%08x" % f2u(x)
def vr(b, n=4): return f"v[{b}:{b+n-1}]"
def sr(b, n=4): return f"s[{b}:{b+n-1}]"

class Cnt:
    def __init__(self, name, mx): self.q = []; self.name = name; self.mx = mx; self.total = 0; self.marks = {}
    def issue(self, tag, n=1): self.q += [tag] * n; self.total += n
    def wait(self, tag):
        idxs = [i for i, t in enumerate(self.q) if t == tag]
        if not idxs: return None
        n = min(len(self.q) - 1 - max(idxs), self.mx)
        self.q = self.q[len(self.q) - n:] if n else []
        return f"s_waitcnt {self.name}({n})"
    def mark(self, tag): self.marks[tag] = self.total
    def peek(self, tag): return f"s_waitcnt {self.name}({min(self.total - self.marks[tag], self.mx)})"
    def drain(self): self.q = []; return f"s_waitcnt {self.name}(0)"
    def save(self): return (list(self.q), self.total, dict(self.marks))
    def restore(self, st): self.q, self.total, self.marks = list(st[0]), st[1], dict(st[2])

STAMP = False
SNAMES = []
WS_STAMP = 32 << 20
OPT = dict(codepf=32, rot=4, rot2=1, fine=0, start=3, fper=5, early_b=2, wpf=1, hpf=0, p2late=1, ck3=4, ck4=13, pub3=1, gdelay=20, grate=40, odel=2, outf=0, dbgst=0, x_nodma=0, x_nomfma=0, x_nostat=0, x_nords=0)

def gen(a):
    SC = " sc1"
    vm = Cnt("vmcnt", 63); lg = Cnt("lgkmcnt", 15)
    ool = Asm()
    def W(x):
        if x: a(x)
    SX, SU0, SU1, SU2, SPG, SPU, SWS, SDBG = 24, 28, 32, 36, 40, 44, 48, 52
    sW, sMG, sNH, sRB, sCGQ, sCGL, sTB, sRL = 56, 57, 58, 59, 60, 61, 62, 63
    sP12, sKX, sK0, sK12, sT0, sT1, sT2, sT3 = 64, 65, 66, 67, 68, 69, 70, 71
    sLX, sLW, sU0, sPF, sXB, sSC0, sP0, sFL = 72, 73, 74, 75, 76, 77, 78, 79
    sCNT = 80
    SWD, SWO, SOUT = 28, 32, 36
    sHD, sQB, sJS, sMT, sNT, sCT, sKH, sAO = 81, 82, 83, 84, 85, 86, 87, 88
    sWQ, sWL, sROT, sTAG, sE0, sE1 = 89, 90, 91, 96, 97, 98
    sR2 = 63
    STP = 92
    STP = 20
    sPFo = 99
    R2MASK = 7 if OPT['rot2'] else 0
    ROTMASK = {1: 0, 2: 4, 4: 6, 8: 7}[OPT['rot']]
    uid = [0]
    def U(): uid[0] += 1; return uid[0]
    nstamp = [0]
    def fstamp(name):
        if OPT["fine"] == 1: stamp(name=name)
    def f2stamp(name):
        if OPT["fine"] == 2: stamp(name=name)
    def f3stamp(name):
        if OPT["fine"] == 3: stamp(name=name)
    def stamp(real=False, name=""):
        if not STAMP: return
        i = nstamp[0]; nstamp[0] += 1
        SNAMES.append(name)
        a("s_memrealtime s[92:93]" if real else "s_memtime s[92:93]")
        a("s_waitcnt lgkmcnt(0)"); lg.q = []
        a(f"v_writelane_b32 v{vSTAMP}, s92, {i}")
    def rare(cond, body):
        n = U()
        a.extend(cond)
        a(f"s_cbranch_scc1 R{n}")
        a.label(f"B{n}")
        ool.label(f"R{n}")
        ool("s_nop 7"); ool("s_nop 7")
        ool(body)
        ool("s_nop 7")
        ool(f"s_branch B{n}")
    vL, vX0, vX1, vWq, vW12, vWg = 0, 1, 2, 3, 4, 5
    vXR = [6, 7, 8, 9]; vWR = [10, 11, 12, 13]
    vS = [14, 15]; vQ = [16, 17]; vST = [18, 19]
    SEL = 20; CA = [24, 28, 32]
    FR = 36; NF = 9
    vD, vPOLL, vPO, vSTAMP = 72, 73, 74, 75
    SPARE = 76
    vPF, vJK = 74, 73
    ACC = 80; XF = 128; ACC1 = 40
    def xf(s): return XF + s * 4
    def acc(u): return ACC + u * 16
    SLOT = 40960
    SCR = 3 * SLOT
    L_RS = SCR
    L_CSA = SCR + 1024
    L_CSB = SCR + 2560
    LK = SCR + 4096; LV = LK + 16384; LONE = LV + 16384 + 128
    LDS_TOTAL = 163840
    T = [FR + i for i in range(8)]

    a("s_cmp_ge_u32 s2, 256")
    a("s_cbranch_scc1 L_end")
    a("s_load_dwordx16 s[4:19], s[0:1], 0")
    a("s_load_dwordx4 s[20:23], s[0:1], 64")
    if OPT["codepf"]:
        a(f"""
        s_cmp_ge_u32 s2, {OPT["codepf"]}
        s_cbranch_scc1 L_npf
        s_getpc_b64 s[92:93]
        L_pc:
        s_and_b32 s92, s92, 0xffffff00
        s_and_b32 s93, s93, 0xffff
        s_mov_b32 s94, CODE_BYTES
        s_mov_b32 s95, 0x20000
        v_lshlrev_b32 v{T[0]}, 7, v0
        buffer_load_dword v{vPOLL}, v{T[0]}, s[92:95], 0 offen
        L_npf:
        """)
    a(f"""
    v_lshrrev_b32 v{T[0]}, 6, v0
    v_and_b32 v{vL}, 63, v0
    v_readfirstlane_b32 s{sW}, v{T[0]}
    s_and_b32 s{sT0}, s2, 7
    s_lshr_b32 s{sT1}, s2, 3
    s_and_b32 s{sRB}, s{sT0}, 1
    s_lshl_b32 s{sRB}, s{sRB}, 3
    s_and_b32 s{sRL}, s{sT1}, 7
    s_add_u32 s{sRB}, s{sRB}, s{sRL}
    s_lshr_b32 s{sCGQ}, s{sT0}, 1
    s_lshr_b32 s{sCGL}, s{sT1}, 3
    s_lshl_b32 s{sROT}, s{sCGL}, 1
    s_add_u32 s{sROT}, s{sROT}, s{sRL}
    s_and_b32 s{sROT}, s{sROT}, {ROTMASK}
    s_lshl_b32 s{sLX}, s{sW}, 11
    s_lshl_b32 s{sLW}, s{sW}, 10
    s_lshl_b32 s{sXB}, s{sRB}, 17
    s_mul_i32 s{sT0}, s{sCGQ}, 3
    s_add_u32 s{sT1}, s{sT0}, s{sCGL}
    s_add_u32 s{sT2}, s{sT0}, 12
    s_mov_b32 s{sP0}, s{sT1}
    s_add_u32 s{sT3}, s{sP0}, 12
    s_add_u32 s{sPF}, s{sCGQ}, 24
    s_movk_i32 s{sP12}, 3584
    s_cmp_eq_u32 s{sCGL}, 3
    s_cselect_b32 s{sTB}, 1, 0
    s_cselect_b32 s{sU0}, s{sT2}, s{sT1}
    s_cselect_b32 s{sPF}, s{sPF}, s{sT3}
    s_cselect_b32 s{sP12}, 3072, s{sP12}
    """)
    if STAMP: a(f"v_mov_b32 v{vSTAMP}, 0")
    a(f"""
    v_lshrrev_b32 v{T[0]}, 3, v{vL}
    v_and_b32 v{T[1]}, 7, v{vL}
    v_lshrrev_b32 v{T[2]}, 4, v{vL}
    v_xor_b32 v{T[3]}, v{T[1]}, v{T[2]}
    s_lshl_b32 s{sT0}, s{sW}, 4
    v_add_u32 v{T[4]}, s{sT0}, v{T[0]}
    v_lshlrev_b32 v{T[4]}, 10, v{T[4]}
    v_lshl_add_u32 v{vX0}, v{T[3]}, 4, v{T[4]}
    v_xor_b32 v{vX1}, 64, v{vX0}
    v_add_u32 v{vX1}, 0x2000, v{vX1}
    s_lshl_b32 s{sT0}, s{sW}, 3
    v_add_u32 v{T[4]}, s{sT0}, v{T[0]}
    v_and_b32 v{T[2]}, 1, v{T[2]}
    v_lshlrev_b32 v{T[2]}, 2, v{T[2]}
    v_xor_b32 v{T[5]}, v{T[1]}, v{T[2]}
    v_lshlrev_b32 v{T[5]}, 4, v{T[5]}
    v_mul_u32_u24 v{vWq}, 3072, v{T[4]}
    v_add_u32 v{vWq}, v{vWq}, v{T[5]}
    v_mul_u32_u24 v{vWg}, 3584, v{T[4]}
    v_add_u32 v{vWg}, v{vWg}, v{T[5]}
    v_mul_u32_u24 v{vW12}, s{sP12}, v{T[4]}
    v_add_u32 v{vW12}, v{vW12}, v{T[5]}
    s_lshl_b32 s{sP12}, s{sP12}, 6
    s_mov_b32 s{SX+2}, {2048*1024}
    s_mov_b32 s{SX+3}, 0x20000
    s_mov_b32 s{SU0+3}, 0x20000
    s_mov_b32 s{SU1+3}, 0x20000
    s_mov_b32 s{SU2+3}, 0x20000
    s_waitcnt lgkmcnt(0)
    """)
    stamp(); stamp(True)
    QSZ, GSZ = 512 * 3072, 512 * 3584
    a(f"""
    s_mov_b32 s{SX}, s4
    s_and_b32 s{SX+1}, s5, 0xffff
    s_lshl_b32 s{sT0}, s{sU0}, 7
    s_add_u32 s{SU0}, s6, s{sT0}
    s_addc_u32 s{SU0+1}, s7, 0
    s_and_b32 s{SU0+1}, s{SU0+1}, 0xffff
    s_sub_u32 s{SU0+2}, {QSZ}, s{sT0}
    """)
    for k, (S, plo) in enumerate(((SU1, 12), (SU2, 14))):
        a(f"""
        s_lshl_b32 s{sT0}, s{sP0}, 7
        s_add_u32 s{sT1}, s{sU0}, {k+1}
        s_lshl_b32 s{sT1}, s{sT1}, 7
        s_mov_b32 s{S+2}, {GSZ}
        s_cmp_eq_u32 s{sTB}, 1
        s_cselect_b32 s{sT0}, s{sT1}, s{sT0}
        s_cselect_b32 s{S}, s6, s{plo}
        s_cselect_b32 s{S+1}, s7, s{plo+1}
        s_cselect_b32 s{S+2}, {QSZ}, s{S+2}
        s_add_u32 s{S}, s{S}, s{sT0}
        s_addc_u32 s{S+1}, s{S+1}, 0
        s_and_b32 s{S+1}, s{S+1}, 0xffff
        s_sub_u32 s{S+2}, s{S+2}, s{sT0}
        """)
    def dma_p0(t):
        sl = (t % 3) * SLOT
        pre = [f"s_add_u32 s{sT3}, s{sROT}, {t}", f"s_and_b32 s{sT3}, s{sT3}, 7", f"s_lshl_b32 s{sKX}, s{sT3}, 7",
               f"s_add_u32 s{sKX}, s{sKX}, s{sXB}", f"s_mul_i32 s{sK0}, s{sT3}, {64*3072}", f"s_mul_i32 s{sK12}, s{sP12}, s{sT3}"]
        g = [(pre + [f"s_add_u32 m0, s{sLX}, {sl}"], f"buffer_load_dwordx4 v{vX0}, {sr(SX)}, s{sKX} offen lds"),
             ([f"s_add_u32 m0, s{sLX}, {sl+1024}"], f"buffer_load_dwordx4 v{vX1}, {sr(SX)}, s{sKX} offen lds"),
             ([f"s_add_u32 m0, s{sLW}, {sl+16384}"], f"buffer_load_dwordx4 v{vWq}, {sr(SU0)}, s{sK0} offen lds"),
             ([f"s_add_u32 m0, s{sLW}, {sl+24576}"], f"buffer_load_dwordx4 v{vW12}, {sr(SU1)}, s{sK12} offen lds"),
             ([f"s_add_u32 m0, s{sLW}, {sl+32768}"], f"buffer_load_dwordx4 v{vW12}, {sr(SU2)}, s{sK12} offen lds")]
        return g, ("st", t)
    def dma_p1(Tq):
        sl = ((8 + Tq) % 3) * SLOT
        g = []
        for c2 in range(2):
            sk = sK0 if c2 == 0 else sK12
            pre = [f"s_add_u32 s{sT3}, s{sROT}, {2*Tq+c2}", f"s_and_b32 s{sT3}, s{sT3}, 7", f"s_mul_i32 s{sk}, s{sT3}, {64*3584}"]
            g += [(pre + [f"s_add_u32 m0, s{sLW}, {sl+c2*16384}"], f"buffer_load_dwordx4 v{vWg}, {sr(SPG)}, s{sk} offen lds"),
                  ([f"s_add_u32 m0, s{sLW}, {sl+c2*16384+8192}"], f"buffer_load_dwordx4 v{vWg}, {sr(SPU)}, s{sk} offen lds")]
        return g, ("st", 8 + Tq)
    def emit_dma(d):
        g, tag = d
        for pre, ld in g:
            a.extend(pre); a(ld); vm.issue(tag)
    emit_dma(dma_p0(0))
    if OPT["start"] == 0: emit_dma(dma_p0(1))
    for S, plo in ((SPG, 12), (SPU, 14)):
        a(f"""
        s_lshl_b32 s{sT0}, s{sPF}, 7
        s_add_u32 s{S}, s{plo}, s{sT0}
        s_addc_u32 s{S+1}, s{plo+1}, 0
        s_and_b32 s{S+1}, s{S+1}, 0xffff
        s_sub_u32 s{S+2}, {GSZ}, s{sT0}
        s_mov_b32 s{S+3}, 0x20000
        """)
    a(f"""
    s_mov_b32 s{SWS}, s22
    s_and_b32 s{SWS+1}, s23, 0xffff
    s_mov_b32 s{SWS+2}, {WS_END}
    s_mov_b32 s{SWS+3}, 0x20000
    s_mov_b32 s{SDBG}, s20
    s_and_b32 s{SDBG+1}, s21, 0xffff
    s_movk_i32 s{SDBG+2}, 256
    s_mov_b32 s{SDBG+3}, 0x20000
    s_lshr_b32 s{sMG}, s{sW}, 1
    s_and_b32 s{sNH}, s{sW}, 1
    """)
    rare([f"s_or_b32 s{sT0}, s2, s{sW}", f"s_cmp_eq_u32 s{sT0}, 0"], f"""
    s_memrealtime s[92:93]
    s_waitcnt lgkmcnt(0)
    s_or_b32 s92, s92, 1
    v_mov_b32 v{T[0]}, s92
    s_mov_b64 exec, 1
    buffer_store_dword v{T[0]}, off, {sr(SDBG)}, 0{SC}
    s_mov_b64 exec, -1
    """)
    a(f"""
    s_and_b32 s{sT0}, s{sMG}, 1
    s_lshl_b32 s{sT0}, s{sT0}, 1
    s_lshr_b32 s{sT1}, s{sMG}, 1
    s_xor_b32 s{sT1}, s{sT1}, s{sNH}
    s_add_u32 s{sT0}, s{sT0}, s{sT1}
    v_and_b32 v{T[0]}, 31, v{vL}
    v_lshrrev_b32 v{T[1]}, 5, v{vL}
    v_bfe_u32 v{T[2]}, v{vL}, 1, 3
    v_xor_b32 v{T[2]}, v{T[2]}, v{T[1]}
    v_lshlrev_b32 v{T[2]}, 4, v{T[2]}
    v_lshl_add_u32 v{T[2]}, v{T[0]}, 7, v{T[2]}
    s_lshl_b32 s{sT1}, s{sMG}, 12
    v_add_u32 v{T[2]}, s{sT1}, v{T[2]}
    s_lshl_b32 s{sT1}, s{sT0}, 5
    v_xor_b32 v{vXR[0]}, s{sT1}, v{T[2]}
    v_xor_b32 v{vXR[1]}, 32, v{vXR[0]}
    v_xor_b32 v{vXR[2]}, 64, v{vXR[0]}
    v_xor_b32 v{vXR[3]}, 0x60, v{vXR[0]}
    """)
    a(f"""
    v_bfe_u32 v{T[2]}, v{vL}, 2, 2
    v_lshl_add_u32 v{T[3]}, v{T[1]}, 3, v{T[2]}
    v_lshlrev_b32 v{T[3]}, 7, v{T[3]}
    v_lshrrev_b32 v{T[2]}, 1, v{T[2]}
    v_xor_b32 v{T[2]}, s{sNH}, v{T[2]}
    v_lshl_add_u32 v{T[3]}, v{T[2]}, 6, v{T[3]}
    v_bfe_u32 v{T[2]}, v{vL}, 4, 1
    v_lshl_add_u32 v{T[3]}, v{T[2]}, 5, v{T[3]}
    v_and_b32 v{T[2]}, 3, v{vL}
    v_lshl_add_u32 v{T[3]}, v{T[2]}, 3, v{T[3]}
    s_lshl_b32 s{sT1}, s{sT0}, 11
    v_xor_b32 v{vWR[0]}, s{sT1}, v{T[3]}
    v_xor_b32 v{vWR[1]}, 0x800, v{vWR[0]}
    v_xor_b32 v{vWR[2]}, 0x1000, v{vWR[0]}
    v_xor_b32 v{vWR[3]}, 0x1800, v{vWR[0]}
    v_lshlrev_b32 v{vD}, 4, v{vL}
    """)
    a(f"""
    v_lshrrev_b32 v{T[2]}, 4, v{vL}
    v_xor_b32 v{T[2]}, v{T[2]}, v{vL}
    v_and_b32 v{T[2]}, 1, v{T[2]}
    v_cmp_eq_u32 vcc, 0, v{T[2]}
    v_mov_b32 v{T[3]}, 0x3f803f80
    v_cndmask_b32 v{SEL}, 0, v{T[3]}, vcc
    v_mov_b32 v{SEL+1}, v{SEL}
    v_mov_b32 v{SEL+2}, v{SEL}
    v_mov_b32 v{SEL+3}, v{SEL}
    v_mov_b32 v{T[4]}, v{T[3]}
    v_mov_b32 v{T[5]}, v{T[3]}
    v_mov_b32 v{T[6]}, v{T[3]}
    v_mov_b32 v{T[7]}, v{T[3]}
    v_add_u32 v{T[0]}, {LONE}, v{vD}
    ds_write_b128 v{T[0]}, {vr(T[4])}
    """)
    for r in vS + vQ: a(f"v_mov_b32 v{r}, 0")
    lg.issue("misc", 1)
    if OPT["start"] == 0: emit_dma(dma_p0(2))
    elif OPT["start"] in (1, 3): emit_dma(dma_p0(1))
    def lds(lst):
        for ins, tag in lst: a(ins); lg.issue(tag)
    def run_slots(mfs, reads=(), valu=(), dmas=None, rstart=0, rper=2.0, vper=2, fill=None, fper=0):
        ri = vi = 0
        for k, (tags, ins) in enumerate(mfs):
            for tg in tags: W(lg.wait(tg))
            a(ins)
            if dmas and k in dmas: a.extend(dmas[k][0])
            for _ in range(vper):
                if vi < len(valu): a(valu[vi]); vi += 1
            if k >= rstart:
                lim = int(rper * (k - rstart + 1) + 0.999)
                while ri < len(reads) and ri < lim and reads[ri][2] <= k:
                    a(reads[ri][0]); lg.issue(reads[ri][1]); ri += 1
            if fill is not None:
                n = 0
                while fill and n < fper:
                    if fill[0][0] == 'at':
                        if cur["step"] < fill[0][1]: break
                        fill.pop(0); continue
                    n += do_fill(fill.pop(0))
            if dmas and k in dmas: a(dmas[k][1]); vm.issue(dmas[k][2])
        while vi < len(valu): a(valu[vi]); vi += 1
        while ri < len(reads): a(reads[ri][0]); lg.issue(reads[ri][1]); ri += 1
    cur = {"step": None}
    def do_fill(it):
        kind = it[0]
        if cur["step"] is not None and kind in "vl":
            for t_, r_ in Ins(it[1]).wr:
                if t_ == 'v' and r_ >= XF: assert (r_ - XF) // 4 < cur["step"], (it, cur)
        if kind == 'v': a(it[1]); return 2 if it[1].startswith(("v_exp", "v_rcp")) else 1
        if kind == 's': a(it[1]); return 0.5
        if kind == 'm': a(it[1]); vm.issue(it[2]); return 1
        if kind == 'l': a(it[1]); lg.issue(it[2]); return 0.5
        if kind == 'w': W(lg.wait(it[1])); return 0.5
        if kind == 'gap': return it[1]
        raise ValueError
    def F(text, tag=None):
        out = []
        lines = [l.strip() for l in text.strip().split("\n") if l.strip()]
        i = 0
        while i < len(lines):
            l = lines[i]
            if l.startswith("s_cmp"):
                out.append(('s', l + "\n" + lines[i + 1])); i += 2; continue
            if l.startswith("WAIT"): out.append(('w', l.split()[1]))
            elif l.startswith("ds_"):
                body, tg = l.split(" @"); out.append(('l', body, tg))
            elif l.startswith("s_"): out.append(('s', l))
            else: out.append(('v', l))
            i += 1
        return out
    def slot_adv(t_next, regs):
        d = SLOT if (t_next % 3) else -2 * SLOT
        return [f"v_add_u32 v{r}, {d & 0xffffffff}, v{r}" for r in regs]
    MF32 = "v_mfma_f32_32x32x16_bf16"; MF16 = "v_mfma_f32_16x16x32_bf16"

    a(f"""
    v_and_b32 v{vPO}, 3, v{vL}
    v_lshlrev_b32 v{vPO}, 7, v{vPO}
    s_lshr_b32 s{sPFo}, s2, 3
    s_lshl_b32 s{sPFo}, s{sPFo}, 3
    s_add_u32 s{sPFo}, s{sPFo}, s{sW}
    s_lshl_b32 s{sPFo}, s{sPFo}, 10
    s_and_b32 s{sT0}, s2, 1
    s_lshl_b32 s{sT0}, s{sT0}, 9
    s_add_u32 s{sPFo}, s{sPFo}, s{sT0}
    v_add_u32 v{vPF}, s{sPFo}, v{vPO}
    s_mov_b32 s{STP}, s8
    s_and_b32 s{STP+1}, s9, 0xffff
    s_mov_b32 s{STP+2}, {512*1024}
    s_mov_b32 s{STP+3}, 0x20000
    """)
    def wtouch(k):
        pre = []
        if k == 2: pre = [f"s_mov_b32 s{STP}, s16", f"s_and_b32 s{STP+1}, s17, 0xffff", f"s_mov_b32 s{STP+2}, {1792*1024}"]
        kk = k if k < 2 else k - 2
        pre += [f"s_mov_b32 m0, {LONE + 1280}", f"s_mov_b32 s{sPFo}, {kk << 18}"]
        a.extend(pre)
        a(f"buffer_load_dword v{vPF}, {sr(STP)}, s{sPFo} offen lds"); vm.issue("wpf")
    L_P = SCR; L_T = SCR + 3072; L_RS = LK + 8192
    def xaddr(cw, pr, tw, tr, sa, sb):
        return f"""
        v_lshrrev_b32 v{cw}, 4, v{vL}
        v_lshlrev_b32 v{cw}, 4, v{cw}
        v_and_b32 v{pr}, 1, v{vL}
        v_lshl_add_u32 v{cw}, v{pr}, 6, v{cw}
        s_lshl_b32 s{sa}, s{sNH}, 2
        s_add_u32 s{sa}, s{sa}, s{sMG}
        s_mul_i32 s{sa}, s{sa}, 384
        s_add_u32 s{sa}, s{sa}, {L_P}
        v_add_u32 v{cw}, s{sa}, v{cw}
        v_min_u32 v{pr}, 47, v{vL}
        v_lshlrev_b32 v{pr}, 3, v{pr}
        s_mul_i32 s{sa}, s{sNH}, 384
        s_add_u32 s{sa}, s{sa}, {L_T}
        v_add_u32 v{tw}, s{sa}, v{pr}
        s_mul_i32 s{sb}, s{sNH}, {4*384}
        s_add_u32 s{sb}, s{sb}, {L_P}
        v_add_u32 v{pr}, s{sb}, v{pr}
        v_lshrrev_b32 v{tr}, 5, v{vL}
        v_lshlrev_b32 v{tr}, 4, v{tr}
        v_add_u32 v{tr}, s{sa}, v{tr}
        """
    XA0 = [SPARE, SPARE + 1, SPARE + 2, SPARE + 3]
    a(xaddr(*XA0, sT0, sT1))
    def x_reduce(XA, tmp, extra=""):
        cw, pr, tw, tr = XA
        return F("\n".join(f"ds_read_b64 {vr(tmp+2*m,2)}, v{pr} offset:{m*384} @cp" for m in range(4)) + "\n" + extra) + [('gap', 5)] + F(f"""
        WAIT cp
        v_add_f32 v{tmp}, v{tmp}, v{tmp+2}
        v_add_f32 v{tmp+1}, v{tmp+1}, v{tmp+3}
        v_add_f32 v{tmp+4}, v{tmp+4}, v{tmp+6}
        v_add_f32 v{tmp+5}, v{tmp+5}, v{tmp+7}
        v_add_f32 v{tmp}, v{tmp}, v{tmp+4}
        v_add_f32 v{tmp+1}, v{tmp+1}, v{tmp+5}
        ds_write_b64 v{tw}, {vr(tmp,2)} @ct
        """)
    vNM, vVE, vA_, vC1, vC2 = vS[0], vQ[0], vS[1], vQ[1], vST[0]
    def fslot(n): return FR + (n % NF) * 4
    def rd_x(s): return [(f"ds_read_b128 {vr(xf(s))}, v{vXR[s & 3]}", ("x", s))]
    def rd_w0(s, u):
        f = fslot(3 * s + u)
        return [(f"ds_read_b64_tr_b16 {vr(f+2*hh, 2)}, v{vWR[s & 3]} offset:{16384+u*8192+hh*512}", ("w", s, u)) for hh in range(2)]
    def stat_ops(s):
        o = []
        for j in range(4):
            x = xf(s) + j
            o += [f"v_lshlrev_b32 v{vST[0]}, 16, v{x}", f"v_and_b32 v{vST[1]}, 0xffff0000, v{x}",
                  f"v_add_f32 v{vS[0]}, v{vS[0]}, v{vST[0]}", f"v_add_f32 v{vS[1]}, v{vS[1]}, v{vST[1]}",
                  f"v_fmac_f32 v{vQ[0]}, v{vST[0]}, v{vST[0]}", f"v_fmac_f32 v{vQ[1]}, v{vST[1]}, v{vST[1]}"]
        return o
    stamp(name="setup")
    W(vm.wait(("st", 0)))
    if OPT["start"] == 2: emit_dma(dma_p0(1))
    if OPT["start"] in (1, 2): emit_dma(dma_p0(2))
    a(lg.drain())
    a("s_barrier")
    stamp(name="wait st0")
    a.label("X_begin")
    for s in range(2):
        lds(rd_x(s))
        for u in range(3): lds(rd_w0(s, u))
    pend = []
    WTH = [3, 5, 7, 9, 11, 13, 15]
    for h in range(16):
        t = h >> 1; odd = h & 1
        valu = []
        if odd:
            if t < 7: valu = slot_adv(t + 1, [vXR[0], vWR[0], vXR[1], vWR[1], vXR[2], vWR[2], vXR[3], vWR[3]])
            else: valu = slot_adv(t + 1, vWR)
            g, tag = dma_p0(t + 3) if t + 3 < 8 else dma_p1(t + 3 - 8)
            pend = [(pre, ld, tag) for pre, ld in g]
        if h < 15: valu += stat_ops(2 * h)
        if h == 14: valu += stat_ops(30)
        dm = {}
        if h == 0 and OPT["start"] == 3:
            g, tag = dma_p0(2); dm = dict(zip([0, 2, 4, 6, 8], [(pre, ld, tag) for pre, ld in g]))
        if h == 0 and OPT["start"] == 4:
            g, tag = dma_p0(1); g2, tag2 = dma_p0(2)
            lst = [(pre, ld, tag) for pre, ld in g] + [(pre, ld, tag2) for pre, ld in g2[:4]]
            dm = dict(zip(range(9), lst)); late4 = (g2[4], tag2)
        if h >= 1:
            if odd and h < 15: now = pend[:3]; pend = pend[3:]; sl_ = [0, 2, 4]
            elif odd: now = pend; pend = []; sl_ = [0, 2, 3, 5]
            else: now = pend; pend = []; sl_ = [1, 5]
            dm = dict(zip(sl_, now))

        mfs = []
        for ss in range(2):
            s = 2 * h + ss
            for u in range(3):
                tags = ([("x", s)] if u == 0 else []) + [("w", s, u)]
                mfs.append((tags, f"{MF32} {vr(acc(u),16)}, {vr(fslot(3*s+u))}, {vr(xf(s))}, {vr(acc(u),16) if s else 0}"))
                if (s & 3) == 0:
                    mfs.append(([], f"{MF16} {vr(CA[u])}, {vr(fslot(3*s+u))}, {vr(SEL)}, {vr(CA[u]) if s else 0}"))
        free = {}
        idx = 0
        for ss in range(2):
            for u in range(3):
                idx += 2 if ((2 * h + ss) & 3) == 0 else 1
                free[(ss, u)] = idx - 1
        reads = []
        if h + 1 < 16:
            s0 = 2 * h + 2
            reads += [(i_, tg, 0) for i_, tg in rd_x(s0)]
            for u in range(3): reads += [(i_, tg, 0) for i_, tg in rd_w0(s0, u)]
            reads += [(i_, tg, 0) for i_, tg in rd_x(s0 + 1)]
            for u in range(3): reads += [(i_, tg, free[(0, u)]) for i_, tg in rd_w0(s0 + 1, u)]
        if h == 7:
            rare([f"s_cmp_eq_u32 s{sW}, 0"], f"buffer_load_dword v{vPOLL}, off, {sr(SDBG)}, 0")
            vm.mark("nonce")
        if OPT["wpf"] and h in WTH: wtouch(WTH.index(h))
        fl = None
        if h == 14:
            mfs[4] = (mfs[4][0] + [("x", 30)], mfs[4][1])
        if h == 15:
            TR = fslot(3 * 29)
            assert fslot(3*29+1) == TR + 4
            fl = x_reduce(XA0, TR, f"ds_read_b64 v[{vQ[0]}:{vQ[1]}], v{vX0} @cp") + F(f"""
            v_add_f32 v{vS[0]}, v{vS[0]}, v{vQ[0]}
            v_add_f32 v{vS[1]}, v{vS[1]}, v{vQ[1]}
            v_mul_f32 v{vNM}, {hx(-1.0/512)}, v{vS[0]}
            v_mul_f32 v{vQ[1]}, v{vNM}, v{vNM}
            v_mov_b32 v{vST[1]}, {hx(1.0/512)}
            v_fma_f32 v{vVE}, v{vS[1]}, v{vST[1]}, -v{vQ[1]}
            v_max_f32 v{vVE}, 0, v{vVE}
            v_add_f32 v{vVE}, {hx(1e-5)}, v{vVE}
            v_rsq_f32 v{vA_}, v{vVE}
            v_mul_f32 v{vC1}, {hx(GK1)}, v{vA_}
            v_mul_f32 v{vC2}, v{vA_}, v{vA_}
            v_mul_f32 v{vC2}, v{vC2}, v{vA_}
            v_mul_f32 v{vC2}, {hx(GK2)}, v{vC2}
            v_and_b32 v{vX0}, 31, v{vL}
            v_lshrrev_b32 v{vX1}, 5, v{vL}
            v_lshlrev_b32 v{vX1}, 4, v{vX1}
            v_lshl_add_u32 v{vX0}, v{vX0}, 5, v{vX1}
            s_lshl_b32 s{sT0}, s{sRB}, 12
            s_lshl_b32 s{sT1}, s{sMG}, 10
            s_add_u32 s{sT0}, s{sT0}, s{sT1}
            v_add_u32 v{vX0}, s{sT0}, v{vX0}
            """)
        run_slots(mfs, reads, valu, dm, rstart=0, rper=(3.0 if odd else 2.0), vper=(6 if (odd or h == 14) else 3), fill=fl, fper=6)
        while fl: do_fill(fl.pop(0))
        if h == 14:
            a(f"""
            v_add_f32 v{vS[0]}, v{vS[0]}, v{vS[1]}
            v_add_f32 v{vQ[0]}, v{vQ[0]}, v{vQ[1]}
            v_mov_b32 v{vS[1]}, v{vS[0]}
            v_mov_b32 v{vQ[1]}, v{vQ[0]}
            v_and_b32 v{vX0}, 31, v{vL}
            v_lshlrev_b32 v{vX0}, 3, v{vX0}
            v_permlane32_swap_b32 v{vS[0]}, v{vS[1]}
            v_permlane32_swap_b32 v{vQ[0]}, v{vQ[1]}
            s_lshl_b32 s{sT0}, s{sW}, 8
            s_add_u32 s{sT0}, s{sT0}, {L_RS}
            v_add_u32 v{vX0}, s{sT0}, v{vX0}
            v_add_f32 v{vS[0]}, v{vS[0]}, v{vS[1]}
            v_add_f32 v{vS[1]}, v{vQ[0]}, v{vQ[1]}
            ds_write_b128 v{XA0[0]}, {vr(CA[0])}
            ds_write_b128 v{XA0[0]}, {vr(CA[1])} offset:128
            ds_write_b128 v{XA0[0]}, {vr(CA[2])} offset:256
            ds_write_b64 v{vX0}, v[{vS[0]}:{vS[1]}]
            v_xor_b32 v{vX0}, 0x100, v{vX0}
            """)
            lg.issue("misc", 4)
        if h == 0 and OPT["start"] == 4:
            a.extend(late4[0][0]); a(late4[0][1]); vm.issue(late4[1])
        if not odd:
            a(lg.drain())
            W(vm.wait(("st", t + 1)))
            a("s_barrier")
    a.label("X_end")
    stamp(name="pass0")
    fillS = F(f"""
    s_lshl_b32 s{sFL}, s{sRB}, 4
    s_lshl_b32 s{sT1}, s{sCGQ}, 2
    s_add_u32 s{sT1}, s{sT1}, s{sCGL}
    s_add_u32 s{sFL}, s{sFL}, s{sT1}
    s_lshr_b32 s{sQB}, s{sRB}, 1
    s_and_b32 s{sHD}, s{sFL}, 31
    s_lshl_b32 s{sMT}, s{sCGQ}, 3
    s_add_u32 s{sMT}, s{sMT}, s{sRL}
    s_and_b32 s{sNT}, s2, 1
    s_lshl_b32 s{sNT}, s{sNT}, 2
    s_add_u32 s{sNT}, s{sNT}, s{sCGL}
    s_and_b32 s{sCT}, s{sW}, 3
    s_lshr_b32 s{sKH}, s{sW}, 2
    s_sub_u32 s{sJS}, 8, s{sW}
    s_cmp_eq_u32 s{sQB}, 0
    s_cselect_b32 s{sJS}, s{sJS}, 0
    """)
    E = 40
    vQA = vX0
    rare([f"s_cmp_eq_u32 s{sW}, 0"], f"""
    {vm.peek("nonce")}
    s_mov_b32 s{sCNT}, 0
    L_nc:
    v_readfirstlane_b32 s{sTAG}, v{vPOLL}
    s_nop 3
    s_cmp_lg_u32 s{sTAG}, 0
    s_cbranch_scc1 L_nd
    s_add_u32 s{sCNT}, s{sCNT}, 1
    s_cmp_gt_u32 s{sCNT}, 0x8000
    s_cbranch_scc1 L_nd
    s_sleep 2
    buffer_load_dword v{vPOLL}, off, {sr(SDBG)}, 0{SC}
    s_waitcnt vmcnt(0)
    s_branch L_nc
    L_nd:
    """)
    def cs_fold(nu, accf, tmp, tr):
        def rd(u):
            for q in range(4):
                a(f"ds_read_b128 {vr(tmp+16*(u&1)+4*q)}, v{tr} offset:{u*128+q*32}"); lg.issue(("cf", u))
        rd(0); rd(1)
        for u in range(nu):
            W(lg.wait(("cf", u)))
            for r in range(16): a(f"v_fmac_f32 v{accf(u)+r}, v{vNM}, v{tmp+16*(u&1)+r}")
            if u + 2 < nu: rd(u + 2)
    cs_fold(3, acc, E, XA0[3])
    stamp(name="E0 serial")
    def f_qkv(x, uadd, tmp, tag):
        o = [('s', f"s_add_u32 s{sE0}, s{sU0}, {uadd}"), ('s', f"s_cmp_lt_u32 s{sE0}, 8\ns_cselect_b32 s{sSC0}, {hx(QSCALE)}, 1.0"),
             ('s', f"s_lshl_b32 s{sE0}, s{sE0}, 2"), ('s', f"s_lshl_b32 s{sE1}, s{sNH}, 1"), ('s', f"s_add_u32 s{sE0}, s{sE0}, s{sE1}"),
             ('s', f"s_lshl_b32 s{sE0}, s{sE0}, 16"), ('s', f"s_add_u32 s{sE0}, s{sE0}, {WS_QKV}"), ('s', f"s_add_u32 s{sE1}, s{sE0}, 0x10000"),
             ('v', f"v_mul_f32 v{tmp+8}, s{sSC0}, v{vA_}")]
        for e in range(2):
            for r in range(8): o.append(('v', f"v_mul_f32 v{x+8*e+r}, v{tmp+8}, v{x+8*e+r}"))
            for r in range(4): o.append(('v', f"v_cvt_pk_bf16_f32 v{tmp+4*e+r}, v{x+8*e+2*r}, v{x+8*e+2*r+1}"))
            o.append(('m', f"buffer_store_dwordx4 {vr(tmp+4*e)}, v{vQA}, {sr(SWS)}, s{sE0 if e == 0 else sE1} offen{SC}", tag))
        return o
    def f_h(g, u, spair, tmp, tag):
        o = [('s', f"s_lshl_b32 s{sE0}, s{spair}, 1"), ('s', f"s_add_u32 s{sE0}, s{sE0}, s{sNH}"), ('s', f"s_lshl_b32 s{sE0}, s{sE0}, 7"),
             ('s', f"s_lshl_b32 s{sE1}, s{sRB}, 2"), ('s', f"s_add_u32 s{sE0}, s{sE0}, s{sE1}"),
             ('s', f"s_add_u32 s{sE0}, s{sE0}, s{sMG}"), ('s', f"s_lshl_b32 s{sE0}, s{sE0}, 10"), ('s', f"s_add_u32 s{sE1}, s{sE0}, 0x10000")]
        t = tmp + 8
        for e in range(2):
            for q in range(2):
                G_, U_ = g + 8 * e + 4 * q, u + 8 * e + 4 * q
                for r in range(4): o.append(('v', f"v_mul_f32 v{t+r}, v{G_+r}, v{G_+r}"))
                for r in range(4): o.append(('v', f"v_fma_f32 v{t+r}, v{t+r}, v{vC2}, v{vC1}"))
                for r in range(4): o.append(('v', f"v_mul_f32 v{t+r}, v{t+r}, v{G_+r}"))
                for r in range(4): o.append(('v', f"v_exp_f32 v{t+r}, v{t+r}"))
                for r in range(4): o.append(('v', f"v_mul_f32 v{G_+r}, v{G_+r}, v{U_+r}"))
                for r in range(4): o.append(('v', f"v_fma_f32 v{t+r}, v{t+r}, v{vVE}, v{vVE}"))
                for r in range(4): o.append(('v', f"v_rcp_f32 v{t+r}, v{t+r}"))
                for r in range(4): o.append(('v', f"v_mul_f32 v{G_+r}, v{G_+r}, v{t+r}"))
                o.append(('v', f"v_cvt_pk_bf16_f32 v{tmp+4*e+2*q}, v{G_}, v{G_+1}"))
                o.append(('v', f"v_cvt_pk_bf16_f32 v{tmp+4*e+2*q+1}, v{G_+2}, v{G_+3}"))
            o.append(('m', f"buffer_store_dwordx4 {vr(tmp+4*e)}, v{vD}, {sr(SWS)}, s{sE0 if e == 0 else sE1} offen{SC}", tag))
        return o
    vWS, vWS2 = vWq, vX1
    sRE, sRLt, sB6, sB8 = sR2, sWQ, sWL, sCGQ
    fillS += F(f"""
    v_and_b32 v{vWS2}, 7, v{vL}
    v_bfe_u32 v{vST[1]}, v{vL}, 4, 1
    v_lshlrev_b32 v{vST[1]}, 2, v{vST[1]}
    v_xor_b32 v{vWS2}, v{vWS2}, v{vST[1]}
    v_lshlrev_b32 v{vWS2}, 4, v{vWS2}
    v_lshrrev_b32 v{vST[1]}, 3, v{vL}
    v_lshl_add_u32 v{vWS}, v{vST[1]}, 10, v{vWS2}
    s_lshl_b32 s{sT1}, s{sNT}, 7
    s_lshl_b32 s{sT2}, s{sCT}, 14
    s_add_u32 s{sT1}, s{sT1}, s{sT2}
    v_add_u32 v{vWS}, s{sT1}, v{vWS}
    v_add_u32 v{vWS2}, {8192-1024}, v{vWS}
    s_mov_b32 s{SWD}, s16
    s_and_b32 s{SWD+1}, s17, 0xffff
    s_mov_b32 s{SWD+2}, {1792*1024}
    s_mov_b32 s{SWO}, s8
    s_and_b32 s{SWO+1}, s9, 0xffff
    s_mov_b32 s{SWO+2}, {512*1024}
    s_mov_b32 s{SOUT}, s18
    s_and_b32 s{SOUT+1}, s19, 0xffff
    s_mov_b32 s{SOUT+2}, {2048*1024}
    s_lshl_b32 s{sAO}, s{sMT}, 11
    s_lshl_b32 s{sT1}, s{sCT}, 16
    s_add_u32 s{sAO}, s{sAO}, s{sT1}
    s_lshl_b32 s{sT1}, s{sCGL}, 1
    s_add_u32 s{sRLt}, s{sR2}, s{sT1}
    s_and_b32 s{sRLt}, s{sRLt}, {R2MASK}
    s_sub_u32 s{sT1}, s{sRLt}, 6
    s_min_u32 s{sRE}, s{sRLt}, s{sT1}
    s_mul_i32 s{sB6}, s{sKH}, 6
    s_lshl_b32 s{sB8}, s{sKH}, 3
    s_add_u32 s{sB8}, s{sB8}, 12
    """)
    AREAS = [0, SLOT, 2 * SLOT]
    def unit_calc(sg):
        if sg < 6:
            return [f"s_add_u32 s{sT2}, s{sRE}, {sg}", f"s_sub_u32 s{sT3}, s{sT2}, 6", f"s_min_u32 s{sT2}, s{sT2}, s{sT3}", f"s_add_u32 s{sT2}, s{sT2}, s{sB6}"]
        return [f"s_add_u32 s{sT2}, s{sRLt}, {sg-6}", f"s_and_b32 s{sT2}, s{sT2}, 7", f"s_add_u32 s{sT2}, s{sT2}, s{sB8}"]
    def wdma(sg):
        ar = AREAS[sg % 3]
        S = SWD if sg < 14 else SWO
        pre = unit_calc(sg) + [f"s_add_u32 m0, s{sLX}, {ar+16384}", f"s_lshl_b32 s{sT0}, s{sT2}, 16"]
        return [(pre, f"buffer_load_dwordx4 v{vWS}, {sr(S)}, s{sT0} offen lds"),
                ([], f"buffer_load_dwordx4 v{vWS2}, {sr(S)}, s{sT0} offen offset:1024 lds")], ("g", sg)
    def wodma(pz):
        ar = AREAS[pz]; g = []
        for q in range(2):
            pre = [f"s_add_u32 m0, s{sLX}, {ar+q*16384}", f"s_lshl_b32 s{sT0}, s{sKH}, 18", f"s_add_u32 s{sT0}, s{sT0}, {(2*pz+q) << 16}"]
            g += [(pre, f"buffer_load_dwordx4 v{vWS}, {sr(SWO)}, s{sT0} offen lds"),
                  ([], f"buffer_load_dwordx4 v{vWS2}, {sr(SWO)}, s{sT0} offen offset:1024 lds")]
        return g, ("wo", pz)
    def odma(pz, ar):
        g = []
        for q in range(2):
            pre = [f"s_add_u32 m0, s{sLX}, {ar+q*16384}", f"s_lshl_b32 s{sT0}, s{sKH}, 20", f"s_add_u32 s{sT0}, s{sT0}, s{sAO}",
                   f"s_add_u32 s{sT0}, s{sT0}, {WS_O + ((2*pz+q) << 18)}"]
            g += [(pre, f"buffer_load_dwordx4 v{vD}, {sr(SWS)}, s{sT0} offen lds"),
                  ([], f"buffer_load_dwordx4 v{vD}, {sr(SWS)}, s{sT0} offen offset:1024 lds")]
        return g, ("od", pz)
    def adma(sg, calc=True):
        ar = AREAS[sg % 3]
        pre = (unit_calc(sg) if calc else []) + [f"s_add_u32 m0, s{sLX}, {ar}", f"s_lshl_b32 s{sT0}, s{sT2}, 18", f"s_add_u32 s{sT0}, s{sT0}, s{sAO}"]
        if sg >= 14: pre.append(f"s_add_u32 s{sT0}, s{sT0}, {WS_O}")
        return [(pre, f"buffer_load_dwordx4 v{vD}, {sr(SWS)}, s{sT0} offen lds"),
                ([], f"buffer_load_dwordx4 v{vD}, {sr(SWS)}, s{sT0} offen offset:1024 lds")], ("g", sg)
    W0 = [f"s_cmp_eq_u32 s{sW}, 0"]
    def publish(level):
        if level < 4:
            adr = f"""s_lshr_b32 s92, s{sFL}, 4
            s_lshl_b32 s92, s92, 7
            s_and_b32 s93, s{sFL}, 15
            s_lshl_b32 s93, s93, 2
            s_add_u32 s92, s92, s93"""
        else:
            adr = f"s_lshl_b32 s92, s{sFL}, 2"
        rare(W0, f"""
        {adr}
        s_add_u32 s92, s92, {WS_F + (level-1)*4096}
        v_mov_b32 v{vPOLL}, s{sTAG}
        s_mov_b64 exec, 1
        buffer_store_dword v{vPOLL}, off, {sr(SWS)}, s92{SC}
        s_mov_b64 exec, -1
        """)
    def poll_addr(kind):
        if kind == 1:
            return f"""v_lshrrev_b32 v{vPO}, 4, v{vL}
            v_lshlrev_b32 v{vPO}, 7, v{vPO}
            v_and_b32 v{vPOLL}, 15, v{vL}
            v_lshl_add_u32 v{vPO}, v{vPOLL}, 2, v{vPO}"""
        m = 15 if kind == 2 else 31
        return f"""v_and_b32 v{vPO}, {m}, v{vL}
            v_lshlrev_b32 v{vPO}, 2, v{vPO}"""
    def poll_issue(tag, sbase, kind):
        rare(W0, f"""
        {poll_addr(kind)}
        buffer_load_dword v{vPOLL}, v{vPO}, {sr(SWS)}, s{sbase} offen{SC}
        """)
        vm.mark(tag)
    def poll_check(tag, sbase, kind):
        n = U()
        rare(W0, f"""
        {vm.peek(tag)}
        s_mov_b32 s{sCNT}, 0
        L_pl{n}:
        v_cmp_ne_u32 vcc, s{sTAG}, v{vPOLL}
        s_nop 4
        s_cbranch_vccz L_pd{n}
        s_add_u32 s{sCNT}, s{sCNT}, 1
        s_cmp_gt_u32 s{sCNT}, 0x8000
        s_cbranch_scc1 L_pd{n}
        s_sleep 2
        {poll_addr(kind)}
        buffer_load_dword v{vPOLL}, v{vPO}, {sr(SWS)}, s{sbase} offen{SC}
        s_waitcnt vmcnt(0)
        s_branch L_pl{n}
        L_pd{n}:
        """)
        fstamp(f"poll {tag}")
    sPB = sXB
    for it in f_qkv(acc(0), 0, E, "eq"): do_fill(it)
    def acc1_init():
        pass
    R1 = [36, SPARE, 6, CA[2], xf(0), xf(1)]
    def f1(s, u): return R1[(2 * s + u) % 6]
    def acc1(u): return ACC1 + 16 * u
    def rd_w1(s):
        c2 = (s >> 2) & 1
        return [(f"ds_read_b64_tr_b16 {vr(f1(s,u)+2*hh,2)}, v{vWR[s & 3]} offset:{c2*16384+u*8192+hh*512}", ("w1", s, u)) for u in range(2) for hh in range(2)]
    PFS = [0, 3, 10, 13, 19]
    def pass1(fill, nq):
        lds(rd_w1(0)); lds(rd_w1(1))
        early = list(fillS)
        for s in range(32):
            Tq, r8 = s >> 3, s & 7; g = 8 + Tq
            cur["step"] = s
            valu = []; dm = {}
            if r8 == 6 and Tq < 3:
                a(lg.drain())
                f2stamp(f"p1 mm{Tq}")
                if Tq == 0:
                    while early: do_fill(early.pop(0))
                if Tq == 1: W(vm.wait("eq"))
                W(vm.wait(("st", g + 1)))
                f2stamp(f"p1 vmwait{Tq}")
                a("s_barrier")
                f2stamp(f"p1 bar{Tq}")
                if OPT["wpf"] and Tq < 2: wtouch(7 + Tq)
                if Tq == 1: publish(1)
                valu = slot_adv(g + 1, vWR)
                if Tq <= OPT["early_b"]:
                    gr, tag = dma_p1(3) if Tq == 0 else wodma(Tq - 1)
                    pass1.pend = [(pre, ld, tag) for pre, ld in gr]
            if s == 30:
                assert not fill, "fillers must be done before the exchange barrier"
                a(f"ds_write_b128 v{XA1[0]}, {vr(CA[0])}")
                a(f"ds_write_b128 v{XA1[0]}, {vr(CA[1])} offset:128")
                poll_check("p1", sPB, 1)
                if "eh" in vm.q: W(vm.wait("eh"))
                a(lg.drain())
                a("s_barrier")
                publish(2)
                kv_loads()
                fill.extend(x_reduce(XA1, xf(4)))
            if getattr(pass1, "pend", None) and (r8 in (6, 7, 0, 1)):
                dm = {1: pass1.pend.pop(0)}
            mfs = []
            for u in range(2):
                mfs.append(([("w1", s, u)], f"{MF32} {vr(acc1(u),16)}, {vr(f1(s,u))}, {vr(xf(s))}, {vr(acc1(u),16) if s else 0}"))
                if (s & 3) == 0:
                    mfs.append(([], f"{MF16} {vr(CA[u])}, {vr(f1(s,u))}, {vr(SEL)}, {vr(CA[u]) if s else 0}"))
            last = len(mfs) - 1
            reads = []
            if s + 2 < 32:
                e = last if s == 0 else 0
                if s == 0:
                    reads = [(i_, tg, last) for i_, tg in rd_w1(2)[:2]]
                elif s == 1:
                    reads = [(i_, tg, last) for i_, tg in rd_w1(2)[2:]] + [(i_, tg, last) for i_, tg in rd_w1(3)]
                else:
                    reads = [(i_, tg, 0) for i_, tg in rd_w1(s + 2)]
            run_slots(mfs, reads, valu, dm, rper=2.0 if s > 1 else 8.0, vper=4, fill=(early if early else (fill if s >= 5 else None)), fper=(4 if early else OPT["fper"]))
            if s == 25:
                a(f"""
                s_lshl_b32 s{sPB}, s{sQB}, 8
                s_sub_i32 s{sPB}, s{sPB}, 256
                s_max_i32 s{sPB}, s{sPB}, 0
                s_add_u32 s{sPB}, s{sPB}, {WS_F}
                """)
                poll_issue("p1", sPB, 1)
        cur["step"] = None
        print("fill left after pass1:", len(fill), file=sys.stderr)
        while fill: do_fill(fill.pop(0))
    vM = 1
    P2r = 8; KF = [16, 20]; VT = 24; P = 32; S = [40, 56]; NEG = 80; O = 96
    ACC2, ACC3 = 112, 128
    GF = 144
    vAR, vWRd = 176, 177
    vAa = [178, 179]; vWa = [180, 181]
    vXO = 182; vVR = 183; XR = 184; vVS = 188; vKR = 189; TM = 40
    t0, t1, t2 = 190, 191, 175
    MP = [4 + 2 * i for i in range(10)] + [40, 42, 44, 46] + [64, 66]
    fillM = F(f"""
    v_and_b32 v{t0}, 31, v{vL}
    v_lshrrev_b32 v{t1}, 5, v{vL}
    v_lshlrev_b32 v{t2}, 2, v{t1}
    v_sub_u32 v{t2}, v{t0}, v{t2}
    """ + "\n".join(f"v_cmp_le_i32 s[{MP[r]}:{MP[r]+1}], {8*(r>>2)+(r&3)}, v{t2}" for r in range(16)) + f"""
    v_lshlrev_b32 v{vXO}, 10, v{t0}
    v_lshl_add_u32 v{vXO}, v{t1}, 3, v{vXO}
    v_lshlrev_b32 v{vKR}, 4, v{t1}
    v_lshl_add_u32 v{vKR}, v{t0}, 5, v{vKR}
    v_bfe_u32 v{t0}, v{vL}, 2, 2
    v_lshl_add_u32 v{t0}, v{t1}, 2, v{t0}
    v_and_b32 v{t2}, 1, v{vL}
    v_lshlrev_b32 v{t2}, 4, v{t2}
    v_lshl_add_u32 v{vVR}, v{t0}, 5, v{t2}
    v_bfe_u32 v{t2}, v{vL}, 1, 1
    v_lshl_add_u32 v{vVR}, v{t2}, 3, v{vVR}
    v_lshlrev_b32 v{vWRd}, 7, v{t0}
    v_bfe_u32 v{t2}, v{vL}, 3, 1
    s_bfe_u32 s{sE0}, s{sW}, 0x10001
    v_xor_b32 v{t2}, s{sE0}, v{t2}
    v_lshl_add_u32 v{vWRd}, v{t2}, 6, v{vWRd}
    v_bfe_u32 v{t2}, v{vL}, 4, 1
    v_xor_b32 v{t2}, s{sKH}, v{t2}
    v_lshl_add_u32 v{vWRd}, v{t2}, 5, v{vWRd}
    v_and_b32 v{t2}, 3, v{vL}
    v_lshl_add_u32 v{vWRd}, v{t2}, 3, v{vWRd}
    s_lshl_b32 s{sT1}, s{sKH}, 13
    s_add_u32 s{sT2}, s{sT1}, 16384
    v_add_u32 v{vWRd}, s{sT2}, v{vWRd}
    s_lshl_b32 s{sT2}, s{sNH}, 10
    s_add_u32 s{sT1}, s{sT1}, s{sT2}
    v_add_u32 v{vAR}, s{sT1}, v{vD}
    v_bfe_u32 v{t2}, v{vL}, 4, 1
    v_xor_b32 v{t2}, 1, v{t2}
    v_lshlrev_b32 v{vVS}, 10, v{t2}
    s_add_u32 s{sT1}, s{sLW}, {(LV - LONE) & 0xffffffff}
    v_mul_lo_u32 v{t0}, v{t2}, s{sT1}
    v_add_u32 v{vVR}, v{vVR}, v{t0}
    v_add_u32 v{vVR}, {LONE}, v{vVR}
    s_lshl_b32 s{sT1}, s{sMT}, 16
    s_lshl_b32 s{sT2}, s{sNH}, 15
    s_add_u32 s{sT1}, s{sT1}, s{sT2}
    s_lshl_b32 s{sT2}, s{sNT}, 7
    s_add_u32 s{sT1}, s{sT1}, s{sT2}
    s_lshl_b32 s{sT2}, s{sE0}, 6
    s_add_u32 s{sT1}, s{sT1}, s{sT2}
    s_lshl_b32 s{sT2}, s{sKH}, 5
    s_add_u32 s{sT1}, s{sT1}, s{sT2}
    v_add_u32 v{vXO}, s{sT1}, v{vXO}
    v_mov_b32 v{vM}, {NEGBIG}
    v_add_u32 v{vWa[0]}, {(-16384) & 0xffffffff}, v{vWRd}
    v_add_u32 v{vWa[1]}, {SLOT-16384}, v{vWRd}
    """)
    QF = 136
    def kv_loads():
        a(f"""
        s_lshl_b32 s{sT0}, s{sQB}, 8
        s_lshl_b32 s{sT1}, s{sW}, 6
        s_add_u32 s{sT1}, s{sT1}, s{sT0}
        s_sub_i32 s{sT1}, s{sT1}, 256
        s_max_i32 s{sT1}, s{sT1}, 0
        s_lshl_b32 s{sT1}, s{sT1}, 5
        s_lshl_b32 s{sT2}, s{sHD}, 16
        s_add_u32 m0, s{sLX}, {LK}
        s_add_u32 s{sT1}, s{sT1}, s{sT2}
        s_add_u32 s{sT3}, s{sT1}, {WS_QKV + 64*65536}
        s_add_u32 s{sT1}, s{sT1}, {WS_QKV + 32*65536}
        buffer_load_dwordx4 v{vD}, {sr(SWS)}, s{sT1} offen lds
        buffer_load_dwordx4 v{vD}, {sr(SWS)}, s{sT1} offen offset:1024 lds
        s_add_u32 m0, s{sLX}, {LV}
        s_lshl_b32 s{sT1}, s{sW}, 5
        buffer_load_dwordx4 v{vD}, {sr(SWS)}, s{sT3} offen lds
        buffer_load_dwordx4 v{vD}, {sr(SWS)}, s{sT3} offen offset:1024 lds
        s_add_u32 s{sT1}, s{sT1}, s{sT0}
        s_lshl_b32 s{sT1}, s{sT1}, 5
        s_add_u32 s{sT1}, s{sT1}, s{sT2}
        s_add_u32 s{sT1}, s{sT1}, {WS_QKV}
        buffer_load_dwordx4 {vr(QF)}, v{vKR}, {sr(SWS)}, s{sT1} offen
        s_add_u32 s{sT0}, s{sLW}, {LK}
        v_add_u32 v{vKR}, s{sT0}, v{vKR}
        """)
        vm.issue("kv", 5)
        a(f"""
        buffer_load_dwordx2 v[{XR}:{XR+1}], v{vXO}, {sr(SX)}, 0 offen
        buffer_load_dwordx2 v[{XR+2}:{XR+3}], v{vXO}, {sr(SX)}, 0 offen offset:16
        """)
        vm.issue("x", 2)

    XA1 = [172, 173, 174, 167]
    fillM = F(xaddr(*XA1, sT1, sT2)) + fillM
    TF = xf(2)
    fillA = f_h(acc(1), acc(2), sP0, TF, "eh") + [('at', 17)] + list(fillM)
    fillB = [('at', 17)] + list(fillM)
    sv, sl0, sn = vm.save(), lg.save(), nstamp[0]
    a(f"s_cmp_eq_u32 s{sTB}, 1")
    a("s_cbranch_scc1 L_p1b")
    acc1_init()
    pass1.pend = []
    pass1(fillA, 2)
    stA = vm.save()
    a("s_branch L_e1")
    a.label("L_p1b")
    vm.restore(sv); lg.restore(sl0); nstamp[0] = sn; del SNAMES[sn:]
    for it in f_qkv(acc(1), 1, E + 12, "eq") + f_qkv(acc(2), 2, E, "eq"): do_fill(it)
    acc1_init()
    pass1.pend = []
    pass1(fillB, 6)
    stB = vm.save()
    a.label("L_e1")
    qa = [t for t in stA[0] if t not in ("eq", "eh")]; qb_ = [t for t in stB[0] if t not in ("eq", "eh")]
    if len(qb_) > len(qa): qa, qb_ = qb_, qa
    assert qa[len(qa) - len(qb_):] == qb_, (qa, qb_)
    vm.q = list(qa)
    vm.total = 1000; vm.marks = {}
    stamp(name="pass1")
    f3stamp("e1 kv")
    e1d = []
    assert OPT["early_b"] == 2
    gr, tag = wdma(2); e1d += [(pre, ld, tag) for pre, ld in gr]
    cs_fold(2, acc1, ACC, XA1[3])
    f3stamp("e1 fold")
    fe1 = f_h(acc1(0), acc1(1), sPF, ACC, "e1")
    st_last = [it for it in fe1 if it[0] == 'm']
    fe1 = [it for it in fe1 if it[0] != 'm']
    gap = max(4, len(fe1) // (len(e1d) + 1))
    for k, it in enumerate(fe1):
        if e1d and k % gap == 1: a.extend(e1d[0][0])
        do_fill(it)
        if e1d and k % gap == 2: a(e1d[0][1]); vm.issue(e1d[0][2]); e1d.pop(0)
    assert not e1d
    a(f"""
    s_lshr_b32 s{sPB}, s{sMT}, 1
    s_lshl_b32 s{sPB}, s{sPB}, 7
    s_add_u32 s{sPB}, s{sPB}, {WS_F + 4096}
    """)
    poll_issue("pe", sPB, 2)
    for it in st_last: do_fill(it)
    stamp(name="E1")
    def ga(n): return GF + (n % 4) * 8
    def gw(n): return GF + (n % 4) * 8 + 4
    atoms = []
    def AT(fn): atoms.append(fn)
    def at_l(ins, tag): AT(lambda: (a(ins), lg.issue(tag)))
    def at_dma(pre, ld, tag):
        if pre: AT(lambda: a.extend(pre))
        AT(lambda: (a(ld), vm.issue(tag)))
    def g_reads(n):
        sg, i = n >> 2, n & 3
        at_l(f"ds_read_b128 {vr(ga(n))}, v{vAa[sg & 1]} offset:{i*2048}", ("ga", n))
        for hh in range(2):
            at_l(f"ds_read_b64_tr_b16 {vr(gw(n)+2*hh,2)}, v{vWa[sg & 1]} offset:{i*2048+hh*1024}", ("ga", n))
    state = {"o_done": False, "pub4": None}
    WOF = 192
    OAR = [LK, AREAS[2] if OPT["ck4"] == 12 else AREAS[0]]
    def sync_extra(sg):
        if sg == OPT["ck3"]: poll_check("p2", sPB, 2)
        if sg == OPT["ck4"]: poll_check("p3", sPB, 3)
        pub = None
        if sg == OPT["pub3"]: W(vm.wait("e1")); pub = 3
        if state["o_done"] and state["pub4"] is None:
            state["o_cnt"] = state.get("o_cnt", 0) + 1
            if state["o_cnt"] == OPT["odel"]: W(vm.wait("o")); pub = 4; state["pub4"] = sg
        return pub
    def sync_after(sg, pub):
        if pub: publish(pub)
        if sg == OPT["ck3"] - 1:
            a(f"s_add_u32 s{sPB}, s{sPB}, 4096")
            poll_issue("p2", sPB, 2)
        if sg == OPT["ck4"] - 1:
            assert state["pub4"] is not None, "o must be published before polling"
            a(f"""
            s_lshr_b32 s{sPB}, s{sMT}, 2
            s_lshl_b32 s{sPB}, s{sPB}, 7
            s_add_u32 s{sPB}, s{sPB}, {WS_F + 3*4096}
            """)
            poll_issue("p3", sPB, 3)
    def g_bar(sg):
        def f():
            if sg > 0: W(lg.wait(("ga", 4 * sg - 1)))
            fstamp(f"->g{sg}")
            pub = sync_extra(sg)
            if sg < 14: W(vm.wait(("g", sg)))
            a("s_barrier")
            fstamp(f"bar g{sg}")
            sync_after(sg, pub)
            if sg < 14:
                a(f"v_add_u32 v{vAa[sg & 1]}, {AREAS[sg % 3]}, v{vAR}")
                a(f"v_add_u32 v{vWa[sg & 1]}, {AREAS[sg % 3]}, v{vWRd}")
        AT(f)
    nfirst = 0
    for sg in (2, 0, 1):
        lst = (wdma(sg)[0] if sg < 2 else []) + adma(sg, calc=(sg == 2))[0]
        for pre, ld in lst: at_dma(pre, ld, ("g", sg))
    nfirst = len(atoms)
    for _ in range(OPT["gdelay"]): AT(lambda: None)
    g_bar(0); g_reads(0); g_reads(1)
    pend = []
    for n in range(56):
        sg, i = n >> 2, n & 3
        if i == 2:
            g_bar(sg + 1)
            s3 = sg + 3
            assert not pend
            if s3 < 14:
                assert s3 < 6 or sg + 1 >= OPT["ck3"]
                pend = [(pre, ld, ("g", s3)) for pre, ld in wdma(s3)[0] + adma(s3, calc=False)[0]]
            if sg + 1 == OPT["ck4"]:
                for pz in range(2): pend += [(pre, ld, ("od", pz)) for pre, ld in odma(pz, OAR[pz])[0]]
        c = vr(ACC2, 16) if n else "0"
        def mf(n=n, c=c):
            W(lg.wait(("ga", n)))
            a(f"{MF32} {vr(ACC2,16)}, {vr(gw(n))}, {vr(ga(n))}, {c}")
        AT(mf)
        if n + 2 < 56: g_reads(n + 2)
        rem = 4 - ((i + 2) & 3) if n < 54 else 56 - n
        k = (len(pend) + rem - 1) // rem
        for _ in range(k):
            if pend: at_dma(*pend.pop(0))
    assert not pend
    Tz = TM + 16
    def g3():
        a(f"""
        s_lshl_b32 s{sT0}, s{sW}, 12
        s_add_u32 s{sT0}, s{sT0}, {SLOT}
        v_add_u32 v{vWa[0]}, s{sT0}, v{vD}
        s_xor_b32 s{sT0}, s{sW}, 4
        s_lshl_b32 s{sT0}, s{sT0}, 12
        s_add_u32 s{sT0}, s{sT0}, {SLOT}
        v_add_u32 v{vWa[1]}, s{sT0}, v{vD}
        ds_write_b128 v{vWa[0]}, {vr(ACC2+8)}
        ds_write_b128 v{vWa[0]}, {vr(ACC2+12)} offset:1024
        """)
        lg.issue("x2", 2)
        side = F(f"WAIT r2\n" + "\n".join(
            [f"v_add_f32 v{ACC2+i}, v{ACC2+i}, v{TM+i}" for i in range(8)] +
            [f"v_mul_f32 v{Tz+i}, {hx(-LOG2E)}, v{ACC2+i}" for i in range(8)] +
            [f"v_exp_f32 v{Tz+i}, v{Tz+i}" for i in range(8)] +
            [x for r in range(2) for d in range(2) for x in (f"v_lshlrev_b32 v{TM+4*r+2*d}, 16, v{XR+2*r+d}", f"v_and_b32 v{TM+4*r+2*d+1}, 0xffff0000, v{XR+2*r+d}")] +
            [f"v_add_f32 v{Tz+i}, 1.0, v{Tz+i}" for i in range(8)] +
            [f"v_rcp_f32 v{Tz+i}, v{Tz+i}" for i in range(8)] +
            [f"v_mul_f32 v{ACC2+i}, v{ACC2+i}, v{Tz+i}" for i in range(8)]))
        for pz in range(2):
            if pz == 0: W(lg.wait("x2"))
            W(vm.wait(("od", pz)))
            a("s_barrier")
            fstamp(f"bar o{pz}")
            a(f"v_add_u32 v{vAa[pz]}, {OAR[pz]}, v{vAR}")
            GB = GF if pz == 0 else S[1] + 8 - 8
            regs = [GF + 4 * m for m in range(8)] if pz == 0 else [8 + 4 * m for m in range(8)]
            for m in range(8):
                a(f"ds_read_b128 {vr(regs[m])}, v{vAa[pz]} offset:{(m>>2)*16384+(m&3)*2048}"); lg.issue(("o3", pz, m))
            if pz == 0:
                a(f"ds_read_b128 {vr(TM)}, v{vWa[1]}"); a(f"ds_read_b128 {vr(TM+4)}, v{vWa[1]} offset:1024"); lg.issue("r2", 2)
            for m in range(8):
                W(lg.wait(("o3", pz, m)))
                c = vr(ACC3, 16) if (pz or m) else "0"
                a(f"{MF32} {vr(ACC3,16)}, {vr(WOF+4*(8*pz+m))}, {vr(regs[m])}, {c}")
                if pz or m >= 2:
                    n = 0
                    while side and n < 6: n += do_fill(side.pop(0))
        while side: do_fill(side.pop(0))
    AT(g3)
    credit = [0.0]
    def A(ins, w=1.0):
        a(ins)
        credit[0] += w * OPT["grate"] / 100.0
        while credit[0] >= 1.0 and atoms:
            atoms.pop(0)(); credit[0] -= 1.0
    def mf_s(dst, kf): return f"{MF32} {vr(dst,16)}, {vr(kf)}, {vr(QF)}, {vr(NEG,16)}"
    def rdk(j, buf=None):
        a(f"ds_read_b128 {vr(KF[j & 1 if buf is None else buf])}, v{vKR} offset:{j*1024}"); lg.issue(("k", j))
    def cset(val): return "\n".join(val(r) for r in range(16))
    big = lambda r: f"v_mov_b32 v{NEG+r}, {NEGBIG}"
    zero = lambda r: f"v_mov_b32 v{NEG+r}, 0"
    negm = lambda r: f"v_sub_f32 v{NEG+r}, 0, v{vM}"
    def cinit(val):
        a(cset(val))
        rare([f"s_cmp_gt_u32 s{sJS}, 1"], cset(big))
    def cswitch(j, val):
        if j >= 2: rare([f"s_cmp_eq_u32 s{sJS}, {j}"], cset(val))
    cinit(zero)
    W(vm.wait("kv"))
    a("s_barrier")
    for pz in range(2):
        for m in range(8):
            for hh in range(2):
                a(f"ds_read_b64_tr_b16 {vr(192+4*(8*pz+m)+2*hh,2)}, v{vWa[pz]} offset:{(m>>2)*16384+(m&3)*2048+hh*1024}"); lg.issue("wof")
    stamp(name="att setup")
    S3 = [S[0], S[1], O]
    K4 = [KF[0], KF[1], VT, VT + 4]
    order = [1, 2, 3, 4, 5, 6, 7, 8, 0]
    def rdk1(n):
        a(f"ds_read_b128 {vr(K4[n % 4])}, v{vKR} offset:{order[n]*1024}"); lg.issue(("k1", n))
    def maxredA(s_):
        for r in range(0, 16, 2): A(f"v_max3_f32 v{vM}, v{s_+r}, v{s_+r+1}, v{vM}")
    rdk1(0); rdk1(1); rdk1(2)
    hold = atoms[:]; del atoms[:]
    for n in range(9):
        if n == 2:
            W(lg.wait("wof"))
            poll_check("pe", sPB, 2)
            a("s_barrier")
            atoms.extend(hold)
            for _ in range(nfirst): atoms.pop(0)()
        j = order[n]
        if j: cswitch(j, zero)
        W(lg.wait(("k1", n)))
        a(mf_s(S3[n % 3], K4[n % 4]))
        if n + 3 < 9: rdk1(n + 3)
        if n >= 2: maxredA(S3[(n - 2) % 3])
    rare([f"s_cmp_gt_u32 s{sJS}, 0"], "s_nop 15\n" + "\n".join(f"v_mov_b32 v{S3[2]+r}, {NEGBIG}" for r in range(16)))
    for r in range(16): A(f"v_cndmask_b32 v{S3[1]+r}, v{S3[2]+r}, v{S3[1]+r}, s[{MP[r]}:{MP[r]+1}]")
    maxredA(S3[1])
    a(f"""
    v_mov_b32 v{VT}, v{vM}
    v_permlane32_swap_b32 v{vM}, v{VT}
    v_max_f32 v{vM}, v{vM}, v{VT}
    """)
    rdk(1)
    cinit(negm)
    stamp(name="att p1")
    def rdv(tag):
        for t in range(2):
            for hh in range(2):
                a(f"ds_read_b64_tr_b16 {vr(VT+4*t+2*hh,2)}, v{vVR} offset:{t*512+hh*256}"); lg.issue(tag)
    PB = [P, P2r]
    npv = [0]
    def pv1(p, t):
        npv[0] += 1
        return f"{MF32} {vr(O,16)}, {vr(VT+4*t)}, {vr(p+4*t)}, {vr(O,16) if npv[0] > 1 else 0}"
    for j in range(1, 9):
        cswitch(j, negm)
        W(lg.wait(("k", j)))
        a(mf_s(S[j & 1], KF[j & 1]))
        if j < 8: rdk(j + 1)
        else: rdk(0, 1)
        if j > 1:
            sx = S[(j - 1) & 1]; px = PB[(j - 1) & 1]
            ex = [f"v_exp_f32 v{sx+r}, v{sx+r}" for r in range(16)]
            cv = [f"v_cvt_pk_bf16_f32 v{px+r}, v{sx+2*r}, v{sx+2*r+1}" for r in range(8)]
            for x in ex[0:5]: A(x, 2)
            if j > 2:
                W(lg.wait(("v", j - 2))); a(pv1(PB[j & 1], 0))
            for x in ex[5:10]: A(x, 2)
            if j > 2: a(pv1(PB[j & 1], 1))
            A(ex[10], 2); A(ex[11], 2)
            a(f"v_add_u32 v{vVR}, v{vVR}, v{vVS}")
            for q in range(4):
                a(ex[12 + q])
                a(f"ds_read_b64_tr_b16 {vr(VT+2*q,2)}, v{vVR} offset:{(q>>1)*512+(q&1)*256}"); lg.issue(("v", j - 1))
            for x in cv: A(x)
    W(lg.wait(("k", 0)))
    a(mf_s(S[1], KF[1]))
    rare([f"s_cmp_gt_u32 s{sJS}, 0"], "s_nop 15\n" + "\n".join(f"v_mov_b32 v{S[1]+r}, {NEGBIG}" for r in range(16)))
    W(lg.wait(("v", 7)))
    a(pv1(PB[1], 0)); a(pv1(PB[1], 1))
    for r in range(16): A(f"v_cndmask_b32 v{S[0]+r}, v{S[1]+r}, v{S[0]+r}, s[{MP[r]}:{MP[r]+1}]")
    a(f"v_add_u32 v{vVR}, v{vVR}, v{vVS}")
    rdv(("v", 8))
    for r in range(16): A(f"v_exp_f32 v{S[0]+r}, v{S[0]+r}", 2)
    for r in range(16): A(f"v_cndmask_b32 v{S[1]+r}, 0, v{S[0]+r}, s[{MP[r]}:{MP[r]+1}]")
    for r in range(8): a(f"v_cvt_pk_bf16_f32 v{PB[0]+r}, v{S[1]+2*r}, v{S[1]+2*r+1}")
    W(lg.wait(("v", 8)))
    a(pv1(PB[0], 0))
    for r in range(8): a(f"v_cndmask_b32 v{S[0]+r}, v{S[0]+r}, 0, s[{MP[r]}:{MP[r]+1}]")
    a(pv1(PB[0], 1))
    a(f"v_lshlrev_b32 v{KF[0]}, 3, v{vVS}")
    a(f"v_sub_u32 v{vVR}, v{vVR}, v{KF[0]}")
    rdv(("v", 0))
    for r in range(8, 16): a(f"v_cndmask_b32 v{S[0]+r}, v{S[0]+r}, 0, s[{MP[r]}:{MP[r]+1}]")
    for r in range(8): a(f"v_cvt_pk_bf16_f32 v{PB[1]+r}, v{S[0]+2*r}, v{S[0]+2*r+1}")
    W(lg.wait(("v", 0)))
    a(pv1(PB[1], 0)); a(pv1(PB[1], 1))
    a(f"""
    s_lshl_b32 s{sE0}, s{sHD}, 6
    s_lshl_b32 s{sE1}, s{sQB}, 3
    s_add_u32 s{sE0}, s{sE0}, s{sE1}
    s_add_u32 s{sE0}, s{sE0}, s{sW}
    s_lshl_b32 s{sE0}, s{sE0}, 10
    s_add_u32 s{sE0}, s{sE0}, {WS_O}
    """)
    a(f"v_rcp_f32 v{vM}, v{O+8}")
    for r in range(8): a(f"v_mul_f32 v{O+r}, v{O+r}, v{vM}")
    for r in range(4): a(f"v_cvt_pk_bf16_f32 v{P+r}, v{O+2*r}, v{O+2*r+1}")
    a(f"buffer_store_dwordx4 {vr(P)}, v{vD}, {sr(SWS)}, s{sE0} offen{SC}")
    vm.issue("o"); state["o_done"] = True
    print("atoms left after attention:", len(atoms), file=sys.stderr)
    stamp(name="att p2")
    while atoms: atoms.pop(0)()
    stamp(name="G23 rest")
    a(f"""
    ds_write_b128 v{vWa[0]}, {vr(ACC3+8)} offset:2048
    ds_write_b128 v{vWa[0]}, {vr(ACC3+12)} offset:3072
    s_waitcnt lgkmcnt(0)
    s_barrier
    ds_read_b128 {vr(Tz)}, v{vWa[1]} offset:2048
    ds_read_b128 {vr(Tz+4)}, v{vWa[1]} offset:3072
    """)
    for i in range(8): a(f"v_fmac_f32 v{TM+i}, v{ACC2+i}, v{ACC3+i}")
    a("s_waitcnt lgkmcnt(0)")
    for i in range(8): a(f"v_fmac_f32 v{TM+i}, v{ACC2+i}, v{Tz+i}")
    for r in range(2):
        a(f"v_cvt_pk_bf16_f32 v{Tz+2*r}, v{TM+4*r}, v{TM+4*r+1}")
        a(f"v_cvt_pk_bf16_f32 v{Tz+2*r+1}, v{TM+4*r+2}, v{TM+4*r+3}")
    OF = ["", " sc1", " nt"][OPT["outf"]]
    a(f"""
    buffer_store_dwordx2 v[{Tz}:{Tz+1}], v{vXO}, {sr(SOUT)}, 0 offen{OF}
    buffer_store_dwordx2 v[{Tz+2}:{Tz+3}], v{vXO}, {sr(SOUT)}, 0 offen offset:16{OF}
    """)
    if STAMP:
        stamp(name="final"); stamp(True)
        a(f"""
        s_lshl_b32 s{sT0}, s2, 3
        s_add_u32 s{sT0}, s{sT0}, s{sW}
        s_lshl_b32 s{sT0}, s{sT0}, 8
        s_add_u32 s{sT0}, s{sT0}, {WS_STAMP}
        s_mov_b32 s{SWS+2}, {WS_STAMP + (1 << 20)}
        v_lshlrev_b32 v{TM}, 2, v{vL}
        buffer_store_dword v{vSTAMP}, v{TM}, {sr(SWS)}, s{sT0} offen
        """)
        if OPT["dbgst"]:
            a(f"""
            s_lshl_b32 s{sT0}, s2, 3
            s_add_u32 s{sT0}, s{sT0}, s{sW}
            s_cmp_eq_u32 s{sT0}, {OPT["dbgst"]}
            s_cbranch_scc0 L_end
            v_add_u32 v{TM}, 4, v{TM}
            s_mov_b64 exec, 0x7fff
            buffer_store_dword v{vSTAMP}, v{TM}, {sr(SDBG)}, 0 offen
            """)
        print("stamps:", nstamp[0], file=sys.stderr)
        open("snames.txt", "w").write("\n".join(SNAMES))
    a.label("L_end")
    a("s_endpgm")
    a.items += ool.items
    return dict(lds=LDS_TOTAL, vgpr=256, sgpr=100)

HEADER = open("cdna_kernels/%s.s.ref" % NAME).read().split("; Override launch")[0]

def build(path):
    a = Asm(); info = gen(a)
    items = []; inside = False
    for k, x in a.items:
        if k == 'l' and x == "X_begin": inside = True
        if k == 'l' and x == "X_end": inside = False
        if inside and k == 'i':
            if OPT["x_nodma"] and x.startswith("buffer_load") and x.endswith("lds"): continue
            if OPT["x_nomfma"] and x.startswith("v_mfma"): continue
            if OPT["x_nords"] and x.startswith("ds_read"): continue
            if OPT["x_nostat"] and re.match(r"(v_fmac_f32 v1[67]|v_add_f32 v1[45]|v_lshlrev_b32 v18, 16|v_and_b32 v19, 0xffff0000)", x): continue
        items.append((k, x))
    a.items = items
    txt = a.render()
    label = NAME + "_kernel"
    n = sum(1 for k, _ in a.items if k == 'i')
    print("instrs", n, "nops", a.nnop, file=sys.stderr)
    out = HEADER + f"; @launch grid=(256,1,1) block=(512,1,1) lds={info['lds']}\n"
    out += '.amdgcn_target "amdgcn-amd-amdhsa--gfx950"\n.text\n'
    out += f".globl {label}\n.p2align 8\n.type {label},@function\n{label}:\n"
    out += txt.replace("CODE_BYTES", "(L_code_end - L_pc)")
    out += "L_code_end:\n"
    out += f""".section .rodata,"a"
.p2align 6
.amdhsa_kernel {label}
  .amdhsa_next_free_vgpr {info['vgpr']}
  .amdhsa_next_free_sgpr {info['sgpr']}
  .amdhsa_accum_offset {info['vgpr']}
  .amdhsa_group_segment_fixed_size 0
  .amdhsa_kernarg_size 80
  .amdhsa_user_sgpr_count 2
  .amdhsa_user_sgpr_kernarg_segment_ptr 1
  .amdhsa_system_sgpr_workgroup_id_x 1
.end_amdhsa_kernel
"""
    open(path, "w").write(out)

if __name__ == "__main__":
    path = sys.argv[1]
    for arg in sys.argv[2:]:
        if arg == "stamp": STAMP = True
        elif "=" in arg:
            k, v = arg.split("="); assert k in OPT, k; OPT[k] = int(v)
    build(path)
```

```python
import sys, math, struct, re
sys.path.insert(0, "gen")
from asmlib import Asm, Ins

NAME = "recurrent_scan__sliding_block__geglu_ffn__prompt"
WS_H = 0
WS_O = 56 * 128 * 1024
WS_QKV = 72 * 128 * 1024
WS_F = WS_QKV + 96 * 65536
WS_END = WS_F + 4 * 4096
LOG2E = 1.4426950408889634
QSCALE = 0.25 * LOG2E
GK1 = -2.0 * math.sqrt(2.0 / math.pi) * LOG2E
GK2 = GK1 * 0.044715
NEGBIG = "0xf149f2ca"
def f2u(x): return struct.unpack("<I", struct.pack("<f", x))[0]
def hx(x): return "0x%08x" % f2u(x)
def vr(b, n=4): return f"v[{b}:{b+n-1}]"
def sr(b, n=4): return f"s[{b}:{b+n-1}]"

class Cnt:
    def __init__(self, name, mx): self.q = []; self.name = name; self.mx = mx; self.total = 0; self.marks = {}
    def issue(self, tag, n=1): self.q += [tag] * n; self.total += n
    def wait(self, tag):
        idxs = [i for i, t in enumerate(self.q) if t == tag]
        if not idxs: return None
        n = min(len(self.q) - 1 - max(idxs), self.mx)
        self.q = self.q[len(self.q) - n:] if n else []
        return f"s_waitcnt {self.name}({n})"
    def mark(self, tag): self.marks[tag] = self.total
    def peek(self, tag): return f"s_waitcnt {self.name}({min(self.total - self.marks[tag], self.mx)})"
    def drain(self): self.q = []; return f"s_waitcnt {self.name}(0)"
    def save(self): return (list(self.q), self.total, dict(self.marks))
    def restore(self, st): self.q, self.total, self.marks = list(st[0]), st[1], dict(st[2])

STAMP = False
SNAMES = []
WS_STAMP = 32 << 20
OPT = dict(codepf=32, rot=4, rot2=0, fine=0, start=3, fper=5, early_b=2, wpf=1, hpf=0, p2late=1, ck3=4, ck4=12, pub3=0, gdelay=14, gd0=4, fbexp=60, ab1=30, ab2=150, abs=85, pollbk=1, apost=3, aprio=0, psl=4, pdepth=2, bdist=3, bprio=0, bdma=2, fineb=0, m_nodma=0, m_noexp=0, m_nobar=0, grate=40, odel=2, outf=0, prio=0, wmerge=1, dbgst=0, x_nodma=0, x_nomfma=0, x_nostat=0, x_nords=0, x_nocs=0)

def gen(a):
    SC = " sc1"
    vm = Cnt("vmcnt", 63); lg = Cnt("lgkmcnt", 15)
    ool = Asm()
    def W(x):
        if x: a(x)
    SX, SU0, SU1, SU2, SPG, SPU, SWS, SDBG = 24, 28, 32, 36, 40, 44, 48, 52
    sW, sMG, sNH, sRB, sCGQ, sCGL, sTB, sRL = 56, 57, 58, 59, 60, 61, 62, 63
    sP12, sKX, sK0, sK12, sT0, sT1, sT2, sT3 = 64, 65, 66, 67, 68, 69, 70, 71
    sLX, sLW, sU0, sPF, sXB, sSC0, sP0, sFL = 72, 73, 74, 75, 76, 77, 78, 79
    sCNT = 80
    SWD, SWO, SOUT = 28, 32, 36
    sHD, sQB, sJS, sMT, sNT, sCT, sKH, sAO = 81, 82, 83, 84, 85, 86, 87, 88
    sWQ, sWL, sROT, sTAG, sE0, sE1 = 89, 90, 91, 96, 97, 98
    sR2 = 63
    STP = 92
    STP = 20
    sPFo = 99
    R2MASK = 7 if OPT['rot2'] else 0
    ROTMASK = {1: 0, 2: 4, 4: 6, 8: 7}[OPT['rot']]
    uid = [0]
    def U(): uid[0] += 1; return uid[0]
    nstamp = [0]
    def fstamp(name):
        if OPT["fine"] == 1: stamp(name=name)
    def f2stamp(name):
        if OPT["fine"] == 2: stamp(name=name)
    def f3stamp(name):
        if OPT["fine"] == 3: stamp(name=name)
    def stamp(real=False, name=""):
        if not STAMP: return
        i = nstamp[0]; nstamp[0] += 1
        SNAMES.append(name)
        a("s_memrealtime s[92:93]" if real else "s_memtime s[92:93]")
        a("s_waitcnt lgkmcnt(0)"); lg.q = []
        a(f"v_writelane_b32 v{vSTAMP}, s92, {i}")
    def rare(cond, body):
        n = U()
        a.extend(cond)
        a(f"s_cbranch_scc1 R{n}")
        a.label(f"B{n}")
        ool.label(f"R{n}")
        ool("s_nop 7"); ool("s_nop 7")
        ool(body)
        ool("s_nop 7")
        ool(f"s_branch B{n}")
    vL, vX0, vX1, vWq, vW12, vWg = 0, 1, 2, 3, 4, 5
    vXR = [6, 7, 8, 9]; vWR = [10, 11, 12, 13]
    vS = [14, 15]; vQ = [16, 17]; vST = [18, 19]
    SEL = 20; CA = [24, 28, 32]
    FR = 36; NF = 9
    vD, vPOLL, vPO, vSTAMP = 72, 73, 74, 75
    SPARE = 76
    vPUB = 74
    vPF, vJK = 74, 73
    ACC = 80; XF = 128; ACC1 = 40
    def xf(s): return XF + s * 4
    def acc(u): return ACC + u * 16
    SLOT = 40960
    SCR = 3 * SLOT
    L_RS = SCR
    L_CSA = SCR + 1024
    L_CSB = SCR + 2560
    LK = SCR + 4096; LV = LK + 16384; LONE = LV + 16384 + 128
    LDS_TOTAL = 163840
    T = [FR + i for i in range(8)]

    a("s_cmp_ge_u32 s2, 256")
    a("s_cbranch_scc1 L_end")
    a("s_load_dwordx16 s[4:19], s[0:1], 0")
    a("s_load_dwordx4 s[20:23], s[0:1], 64")
    if OPT["codepf"]:
        a(f"""
        s_cmp_ge_u32 s2, {OPT["codepf"]}
        s_cbranch_scc1 L_npf
        s_getpc_b64 s[92:93]
        L_pc:
        s_and_b32 s92, s92, 0xffffff00
        s_and_b32 s93, s93, 0xffff
        s_mov_b32 s94, CODE_BYTES
        s_mov_b32 s95, 0x20000
        v_lshlrev_b32 v{T[0]}, 7, v0
        buffer_load_dword v{vPOLL}, v{T[0]}, s[92:95], 0 offen
        L_npf:
        """)
    a(f"""
    v_lshrrev_b32 v{T[0]}, 6, v0
    v_and_b32 v{vL}, 63, v0
    v_readfirstlane_b32 s{sW}, v{T[0]}
    s_and_b32 s{sT0}, s2, 7
    s_lshr_b32 s{sT1}, s2, 3
    s_and_b32 s{sRB}, s{sT0}, 1
    s_lshl_b32 s{sRB}, s{sRB}, 3
    s_and_b32 s{sRL}, s{sT1}, 7
    s_add_u32 s{sRB}, s{sRB}, s{sRL}
    s_lshr_b32 s{sCGQ}, s{sT0}, 1
    s_lshr_b32 s{sCGL}, s{sT1}, 3
    s_lshl_b32 s{sROT}, s{sCGL}, 1
    s_add_u32 s{sROT}, s{sROT}, s{sRL}
    s_and_b32 s{sROT}, s{sROT}, {ROTMASK}
    s_lshl_b32 s{sLX}, s{sW}, 11
    s_lshl_b32 s{sLW}, s{sW}, 10
    s_lshl_b32 s{sXB}, s{sRB}, 17
    s_mul_i32 s{sT0}, s{sCGQ}, 3
    s_add_u32 s{sT1}, s{sT0}, s{sCGL}
    s_add_u32 s{sT2}, s{sT0}, 12
    s_mov_b32 s{sP0}, s{sT1}
    s_add_u32 s{sT3}, s{sP0}, 12
    s_add_u32 s{sPF}, s{sCGQ}, 24
    s_movk_i32 s{sP12}, 3584
    s_cmp_eq_u32 s{sCGL}, 3
    s_cselect_b32 s{sTB}, 1, 0
    s_cselect_b32 s{sU0}, s{sT2}, s{sT1}
    s_cselect_b32 s{sPF}, s{sPF}, s{sT3}
    s_cselect_b32 s{sP12}, 3072, s{sP12}
    """)
    if STAMP: a(f"v_mov_b32 v{vSTAMP}, 0")
    a(f"""
    v_lshrrev_b32 v{T[0]}, 3, v{vL}
    v_and_b32 v{T[1]}, 7, v{vL}
    v_lshrrev_b32 v{T[2]}, 4, v{vL}
    v_xor_b32 v{T[3]}, v{T[1]}, v{T[2]}
    s_lshl_b32 s{sT0}, s{sW}, 4
    v_add_u32 v{T[4]}, s{sT0}, v{T[0]}
    v_lshlrev_b32 v{T[4]}, 10, v{T[4]}
    v_lshl_add_u32 v{vX0}, v{T[3]}, 4, v{T[4]}
    v_xor_b32 v{vX1}, 64, v{vX0}
    v_add_u32 v{vX1}, 0x2000, v{vX1}
    s_lshl_b32 s{sT0}, s{sW}, 3
    v_add_u32 v{T[4]}, s{sT0}, v{T[0]}
    v_and_b32 v{T[2]}, 1, v{T[2]}
    v_lshlrev_b32 v{T[2]}, 2, v{T[2]}
    v_xor_b32 v{T[5]}, v{T[1]}, v{T[2]}
    v_lshlrev_b32 v{T[5]}, 4, v{T[5]}
    v_mul_u32_u24 v{vWq}, 3072, v{T[4]}
    v_add_u32 v{vWq}, v{vWq}, v{T[5]}
    v_mul_u32_u24 v{vWg}, 3584, v{T[4]}
    v_add_u32 v{vWg}, v{vWg}, v{T[5]}
    v_mul_u32_u24 v{vW12}, s{sP12}, v{T[4]}
    v_add_u32 v{vW12}, v{vW12}, v{T[5]}
    s_lshl_b32 s{sP12}, s{sP12}, 6
    s_mov_b32 s{SX+2}, {2048*1024}
    s_mov_b32 s{SX+3}, 0x20000
    s_mov_b32 s{SU0+3}, 0x20000
    s_mov_b32 s{SU1+3}, 0x20000
    s_mov_b32 s{SU2+3}, 0x20000
    s_waitcnt lgkmcnt(0)
    """)
    stamp(); stamp(True)
    QSZ, GSZ = 512 * 3072, 512 * 3584
    a(f"""
    s_mov_b32 s{SX}, s4
    s_and_b32 s{SX+1}, s5, 0xffff
    s_lshl_b32 s{sT0}, s{sU0}, 7
    s_add_u32 s{SU0}, s6, s{sT0}
    s_addc_u32 s{SU0+1}, s7, 0
    s_and_b32 s{SU0+1}, s{SU0+1}, 0xffff
    s_sub_u32 s{SU0+2}, {QSZ}, s{sT0}
    """)
    for k, (S, plo) in enumerate(((SU1, 12), (SU2, 14))):
        a(f"""
        s_lshl_b32 s{sT0}, s{sP0}, 7
        s_add_u32 s{sT1}, s{sU0}, {k+1}
        s_lshl_b32 s{sT1}, s{sT1}, 7
        s_mov_b32 s{S+2}, {GSZ}
        s_cmp_eq_u32 s{sTB}, 1
        s_cselect_b32 s{sT0}, s{sT1}, s{sT0}
        s_cselect_b32 s{S}, s6, s{plo}
        s_cselect_b32 s{S+1}, s7, s{plo+1}
        s_cselect_b32 s{S+2}, {QSZ}, s{S+2}
        s_add_u32 s{S}, s{S}, s{sT0}
        s_addc_u32 s{S+1}, s{S+1}, 0
        s_and_b32 s{S+1}, s{S+1}, 0xffff
        s_sub_u32 s{S+2}, s{S+2}, s{sT0}
        """)
    def dma_p0(t):
        sl = (t % 3) * SLOT
        pre = [f"s_add_u32 s{sT3}, s{sROT}, {t}", f"s_and_b32 s{sT3}, s{sT3}, 7", f"s_lshl_b32 s{sKX}, s{sT3}, 7",
               f"s_add_u32 s{sKX}, s{sKX}, s{sXB}", f"s_mul_i32 s{sK0}, s{sT3}, {64*3072}", f"s_mul_i32 s{sK12}, s{sP12}, s{sT3}"]
        g = [(pre + [f"s_add_u32 m0, s{sLX}, {sl}"], f"buffer_load_dwordx4 v{vX0}, {sr(SX)}, s{sKX} offen lds"),
             ([f"s_add_u32 m0, s{sLX}, {sl+1024}"], f"buffer_load_dwordx4 v{vX1}, {sr(SX)}, s{sKX} offen lds"),
             ([f"s_add_u32 m0, s{sLW}, {sl+16384}"], f"buffer_load_dwordx4 v{vWq}, {sr(SU0)}, s{sK0} offen lds"),
             ([f"s_add_u32 m0, s{sLW}, {sl+24576}"], f"buffer_load_dwordx4 v{vW12}, {sr(SU1)}, s{sK12} offen lds"),
             ([f"s_add_u32 m0, s{sLW}, {sl+32768}"], f"buffer_load_dwordx4 v{vW12}, {sr(SU2)}, s{sK12} offen lds")]
        return g, ("st", t)
    def dma_p1(Tq):
        sl = ((8 + Tq) % 3) * SLOT
        g = []
        for c2 in range(2):
            sk = sK0 if c2 == 0 else sK12
            pre = [f"s_add_u32 s{sT3}, s{sROT}, {2*Tq+c2}", f"s_and_b32 s{sT3}, s{sT3}, 7", f"s_mul_i32 s{sk}, s{sT3}, {64*3584}"]
            g += [(pre + [f"s_add_u32 m0, s{sLW}, {sl+c2*16384}"], f"buffer_load_dwordx4 v{vWg}, {sr(SPG)}, s{sk} offen lds"),
                  ([f"s_add_u32 m0, s{sLW}, {sl+c2*16384+8192}"], f"buffer_load_dwordx4 v{vWg}, {sr(SPU)}, s{sk} offen lds")]
        return g, ("st", 8 + Tq)
    def emit_dma(d):
        g, tag = d
        for pre, ld in g:
            a.extend(pre); a(ld); vm.issue(tag)
    emit_dma(dma_p0(0))
    if OPT["start"] == 0: emit_dma(dma_p0(1))
    for S, plo in ((SPG, 12), (SPU, 14)):
        a(f"""
        s_lshl_b32 s{sT0}, s{sPF}, 7
        s_add_u32 s{S}, s{plo}, s{sT0}
        s_addc_u32 s{S+1}, s{plo+1}, 0
        s_and_b32 s{S+1}, s{S+1}, 0xffff
        s_sub_u32 s{S+2}, {GSZ}, s{sT0}
        s_mov_b32 s{S+3}, 0x20000
        """)
    a(f"""
    s_mov_b32 s{SWS}, s22
    s_and_b32 s{SWS+1}, s23, 0xffff
    s_mov_b32 s{SWS+2}, {WS_END}
    s_mov_b32 s{SWS+3}, 0x20000
    s_mov_b32 s{SDBG}, s20
    s_and_b32 s{SDBG+1}, s21, 0xffff
    s_movk_i32 s{SDBG+2}, 256
    s_mov_b32 s{SDBG+3}, 0x20000
    s_lshr_b32 s{sMG}, s{sW}, 1
    s_and_b32 s{sNH}, s{sW}, 1
    """)
    rare([f"s_or_b32 s{sT0}, s2, s{sW}", f"s_cmp_eq_u32 s{sT0}, 0"], f"""
    s_memrealtime s[92:93]
    s_waitcnt lgkmcnt(0)
    s_or_b32 s92, s92, 1
    v_mov_b32 v{T[0]}, s92
    s_mov_b64 exec, 1
    buffer_store_dword v{T[0]}, off, {sr(SDBG)}, 0{SC}
    s_mov_b64 exec, -1
    """)
    a(f"""
    s_and_b32 s{sT0}, s{sMG}, 1
    s_lshl_b32 s{sT0}, s{sT0}, 1
    s_lshr_b32 s{sT1}, s{sMG}, 1
    s_xor_b32 s{sT1}, s{sT1}, s{sNH}
    s_add_u32 s{sT0}, s{sT0}, s{sT1}
    v_and_b32 v{T[0]}, 31, v{vL}
    v_lshrrev_b32 v{T[1]}, 5, v{vL}
    v_bfe_u32 v{T[2]}, v{vL}, 1, 3
    v_xor_b32 v{T[2]}, v{T[2]}, v{T[1]}
    v_lshlrev_b32 v{T[2]}, 4, v{T[2]}
    v_lshl_add_u32 v{T[2]}, v{T[0]}, 7, v{T[2]}
    s_lshl_b32 s{sT1}, s{sMG}, 12
    v_add_u32 v{T[2]}, s{sT1}, v{T[2]}
    s_lshl_b32 s{sT1}, s{sT0}, 5
    v_xor_b32 v{vXR[0]}, s{sT1}, v{T[2]}
    v_xor_b32 v{vXR[1]}, 32, v{vXR[0]}
    v_xor_b32 v{vXR[2]}, 64, v{vXR[0]}
    v_xor_b32 v{vXR[3]}, 0x60, v{vXR[0]}
    """)
    a(f"""
    v_bfe_u32 v{T[2]}, v{vL}, 2, 2
    v_lshl_add_u32 v{T[3]}, v{T[1]}, 3, v{T[2]}
    v_lshlrev_b32 v{T[3]}, 7, v{T[3]}
    v_lshrrev_b32 v{T[2]}, 1, v{T[2]}
    v_xor_b32 v{T[2]}, s{sNH}, v{T[2]}
    v_lshl_add_u32 v{T[3]}, v{T[2]}, 6, v{T[3]}
    v_bfe_u32 v{T[2]}, v{vL}, 4, 1
    v_lshl_add_u32 v{T[3]}, v{T[2]}, 5, v{T[3]}
    v_and_b32 v{T[2]}, 3, v{vL}
    v_lshl_add_u32 v{T[3]}, v{T[2]}, 3, v{T[3]}
    s_lshl_b32 s{sT1}, s{sT0}, 11
    v_xor_b32 v{vWR[0]}, s{sT1}, v{T[3]}
    v_xor_b32 v{vWR[1]}, 0x800, v{vWR[0]}
    v_xor_b32 v{vWR[2]}, 0x1000, v{vWR[0]}
    v_xor_b32 v{vWR[3]}, 0x1800, v{vWR[0]}
    v_lshlrev_b32 v{vD}, 4, v{vL}
    """)
    a(f"""
    v_lshrrev_b32 v{T[2]}, 4, v{vL}
    v_xor_b32 v{T[2]}, v{T[2]}, v{vL}
    v_and_b32 v{T[2]}, 1, v{T[2]}
    v_cmp_eq_u32 vcc, 0, v{T[2]}
    v_mov_b32 v{T[3]}, 0x3f803f80
    v_cndmask_b32 v{SEL}, 0, v{T[3]}, vcc
    v_mov_b32 v{SEL+1}, v{SEL}
    v_mov_b32 v{SEL+2}, v{SEL}
    v_mov_b32 v{SEL+3}, v{SEL}
    v_mov_b32 v{T[4]}, v{T[3]}
    v_mov_b32 v{T[5]}, v{T[3]}
    v_mov_b32 v{T[6]}, v{T[3]}
    v_mov_b32 v{T[7]}, v{T[3]}
    v_add_u32 v{T[0]}, {LONE}, v{vD}
    ds_write_b128 v{T[0]}, {vr(T[4])}
    """)
    for r in vS + vQ: a(f"v_mov_b32 v{r}, 0")
    lg.issue("misc", 1)
    if OPT["start"] == 0: emit_dma(dma_p0(2))
    elif OPT["start"] in (1, 3): emit_dma(dma_p0(1))
    def lds(lst):
        for ins, tag in lst: a(ins); lg.issue(tag)
    def run_slots(mfs, reads=(), valu=(), dmas=None, rstart=0, rper=2.0, vper=2, fill=None, fper=0):
        ri = vi = 0
        for k, (tags, ins) in enumerate(mfs):
            for tg in tags: W(lg.wait(tg))
            a(ins)
            if dmas and k in dmas: a.extend(dmas[k][0])
            for _ in range(vper):
                if vi < len(valu): a(valu[vi]); vi += 1
            if k >= rstart:
                lim = int(rper * (k - rstart + 1) + 0.999)
                while ri < len(reads) and ri < lim and reads[ri][2] <= k:
                    a(reads[ri][0]); lg.issue(reads[ri][1]); ri += 1
            if fill is not None:
                n = 0
                while fill and n < fper:
                    if fill[0][0] == 'at':
                        if cur["step"] < fill[0][1]: break
                        fill.pop(0); continue
                    n += do_fill(fill.pop(0))
            if dmas and k in dmas: a(dmas[k][1]); vm.issue(dmas[k][2])
        while vi < len(valu): a(valu[vi]); vi += 1
        while ri < len(reads): a(reads[ri][0]); lg.issue(reads[ri][1]); ri += 1
    cur = {"step": None}
    def do_fill(it):
        kind = it[0]
        if cur["step"] is not None and kind in "vl":
            for t_, r_ in Ins(it[1]).wr:
                if t_ == 'v' and r_ >= XF: assert (r_ - XF) // 4 < cur["step"], (it, cur)
        if kind == 'v': a(it[1]); return 2 if it[1].startswith(("v_exp", "v_rcp")) else 1
        if kind == 's': a(it[1]); return 0.5
        if kind == 'm': a(it[1]); vm.issue(it[2]); return 1
        if kind == 'l': a(it[1]); lg.issue(it[2]); return 0.5
        if kind == 'w': W(lg.wait(it[1])); return 0.5
        if kind == 'gap': return it[1]
        raise ValueError
    def F(text, tag=None):
        out = []
        lines = [l.strip() for l in text.strip().split("\n") if l.strip()]
        i = 0
        while i < len(lines):
            l = lines[i]
            if l.startswith("s_cmp"):
                out.append(('s', l + "\n" + lines[i + 1])); i += 2; continue
            if l.startswith("WAIT"): out.append(('w', l.split()[1]))
            elif l.startswith("ds_"):
                body, tg = l.split(" @"); out.append(('l', body, tg))
            elif l.startswith("s_"): out.append(('s', l))
            else: out.append(('v', l))
            i += 1
        return out
    def slot_adv(t_next, regs):
        d = SLOT if (t_next % 3) else -2 * SLOT
        return [f"v_add_u32 v{r}, {d & 0xffffffff}, v{r}" for r in regs]
    MF32 = "v_mfma_f32_32x32x16_bf16"; MF16 = "v_mfma_f32_16x16x32_bf16"

    a(f"""
    v_and_b32 v{vPO}, 3, v{vL}
    v_lshlrev_b32 v{vPO}, 7, v{vPO}
    s_lshr_b32 s{sPFo}, s2, 3
    s_lshl_b32 s{sPFo}, s{sPFo}, 3
    s_add_u32 s{sPFo}, s{sPFo}, s{sW}
    s_lshl_b32 s{sPFo}, s{sPFo}, 10
    s_and_b32 s{sT0}, s2, 1
    s_lshl_b32 s{sT0}, s{sT0}, 9
    s_add_u32 s{sPFo}, s{sPFo}, s{sT0}
    v_add_u32 v{vPF}, s{sPFo}, v{vPO}
    s_mov_b32 s{STP}, s8
    s_and_b32 s{STP+1}, s9, 0xffff
    s_mov_b32 s{STP+2}, {512*1024}
    s_mov_b32 s{STP+3}, 0x20000
    """)
    def wtouch(k):
        pre = []
        if k == 2: pre = [f"s_mov_b32 s{STP}, s16", f"s_and_b32 s{STP+1}, s17, 0xffff", f"s_mov_b32 s{STP+2}, {1792*1024}"]
        kk = k if k < 2 else k - 2
        pre += [f"s_mov_b32 m0, {LONE + 1280}", f"s_mov_b32 s{sPFo}, {kk << 18}"]
        a.extend(pre)
        a(f"buffer_load_dword v{vPF}, {sr(STP)}, s{sPFo} offen lds"); vm.issue("wpf")
    L_P = SCR; L_T = SCR + 3072; L_RS = LK + 8192
    def xaddr(cw, pr, tw, tr, sa, sb):
        return f"""
        v_lshrrev_b32 v{cw}, 4, v{vL}
        v_lshlrev_b32 v{cw}, 4, v{cw}
        v_and_b32 v{pr}, 1, v{vL}
        v_lshl_add_u32 v{cw}, v{pr}, 6, v{cw}
        s_lshl_b32 s{sa}, s{sNH}, 2
        s_add_u32 s{sa}, s{sa}, s{sMG}
        s_mul_i32 s{sa}, s{sa}, 384
        s_add_u32 s{sa}, s{sa}, {L_P}
        v_add_u32 v{cw}, s{sa}, v{cw}
        v_min_u32 v{pr}, 47, v{vL}
        v_lshlrev_b32 v{pr}, 3, v{pr}
        s_mul_i32 s{sa}, s{sNH}, 384
        s_add_u32 s{sa}, s{sa}, {L_T}
        v_add_u32 v{tw}, s{sa}, v{pr}
        s_mul_i32 s{sb}, s{sNH}, {4*384}
        s_add_u32 s{sb}, s{sb}, {L_P}
        v_add_u32 v{pr}, s{sb}, v{pr}
        v_lshrrev_b32 v{tr}, 5, v{vL}
        v_lshlrev_b32 v{tr}, 4, v{tr}
        v_add_u32 v{tr}, s{sa}, v{tr}
        """
    XA0 = [SPARE, SPARE + 1, SPARE + 2, SPARE + 3]
    a(xaddr(*XA0, sT0, sT1))
    def x_reduce(XA, tmp, extra=""):
        cw, pr, tw, tr = XA
        return F("\n".join(f"ds_read_b64 {vr(tmp+2*m,2)}, v{pr} offset:{m*384} @cp" for m in range(4)) + "\n" + extra) + [('gap', 5)] + F(f"""
        WAIT cp
        v_add_f32 v{tmp}, v{tmp}, v{tmp+2}
        v_add_f32 v{tmp+1}, v{tmp+1}, v{tmp+3}
        v_add_f32 v{tmp+4}, v{tmp+4}, v{tmp+6}
        v_add_f32 v{tmp+5}, v{tmp+5}, v{tmp+7}
        v_add_f32 v{tmp}, v{tmp}, v{tmp+4}
        v_add_f32 v{tmp+1}, v{tmp+1}, v{tmp+5}
        ds_write_b64 v{tw}, {vr(tmp,2)} @ct
        """)
    vNM, vVE, vA_, vC1, vC2 = vS[0], vQ[0], vS[1], vQ[1], vST[0]
    def fslot(n): return FR + (n % NF) * 4
    def rd_x(s): return [(f"ds_read_b128 {vr(xf(s))}, v{vXR[s & 3]}", ("x", s))]
    def rd_w0(s, u):
        f = fslot(3 * s + u)
        return [(f"ds_read_b64_tr_b16 {vr(f+2*hh, 2)}, v{vWR[s & 3]} offset:{16384+u*8192+hh*512}", ("w", s, u)) for hh in range(2)]
    def stat_ops(s):
        o = []
        for j in range(4):
            x = xf(s) + j
            o += [f"v_lshlrev_b32 v{vST[0]}, 16, v{x}", f"v_and_b32 v{vST[1]}, 0xffff0000, v{x}",
                  f"v_add_f32 v{vS[0]}, v{vS[0]}, v{vST[0]}", f"v_add_f32 v{vS[1]}, v{vS[1]}, v{vST[1]}",
                  f"v_fmac_f32 v{vQ[0]}, v{vST[0]}, v{vST[0]}", f"v_fmac_f32 v{vQ[1]}, v{vST[1]}, v{vST[1]}"]
        return o
    if OPT["prio"]:
        a(f"s_cmp_{'ge' if OPT['prio'] == 1 else 'lt'}_u32 s{sW}, 4")
        a("s_cbranch_scc0 L_np")
        a("s_setprio 1")
        a.label("L_np")
    stamp(name="setup")
    W(vm.wait(("st", 0)))
    if OPT["start"] == 2: emit_dma(dma_p0(1))
    if OPT["start"] in (1, 2): emit_dma(dma_p0(2))
    a(lg.drain())
    a("s_barrier")
    stamp(name="wait st0")
    a.label("X_begin")
    for s in range(2):
        lds(rd_x(s))
        for u in range(3): lds(rd_w0(s, u))
    pend = []
    WTH = [3, 5, 7, 9, 11, 13, 15]
    for h in range(16):
        t = h >> 1; odd = h & 1
        valu = []
        if odd:
            if t < 7: valu = slot_adv(t + 1, [vXR[0], vWR[0], vXR[1], vWR[1], vXR[2], vWR[2], vXR[3], vWR[3]])
            else: valu = slot_adv(t + 1, vWR)
            g, tag = dma_p0(t + 3) if t + 3 < 8 else dma_p1(t + 3 - 8)
            pend = [(pre, ld, tag) for pre, ld in g]
        if h < 15: valu += stat_ops(2 * h)
        if h == 14: valu += stat_ops(30)
        dm = {}
        if h == 0 and OPT["start"] == 3:
            g, tag = dma_p0(2); dm = dict(zip([0, 2, 4, 6, 8], [(pre, ld, tag) for pre, ld in g]))
        if h == 0 and OPT["start"] == 4:
            g, tag = dma_p0(1); g2, tag2 = dma_p0(2)
            lst = [(pre, ld, tag) for pre, ld in g] + [(pre, ld, tag2) for pre, ld in g2[:4]]
            dm = dict(zip(range(9), lst)); late4 = (g2[4], tag2)
        if h >= 1:
            if odd and h < 15: now = pend[:3]; pend = pend[3:]; sl_ = [0, 2, 4]
            elif odd: now = pend; pend = []; sl_ = [0, 2, 3, 5]
            else: now = pend; pend = []; sl_ = [1, 5]
            dm = dict(zip(sl_, now))

        mfs = []
        for ss in range(2):
            s = 2 * h + ss
            for u in range(3):
                tags = ([("x", s)] if u == 0 else []) + [("w", s, u)]
                if OPT["wmerge"]: tags = [("w", s, 2)] if u == 0 else []
                mfs.append((tags, f"{MF32} {vr(acc(u),16)}, {vr(fslot(3*s+u))}, {vr(xf(s))}, {vr(acc(u),16) if s else 0}"))
                if (s & 3) == 0:
                    mfs.append(([], f"{MF16} {vr(CA[u])}, {vr(fslot(3*s+u))}, {vr(SEL)}, {vr(CA[u]) if s else 0}"))
        free = {}
        idx = 0
        for ss in range(2):
            for u in range(3):
                idx += 2 if ((2 * h + ss) & 3) == 0 else 1
                free[(ss, u)] = idx - 1
        reads = []
        if h + 1 < 16:
            s0 = 2 * h + 2
            reads += [(i_, tg, 0) for i_, tg in rd_x(s0)]
            for u in range(3): reads += [(i_, tg, 0) for i_, tg in rd_w0(s0, u)]
            reads += [(i_, tg, 0) for i_, tg in rd_x(s0 + 1)]
            for u in range(3): reads += [(i_, tg, free[(0, u)]) for i_, tg in rd_w0(s0 + 1, u)]
        if h == 7:
            a(f"buffer_load_dword v{vPOLL}, off, {sr(SDBG)}, 0"); vm.issue("nonce")
        if OPT["wpf"] and h in WTH: wtouch(WTH.index(h))
        fl = None
        if h == 14:
            mfs[4] = (mfs[4][0] + [("x", 30)], mfs[4][1])
        if h == 15:
            TR = fslot(3 * 29)
            assert fslot(3*29+1) == TR + 4
            fl = x_reduce(XA0, TR, f"ds_read_b64 v[{vQ[0]}:{vQ[1]}], v{vX0} @cp") + F(f"""
            v_add_f32 v{vS[0]}, v{vS[0]}, v{vQ[0]}
            v_add_f32 v{vS[1]}, v{vS[1]}, v{vQ[1]}
            v_mul_f32 v{vNM}, {hx(-1.0/512)}, v{vS[0]}
            v_mul_f32 v{vQ[1]}, v{vNM}, v{vNM}
            v_mov_b32 v{vST[1]}, {hx(1.0/512)}
            v_fma_f32 v{vVE}, v{vS[1]}, v{vST[1]}, -v{vQ[1]}
            v_max_f32 v{vVE}, 0, v{vVE}
            v_add_f32 v{vVE}, {hx(1e-5)}, v{vVE}
            v_rsq_f32 v{vA_}, v{vVE}
            v_mul_f32 v{vC1}, {hx(GK1)}, v{vA_}
            v_mul_f32 v{vC2}, v{vA_}, v{vA_}
            v_mul_f32 v{vC2}, v{vC2}, v{vA_}
            v_mul_f32 v{vC2}, {hx(GK2)}, v{vC2}
            v_and_b32 v{vX0}, 31, v{vL}
            v_lshrrev_b32 v{vX1}, 5, v{vL}
            v_lshlrev_b32 v{vX1}, 4, v{vX1}
            v_lshl_add_u32 v{vX0}, v{vX0}, 5, v{vX1}
            s_lshl_b32 s{sT0}, s{sRB}, 12
            s_lshl_b32 s{sT1}, s{sMG}, 10
            s_add_u32 s{sT0}, s{sT0}, s{sT1}
            v_add_u32 v{vX0}, s{sT0}, v{vX0}
            """)
        run_slots(mfs, reads, valu, dm, rstart=0, rper=(3.0 if odd else 2.0), vper=(6 if (odd or h == 14) else 3), fill=fl, fper=6)
        while fl: do_fill(fl.pop(0))
        if h == 14:
            a(f"""
            v_add_f32 v{vS[0]}, v{vS[0]}, v{vS[1]}
            v_add_f32 v{vQ[0]}, v{vQ[0]}, v{vQ[1]}
            v_mov_b32 v{vS[1]}, v{vS[0]}
            v_mov_b32 v{vQ[1]}, v{vQ[0]}
            v_and_b32 v{vX0}, 31, v{vL}
            v_lshlrev_b32 v{vX0}, 3, v{vX0}
            v_permlane32_swap_b32 v{vS[0]}, v{vS[1]}
            v_permlane32_swap_b32 v{vQ[0]}, v{vQ[1]}
            s_lshl_b32 s{sT0}, s{sW}, 8
            s_add_u32 s{sT0}, s{sT0}, {L_RS}
            v_add_u32 v{vX0}, s{sT0}, v{vX0}
            v_add_f32 v{vS[0]}, v{vS[0]}, v{vS[1]}
            v_add_f32 v{vS[1]}, v{vQ[0]}, v{vQ[1]}
            ds_write_b128 v{XA0[0]}, {vr(CA[0])}
            ds_write_b128 v{XA0[0]}, {vr(CA[1])} offset:128
            ds_write_b128 v{XA0[0]}, {vr(CA[2])} offset:256
            ds_write_b64 v{vX0}, v[{vS[0]}:{vS[1]}]
            v_xor_b32 v{vX0}, 0x100, v{vX0}
            """)
            lg.issue("misc", 4)
        if h == 0 and OPT["start"] == 4:
            a.extend(late4[0][0]); a(late4[0][1]); vm.issue(late4[1])
        if not odd:
            if OPT["fine"] == 4: stamp(name=f"p0 mm{t}")
            a(lg.drain())
            W(vm.wait(("st", t + 1)))
            if OPT["fine"] == 4: stamp(name=f"p0 vm{t}")
            a("s_barrier")
            if OPT["fine"] == 4: stamp(name=f"p0 bar{t}")
    a.label("X_end")
    stamp(name="pass0")
    fillS = F(f"""
    s_lshl_b32 s{sFL}, s{sRB}, 4
    s_lshl_b32 s{sT1}, s{sCGQ}, 2
    s_add_u32 s{sT1}, s{sT1}, s{sCGL}
    s_add_u32 s{sFL}, s{sFL}, s{sT1}
    s_lshr_b32 s{sQB}, s{sRB}, 1
    s_and_b32 s{sHD}, s{sFL}, 31
    s_lshl_b32 s{sMT}, s{sCGQ}, 3
    s_add_u32 s{sMT}, s{sMT}, s{sRL}
    s_and_b32 s{sNT}, s2, 1
    s_lshl_b32 s{sNT}, s{sNT}, 2
    s_add_u32 s{sNT}, s{sNT}, s{sCGL}
    s_and_b32 s{sCT}, s{sW}, 3
    s_lshr_b32 s{sKH}, s{sW}, 2
    s_lshl_b32 s{sJS}, s{sCT}, 1
    s_sub_u32 s{sJS}, 8, s{sJS}
    s_cmp_eq_u32 s{sQB}, 0
    s_cselect_b32 s{sJS}, s{sJS}, 0
    """)
    E = 40
    vQA = vX0
    W(vm.wait("nonce"))
    a(f"v_readfirstlane_b32 s{sTAG}, v{vPOLL}")
    rare([f"s_cmp_eq_u32 s{sTAG}, 0"], f"""
    s_mov_b32 s{sCNT}, 0
    L_nc:
    s_sleep 2
    buffer_load_dword v{vPOLL}, off, {sr(SDBG)}, 0{SC}
    s_waitcnt vmcnt(0)
    v_readfirstlane_b32 s{sTAG}, v{vPOLL}
    s_add_u32 s{sCNT}, s{sCNT}, 1
    s_cmp_gt_u32 s{sCNT}, 0x8000
    s_cbranch_scc1 L_nd
    s_cmp_eq_u32 s{sTAG}, 0
    s_cbranch_scc1 L_nc
    L_nd:
    """)
    def cs_fold(nu, accf, tmp, tr):
        def rd(u):
            for q in range(4):
                a(f"ds_read_b128 {vr(tmp+16*(u&1)+4*q)}, v{tr} offset:{u*128+q*32}"); lg.issue(("cf", u))
        rd(0); rd(1)
        for u in range(nu):
            W(lg.wait(("cf", u)))
            for r in range(16): a(f"v_fmac_f32 v{accf(u)+r}, v{vNM}, v{tmp+16*(u&1)+r}")
            if u + 2 < nu: rd(u + 2)
    cs_fold(3, acc, E, XA0[3])
    stamp(name="E0 serial")
    def f_qkv(x, uadd, tmp, tag):
        o = [('s', f"s_add_u32 s{sE0}, s{sU0}, {uadd}"), ('s', f"s_cmp_lt_u32 s{sE0}, 8\ns_cselect_b32 s{sSC0}, {hx(QSCALE)}, 1.0"),
             ('s', f"s_lshl_b32 s{sE0}, s{sE0}, 2"), ('s', f"s_lshl_b32 s{sE1}, s{sNH}, 1"), ('s', f"s_add_u32 s{sE0}, s{sE0}, s{sE1}"),
             ('s', f"s_lshl_b32 s{sE0}, s{sE0}, 16"), ('s', f"s_add_u32 s{sE0}, s{sE0}, {WS_QKV}"), ('s', f"s_add_u32 s{sE1}, s{sE0}, 0x10000"),
             ('v', f"v_mul_f32 v{tmp+8}, s{sSC0}, v{vA_}")]
        for e in range(2):
            for r in range(8): o.append(('v', f"v_mul_f32 v{x+8*e+r}, v{tmp+8}, v{x+8*e+r}"))
            for r in range(4): o.append(('v', f"v_cvt_pk_bf16_f32 v{tmp+4*e+r}, v{x+8*e+2*r}, v{x+8*e+2*r+1}"))
            o.append(('m', f"buffer_store_dwordx4 {vr(tmp+4*e)}, v{vQA}, {sr(SWS)}, s{sE0 if e == 0 else sE1} offen{SC}", tag))
        return o
    def f_h(g, u, spair, tmp, tag):
        o = [('s', f"s_lshl_b32 s{sE0}, s{spair}, 1"), ('s', f"s_add_u32 s{sE0}, s{sE0}, s{sNH}"), ('s', f"s_lshl_b32 s{sE0}, s{sE0}, 7"),
             ('s', f"s_lshl_b32 s{sE1}, s{sRB}, 2"), ('s', f"s_add_u32 s{sE0}, s{sE0}, s{sE1}"),
             ('s', f"s_add_u32 s{sE0}, s{sE0}, s{sMG}"), ('s', f"s_lshl_b32 s{sE0}, s{sE0}, 10"), ('s', f"s_add_u32 s{sE1}, s{sE0}, 0x10000")]
        t = tmp + 8
        for e in range(2):
            for q in range(2):
                G_, U_ = g + 8 * e + 4 * q, u + 8 * e + 4 * q
                for r in range(4): o.append(('v', f"v_mul_f32 v{t+r}, v{G_+r}, v{G_+r}"))
                for r in range(4): o.append(('v', f"v_fma_f32 v{t+r}, v{t+r}, v{vC2}, v{vC1}"))
                for r in range(4): o.append(('v', f"v_mul_f32 v{t+r}, v{t+r}, v{G_+r}"))
                for r in range(4): o.append(('v', f"v_exp_f32 v{t+r}, v{t+r}"))
                for r in range(4): o.append(('v', f"v_mul_f32 v{G_+r}, v{G_+r}, v{U_+r}"))
                for r in range(4): o.append(('v', f"v_fma_f32 v{t+r}, v{t+r}, v{vVE}, v{vVE}"))
                for r in range(4): o.append(('v', f"v_rcp_f32 v{t+r}, v{t+r}"))
                for r in range(4): o.append(('v', f"v_mul_f32 v{G_+r}, v{G_+r}, v{t+r}"))
                o.append(('v', f"v_cvt_pk_bf16_f32 v{tmp+4*e+2*q}, v{G_}, v{G_+1}"))
                o.append(('v', f"v_cvt_pk_bf16_f32 v{tmp+4*e+2*q+1}, v{G_+2}, v{G_+3}"))
            o.append(('m', f"buffer_store_dwordx4 {vr(tmp+4*e)}, v{vD}, {sr(SWS)}, s{sE0 if e == 0 else sE1} offen{SC}", tag))
        return o
    vWS, vWS2 = vWq, vX1
    sRE, sRLt, sB6, sB8 = sR2, sWQ, sWL, sCGQ
    fillS += F(f"""
    v_and_b32 v{vWS2}, 7, v{vL}
    v_bfe_u32 v{vST[1]}, v{vL}, 4, 1
    v_lshlrev_b32 v{vST[1]}, 2, v{vST[1]}
    v_xor_b32 v{vWS2}, v{vWS2}, v{vST[1]}
    v_lshlrev_b32 v{vWS2}, 4, v{vWS2}
    v_lshrrev_b32 v{vST[1]}, 3, v{vL}
    v_lshl_add_u32 v{vWS}, v{vST[1]}, 10, v{vWS2}
    s_lshl_b32 s{sT1}, s{sNT}, 7
    s_lshl_b32 s{sT2}, s{sCT}, 14
    s_add_u32 s{sT1}, s{sT1}, s{sT2}
    v_add_u32 v{vWS}, s{sT1}, v{vWS}
    v_add_u32 v{vWS2}, {8192-1024}, v{vWS}
    s_mov_b32 s{SWD}, s16
    s_and_b32 s{SWD+1}, s17, 0xffff
    s_mov_b32 s{SWD+2}, {1792*1024}
    s_mov_b32 s{SWO}, s8
    s_and_b32 s{SWO+1}, s9, 0xffff
    s_mov_b32 s{SWO+2}, {512*1024}
    s_mov_b32 s{SOUT}, s18
    s_and_b32 s{SOUT+1}, s19, 0xffff
    s_mov_b32 s{SOUT+2}, {2048*1024}
    s_lshl_b32 s{sAO}, s{sMT}, 11
    s_lshl_b32 s{sT1}, s{sCT}, 16
    s_add_u32 s{sAO}, s{sAO}, s{sT1}
    s_lshl_b32 s{sT1}, s{sCGL}, 1
    s_add_u32 s{sRLt}, s{sR2}, s{sT1}
    s_and_b32 s{sRLt}, s{sRLt}, {R2MASK}
    s_sub_u32 s{sT1}, s{sRLt}, 6
    s_min_u32 s{sRE}, s{sRLt}, s{sT1}
    s_lshl_b32 s{sB6}, s{sCT}, 11
    """)
    AREAS = [0, SLOT, 2 * SLOT]
    sLB = sB6
    def unit_calc(sg):
        if sg < 6:
            return [f"s_add_u32 s{sT2}, s{sRE}, {sg}", f"s_sub_u32 s{sT3}, s{sT2}, 6", f"s_min_u32 s{sT2}, s{sT2}, s{sT3}"]
        return [f"s_add_u32 s{sT2}, s{sRLt}, {sg-6}", f"s_and_b32 s{sT2}, s{sT2}, 7", f"s_add_u32 s{sT2}, s{sT2}, 12"]
    def wdma(sg, calc=True):
        ar = AREAS[sg % 3]; d = 6 if sg < 6 else 8; g = []
        for q in range(2):
            pre = (unit_calc(sg) if (calc and q == 0) else []) + [f"s_add_u32 m0, s{sLB}, {ar+16384+q*8192}"]
            pre += [f"s_lshl_b32 s{sT0}, s{sT2}, 16"] if q == 0 else [f"s_add_u32 s{sT0}, s{sT0}, {d << 16}"]
            g += [(pre, f"buffer_load_dwordx4 v{vWS}, {sr(SWD)}, s{sT0} offen lds"),
                  ([], f"buffer_load_dwordx4 v{vWS2}, {sr(SWD)}, s{sT0} offen offset:1024 lds")]
        return g, ("g", sg)
    def adma(sg, calc=True):
        ar = AREAS[sg % 3]; d = 6 if sg < 6 else 8; g = []
        for q in range(2):
            pre = (unit_calc(sg) if (calc and q == 0) else []) + [f"s_add_u32 m0, s{sLB}, {ar+q*8192}"]
            pre += [f"s_lshl_b32 s{sT0}, s{sT2}, 18", f"s_add_u32 s{sT0}, s{sT0}, s{sAO}"] if q == 0 else [f"s_add_u32 s{sT0}, s{sT0}, {d << 18}"]
            g += [(pre, f"buffer_load_dwordx4 v{vD}, {sr(SWS)}, s{sT0} offen lds"),
                  ([], f"buffer_load_dwordx4 v{vD}, {sr(SWS)}, s{sT0} offen offset:1024 lds")]
        return g, ("g", sg)
    def wodma(pz):
        ar = AREAS[pz]; g = []
        for q in range(2):
            pre = [f"s_add_u32 m0, s{sLX}, {ar+q*16384}", f"s_lshl_b32 s{sT0}, s{sKH}, 18", f"s_add_u32 s{sT0}, s{sT0}, {(2*pz+q) << 16}"]
            g += [(pre, f"buffer_load_dwordx4 v{vWS}, {sr(SWO)}, s{sT0} offen lds"),
                  ([], f"buffer_load_dwordx4 v{vWS2}, {sr(SWO)}, s{sT0} offen offset:1024 lds")]
        return g, ("wo", pz)
    W0 = [f"s_cmp_eq_u32 s{sW}, 0"]
    def publish(level):
        if level < 4:
            adr = f"""s_lshr_b32 s92, s{sFL}, 4
            s_lshl_b32 s92, s92, 7
            s_and_b32 s93, s{sFL}, 15
            s_lshl_b32 s93, s93, 2
            s_add_u32 s92, s92, s93"""
        else:
            adr = f"s_lshl_b32 s92, s{sFL}, 2"
        rare(W0, f"""
        {adr}
        s_add_u32 s92, s92, {WS_F + (level-1)*4096}
        v_mov_b32 v{vPUB}, s{sTAG}
        s_mov_b64 exec, 1
        buffer_store_dword v{vPUB}, off, {sr(SWS)}, s92{SC}
        s_mov_b64 exec, -1
        """)
    def poll_addr(kind):
        if kind == 1:
            return f"""v_lshrrev_b32 v{vPO}, 4, v{vL}
            v_lshlrev_b32 v{vPO}, 7, v{vPO}
            v_and_b32 v{vPOLL}, 15, v{vL}
            v_lshl_add_u32 v{vPO}, v{vPOLL}, 2, v{vPO}"""
        m = 15 if kind == 2 else 31
        return f"""v_and_b32 v{vPO}, {m}, v{vL}
            v_lshlrev_b32 v{vPO}, 2, v{vPO}"""
    def poll_issue(tag, sbase, kind):
        rare(W0, f"""
        {poll_addr(kind)}
        buffer_load_dword v{vPOLL}, v{vPO}, {sr(SWS)}, s{sbase} offen{SC}
        """)
        vm.mark(tag)
    def poll_check(tag, sbase, kind):
        n = U()
        rare(W0, f"""
        {vm.peek(tag)}
        s_mov_b32 s{sCNT}, 0
        L_pl{n}:
        v_cmp_ne_u32 vcc, s{sTAG}, v{vPOLL}
        s_nop 4
        s_cbranch_vccz L_pd{n}
        s_add_u32 s{sCNT}, s{sCNT}, 1
        s_cmp_gt_u32 s{sCNT}, 0x20000
        s_cbranch_scc1 L_pd{n}
        buffer_load_dword v{vPOLL}, v{vPO}, {sr(SWS)}, s{sbase} offen{SC}
        s_sleep {OPT["psl"]}
        s_waitcnt vmcnt({OPT["pdepth"]})
        s_branch L_pl{n}
        L_pd{n}:
        """)
        fstamp(f"poll {tag}")
    sPB = sXB
    for it in f_qkv(acc(0), 0, E, "eq"): do_fill(it)
    def acc1_init():
        pass
    R1 = [36, SPARE, 6, CA[2], xf(0), xf(1)]
    def f1(s, u): return R1[(2 * s + u) % 6]
    def acc1(u): return ACC1 + 16 * u
    def rd_w1(s):
        c2 = (s >> 2) & 1
        return [(f"ds_read_b64_tr_b16 {vr(f1(s,u)+2*hh,2)}, v{vWR[s & 3]} offset:{c2*16384+u*8192+hh*512}", ("w1", s, u)) for u in range(2) for hh in range(2)]
    PFS = [0, 3, 10, 13, 19]
    def pass1(fill, nq):
        lds(rd_w1(0)); lds(rd_w1(1))
        early = list(fillS)
        for s in range(32):
            Tq, r8 = s >> 3, s & 7; g = 8 + Tq
            cur["step"] = s
            valu = []; dm = {}
            if r8 == 6 and Tq < 3:
                a(lg.drain())
                f2stamp(f"p1 mm{Tq}")
                if Tq == 0:
                    while early: do_fill(early.pop(0))
                if Tq == 1: W(vm.wait("eq"))
                W(vm.wait(("st", g + 1)))
                f2stamp(f"p1 vmwait{Tq}")
                a("s_barrier")
                f2stamp(f"p1 bar{Tq}")
                if OPT["wpf"] and Tq < 2: wtouch(7 + Tq)
                if Tq == 1: publish(1)
                valu = slot_adv(g + 1, vWR)
                if Tq <= OPT["early_b"]:
                    gr, tag = dma_p1(3) if Tq == 0 else wodma(Tq - 1)
                    pass1.pend = [(pre, ld, tag) for pre, ld in gr]
            if s == 30:
                assert not fill, "fillers must be done before the exchange barrier"
                a(f"ds_write_b128 v{XA1[0]}, {vr(CA[0])}")
                a(f"ds_write_b128 v{XA1[0]}, {vr(CA[1])} offset:128")
                poll_check("p1", sPB, 1)
                if "eh" in vm.q: W(vm.wait("eh"))
                W(vm.wait(("wo", 1)))
                a(lg.drain())
                a("s_barrier")
                publish(2)
                kv_loads()
                fill.extend(x_reduce(XA1, xf(4)))
            if getattr(pass1, "pend", None) and (r8 in (6, 7, 0, 1)):
                dm = {1: pass1.pend.pop(0)}
            mfs = []
            for u in range(2):
                mfs.append((([("w1", s, 1)] if u == 0 else []) if OPT["wmerge"] else [("w1", s, u)], f"{MF32} {vr(acc1(u),16)}, {vr(f1(s,u))}, {vr(xf(s))}, {vr(acc1(u),16) if s else 0}"))
                if (s & 3) == 0:
                    mfs.append(([], f"{MF16} {vr(CA[u])}, {vr(f1(s,u))}, {vr(SEL)}, {vr(CA[u]) if s else 0}"))
            last = len(mfs) - 1
            reads = []
            if s + 2 < 32:
                e = last if s == 0 else 0
                if s == 0:
                    reads = [(i_, tg, last) for i_, tg in rd_w1(2)[:2]]
                elif s == 1:
                    reads = [(i_, tg, last) for i_, tg in rd_w1(2)[2:]] + [(i_, tg, last) for i_, tg in rd_w1(3)]
                else:
                    reads = [(i_, tg, 0) for i_, tg in rd_w1(s + 2)]
            run_slots(mfs, reads, valu, dm, rper=2.0 if s > 1 else 8.0, vper=4, fill=(early if early else (fill if s >= 5 else None)), fper=(4 if early else OPT["fper"]))
            if s == 25:
                a(f"""
                s_lshl_b32 s{sPB}, s{sQB}, 8
                s_sub_i32 s{sPB}, s{sPB}, 256
                s_max_i32 s{sPB}, s{sPB}, 0
                s_add_u32 s{sPB}, s{sPB}, {WS_F}
                """)
                poll_issue("p1", sPB, 1)
        cur["step"] = None
        print("fill left after pass1:", len(fill), file=sys.stderr)
        while fill: do_fill(fill.pop(0))
    vM, vKR, vVR, vVS, vBIG = 1, 4, 5, 6, 7
    P2r = 8; KF = [16, 20]; VT = 24; P = 32; S = [40, 56]; NEG = 80; O = 96
    QF = 76; QF1 = 112; ACC3 = 112; WOF = 128
    hKR, hVR, hVS, hWRd, hAR = 176, 177, 178, 179, 180
    t0, t1, t2 = 190, 191, 175
    MP = [4 + 2 * i for i in range(10)] + [40, 42, 44, 46] + [64, 66]
    fillM = F(f"""
    v_and_b32 v{t0}, 31, v{vL}
    v_lshrrev_b32 v{t1}, 5, v{vL}
    v_lshlrev_b32 v{t2}, 2, v{t1}
    v_sub_u32 v{t2}, v{t0}, v{t2}
    """ + "\n".join(f"v_cmp_le_i32 s[{MP[r]}:{MP[r]+1}], {8*(r>>2)+(r&3)}, v{t2}" for r in range(16)) + f"""
    v_lshlrev_b32 v{hKR}, 4, v{t1}
    v_lshl_add_u32 v{hKR}, v{t0}, 5, v{hKR}
    v_bfe_u32 v{t0}, v{vL}, 2, 2
    v_lshl_add_u32 v{t0}, v{t1}, 2, v{t0}
    v_and_b32 v{t2}, 1, v{vL}
    v_lshlrev_b32 v{t2}, 4, v{t2}
    v_lshl_add_u32 v{hVR}, v{t0}, 5, v{t2}
    v_bfe_u32 v{t2}, v{vL}, 1, 1
    v_lshl_add_u32 v{hVR}, v{t2}, 3, v{hVR}
    v_lshlrev_b32 v{hWRd}, 7, v{t0}
    v_bfe_u32 v{t2}, v{vL}, 3, 1
    s_bfe_u32 s{sE0}, s{sW}, 0x10001
    v_xor_b32 v{t2}, s{sE0}, v{t2}
    v_lshl_add_u32 v{hWRd}, v{t2}, 6, v{hWRd}
    v_bfe_u32 v{t2}, v{vL}, 4, 1
    v_lshl_add_u32 v{hWRd}, v{t2}, 5, v{hWRd}
    v_and_b32 v{t2}, 3, v{vL}
    v_lshl_add_u32 v{hWRd}, v{t2}, 3, v{hWRd}
    s_lshl_b32 s{sT2}, s{sNH}, 10
    v_add_u32 v{hAR}, s{sT2}, v{vD}
    v_bfe_u32 v{t2}, v{vL}, 4, 1
    v_xor_b32 v{t2}, 1, v{t2}
    v_lshlrev_b32 v{hVS}, 10, v{t2}
    s_add_u32 s{sT1}, s{sLB}, {(LV - LONE) & 0xffffffff}
    v_mul_lo_u32 v{t0}, v{t2}, s{sT1}
    v_add_u32 v{hVR}, v{hVR}, v{t0}
    v_add_u32 v{hVR}, {LONE}, v{hVR}
    """)
    def kv_loads():
        a(f"""
        s_lshl_b32 s{sT0}, s{sQB}, 8
        s_lshl_b32 s{sT1}, s{sW}, 6
        s_add_u32 s{sT1}, s{sT1}, s{sT0}
        s_sub_i32 s{sT1}, s{sT1}, 256
        s_max_i32 s{sT1}, s{sT1}, 0
        s_lshl_b32 s{sT1}, s{sT1}, 5
        s_lshl_b32 s{sT2}, s{sHD}, 16
        s_add_u32 m0, s{sLX}, {LK}
        s_add_u32 s{sT1}, s{sT1}, s{sT2}
        s_add_u32 s{sT3}, s{sT1}, {WS_QKV + 64*65536}
        s_add_u32 s{sT1}, s{sT1}, {WS_QKV + 32*65536}
        buffer_load_dwordx4 v{vD}, {sr(SWS)}, s{sT1} offen lds
        buffer_load_dwordx4 v{vD}, {sr(SWS)}, s{sT1} offen offset:1024 lds
        s_add_u32 m0, s{sLX}, {LV}
        s_nop 0
        buffer_load_dwordx4 v{vD}, {sr(SWS)}, s{sT3} offen lds
        buffer_load_dwordx4 v{vD}, {sr(SWS)}, s{sT3} offen offset:1024 lds
        """)
        vm.issue("kv", 4)
    XA1 = [172, 173, 174, 167]
    fillM = F(xaddr(*XA1, sT1, sT2)) + fillM
    TF = xf(2)
    fillA = f_h(acc(1), acc(2), sP0, TF, "eh") + [('at', 17)] + list(fillM)
    fillB = [('at', 17)] + list(fillM)
    sv, sl0, sn = vm.save(), lg.save(), nstamp[0]
    a(f"s_cmp_eq_u32 s{sTB}, 1")
    a("s_cbranch_scc1 L_p1b")
    acc1_init()
    pass1.pend = []
    pass1(fillA, 2)
    stA = vm.save()
    a("s_branch L_e1")
    a.label("L_p1b")
    vm.restore(sv); lg.restore(sl0); nstamp[0] = sn; del SNAMES[sn:]
    for it in f_qkv(acc(1), 1, E + 12, "eq") + f_qkv(acc(2), 2, E, "eq"): do_fill(it)
    acc1_init()
    pass1.pend = []
    pass1(fillB, 6)
    stB = vm.save()
    a.label("L_e1")
    qa = [t for t in stA[0] if t not in ("eq", "eh")]; qb_ = [t for t in stB[0] if t not in ("eq", "eh")]
    if len(qb_) > len(qa): qa, qb_ = qb_, qa
    assert qa[len(qa) - len(qb_):] == qb_, (qa, qb_)
    vm.q = list(qa)
    vm.total = 1000; vm.marks = {}
    stamp(name="pass1")
    NB = 16
    def e1_body(extra):
        cs_fold(2, acc1, ACC, XA1[3])
        fe1 = f_h(acc1(0), acc1(1), sPF, ACC, "e1")
        st_last = [it for it in fe1 if it[0] == 'm']
        fe1 = [it for it in fe1 if it[0] != 'm']
        rate = len(extra) / (len(fe1) - 8); acc_ = 0.0
        for it in fe1:
            do_fill(it); acc_ += rate
            while extra and acc_ >= 1.0: extra.pop(0)(); acc_ -= 1.0
        while extra: extra.pop(0)()
        return st_last
    svv, svl, sn2 = vm.save(), lg.save(), nstamp[0]
    a(f"s_cmp_eq_u32 s{sKH}, 1")
    a("s_cbranch_scc1 L_B")
    vW0, vW1 = 10, 11
    a(f"""
    s_lshl_b32 s{sT0}, s{sQB}, 13
    s_add_u32 s{sT0}, s{sT0}, s{sLB}
    s_lshl_b32 s{sT2}, s{sHD}, 16
    s_add_u32 s{sT0}, s{sT0}, s{sT2}
    s_add_u32 s{sT0}, s{sT0}, {WS_QKV}
    buffer_load_dwordx4 {vr(QF)}, v{hKR}, {sr(SWS)}, s{sT0} offen
    buffer_load_dwordx4 {vr(QF1)}, v{hKR}, {sr(SWS)}, s{sT0} offen offset:1024
    s_add_u32 s{sT0}, s{sLB}, {LK}
    v_add_u32 v{vKR}, s{sT0}, v{hKR}
    v_mov_b32 v{vVR}, v{hVR}
    v_mov_b32 v{vVS}, v{hVS}
    v_mov_b32 v{vBIG}, {hx(2.0**OPT["fbexp"])}
    v_mov_b32 v{vW0}, v{hWRd}
    v_add_u32 v{vW1}, {SLOT}, v{hWRd}
    s_lshr_b32 s{sPB}, s{sMT}, 1
    s_lshl_b32 s{sPB}, s{sPB}, 7
    s_add_u32 s{sPB}, s{sPB}, {WS_F + 4096}
    """)
    vm.issue("q", 2)
    wof = []
    for f in range(32):
        unit, i = f >> 2, f & 3
        khp, pz, q = unit >> 2, (unit >> 1) & 1, unit & 1
        for hh in range(2):
            ins = f"ds_read_b64_tr_b16 {vr(WOF+4*f+2*hh,2)}, v{vW0 if pz == 0 else vW1} offset:{q*16384+(khp*4+i)*2048+hh*1024}"
            wof.append(lambda ins=ins: (a(ins), lg.issue("wof")))
    wof.insert(40, lambda: poll_issue("pe", sPB, 2))
    st_last = e1_body(wof)
    for it in st_last: do_fill(it)
    stamp(name="E1")
    poll_check("pe", sPB, 2)
    W(lg.wait("wof"))
    W(vm.wait("q"))
    a("s_barrier")
    stamp(name="bar0")
    nbar = [1]
    def abar():
        k = nbar[0]; nbar[0] += 1
        sg = k - 1
        if sg == OPT["ck3"]: poll_check("p2", sPB, 2)
        if sg == OPT["pub3"]: W(vm.wait("e1"))
        a("s_barrier")
        if sg == OPT["pub3"]: publish(3)
        if sg == OPT["ck3"] - 1:
            a(f"s_add_u32 s{sPB}, s{sPB}, 4096")
            poll_issue("p2", sPB, 2)
    credit = [0.0]; marks = [OPT["ab2"] + OPT["abs"] * i for i in range(20)]
    def A(ins, w=1.0):
        a(ins); credit[0] += w
        if marks and credit[0] >= marks[0] and nbar[0] < NB - OPT['apost']:
            marks.pop(0); abar()
    def mf_s(dst, kf): return f"{MF32} {vr(dst,16)}, {vr(kf)}, {vr(QF)}, {vr(NEG,16)}"
    def rdk(j, buf=None):
        a(f"ds_read_b128 {vr(KF[j & 1 if buf is None else buf])}, v{vKR} offset:{j*1024}"); lg.issue(("k", j))
    def cset(val): return "\n".join(val(r) for r in range(16))
    big = lambda r: f"v_mov_b32 v{NEG+r}, {NEGBIG}"
    negm = lambda r: f"v_sub_f32 v{NEG+r}, 0, v{vM}"
    def rdv(tag):
        for t in range(2):
            for hh in range(2):
                a(f"ds_read_b64_tr_b16 {vr(VT+4*t+2*hh,2)}, v{vVR} offset:{t*512+hh*256}"); lg.issue(tag)
    PB = [P, P2r]
    fb = Asm()
    def attention(rr):
        npv = [0]
        def pv1(p, t):
            npv[0] += 1
            return f"{MF32} {vr(O,16)}, {vr(VT+4*t)}, {vr(p+4*t)}, {vr(O,16) if npv[0] > 1 else 0}"
        rdk(8, 0); rdk(1)
        a(f"v_mov_b32 v{vM}, 0")
        W(lg.wait(("k", 8)))
        for r in range(4): a(f"v_dot2c_f32_bf16 v{vM}, v{QF+r}, v{KF[0]+r}")
        a(f"""
        v_mov_b32 v{VT}, v{vM}
        v_permlane32_swap_b32 v{vM}, v{VT}
        v_add_f32 v{vM}, v{vM}, v{VT}
        """)
        for r in range(16): A(negm(r))
        rare([f"s_cmp_gt_i32 s{sJS}, 1"], cset(big))
        for j in range(1, 9):
            if j >= 2: rare([f"s_cmp_eq_u32 s{sJS}, {j}"], cset(negm))
            W(lg.wait(("k", j)))
            a(mf_s(S[j & 1], KF[j & 1]))
            if j < 8: rdk(j + 1)
            else: rdk(0, 1)
            if j > 1:
                sx = S[(j - 1) & 1]; px = PB[(j - 1) & 1]
                ex = [f"v_exp_f32 v{sx+r}, v{sx+r}" for r in range(16)]
                cv = [f"v_cvt_pk_bf16_f32 v{px+r}, v{sx+2*r}, v{sx+2*r+1}" for r in range(8)]
                for x in ex[0:5]: A(x, 2)
                if j > 2:
                    W(lg.wait(("v", j - 2))); a(pv1(PB[j & 1], 0))
                for x in ex[5:10]: A(x, 2)
                if j > 2: a(pv1(PB[j & 1], 1))
                A(ex[10], 2); A(ex[11], 2)
                a(f"v_add_u32 v{vVR}, v{vVR}, v{vVS}")
                for q in range(4):
                    A(ex[12 + q], 2)
                    a(f"ds_read_b64_tr_b16 {vr(VT+2*q,2)}, v{vVR} offset:{(q>>1)*512+(q&1)*256}"); lg.issue(("v", j - 1))
                for x in cv: A(x)
        W(lg.wait(("k", 0)))
        a(mf_s(S[1], KF[1]))
        rare([f"s_cmp_gt_i32 s{sJS}, 0"], "s_nop 15\n" + "\n".join(f"v_mov_b32 v{S[1]+r}, {NEGBIG}" for r in range(16)))
        W(lg.wait(("v", 7)))
        a(pv1(PB[1], 0)); a(pv1(PB[1], 1))
        for r in range(16): A(f"v_cndmask_b32 v{S[0]+r}, v{S[1]+r}, v{S[0]+r}, s[{MP[r]}:{MP[r]+1}]")
        a(f"v_add_u32 v{vVR}, v{vVR}, v{vVS}")
        rdv(("v", 8))
        for r in range(16): A(f"v_exp_f32 v{S[0]+r}, v{S[0]+r}", 2)
        for r in range(16): A(f"v_cndmask_b32 v{S[1]+r}, 0, v{S[0]+r}, s[{MP[r]}:{MP[r]+1}]")
        for r in range(8): A(f"v_cvt_pk_bf16_f32 v{PB[0]+r}, v{S[1]+2*r}, v{S[1]+2*r+1}")
        W(lg.wait(("v", 8)))
        a(pv1(PB[0], 0))
        for r in range(8): A(f"v_cndmask_b32 v{S[0]+r}, v{S[0]+r}, 0, s[{MP[r]}:{MP[r]+1}]")
        a(pv1(PB[0], 1))
        a(f"v_lshlrev_b32 v{KF[0]}, 3, v{vVS}")
        a(f"v_sub_u32 v{vVR}, v{vVR}, v{KF[0]}")
        rdv(("v", 0))
        for r in range(8, 16): A(f"v_cndmask_b32 v{S[0]+r}, v{S[0]+r}, 0, s[{MP[r]}:{MP[r]+1}]")
        for r in range(8): A(f"v_cvt_pk_bf16_f32 v{PB[1]+r}, v{S[0]+2*r}, v{S[0]+2*r+1}")
        W(lg.wait(("v", 0)))
        a(pv1(PB[1], 0)); a(pv1(PB[1], 1))
        a(f"""
        s_lshl_b32 s{sE0}, s{sHD}, 16
        s_lshl_b32 s{sE1}, s{sQB}, 13
        s_add_u32 s{sE0}, s{sE0}, s{sE1}
        s_add_u32 s{sE0}, s{sE0}, s{sLB}
        s_add_u32 s{sE0}, s{sE0}, {WS_O + rr*1024}
        s_mov_b32 s{sE1}, {rr}
        v_cmp_nlt_f32 vcc, v{O+8}, v{vBIG}
        s_nop 4
        s_cbranch_vccnz L_fb
        L_fbd{rr}:
        v_rcp_f32 v{vM}, v{O+8}
        """)
        for r in range(8): a(f"v_mul_f32 v{O+r}, v{O+r}, v{vM}")
        for r in range(4): a(f"v_cvt_pk_bf16_f32 v{S[1]+r}, v{O+2*r}, v{O+2*r+1}")
        a(f"buffer_store_dwordx4 {vr(S[1])}, v{vD}, {sr(SWS)}, s{sE0} offen{SC}")
        vm.issue("o")
    if OPT["aprio"]: a(f"s_setprio {OPT['aprio']}")
    attention(0)
    for r in range(4): a(f"v_mov_b32 v{QF+r}, v{QF1+r}")
    a(f"""
    v_add_u32 v{vKR}, 0x400, v{vKR}
    v_add_u32 v{vVR}, v{vVR}, v{vVS}
    s_sub_i32 s{sJS}, s{sJS}, 1
    """)
    attention(1)
    print("barriers inside attention:", nbar[0], "credit", credit[0], file=sys.stderr)
    stamp(name="att")
    fb.label("L_fb")
    fb("s_nop 15")
    fb(f"v_mov_b32 v{vM}, {NEGBIG}")
    def fb_tile(j, c, dst):
        fb(f"ds_read_b128 {vr(KF[0])}, v{vKR} offset:{j*1024}")
        fb("s_waitcnt lgkmcnt(0)")
        fb(f"{MF32} {vr(dst,16)}, {vr(KF[0])}, {vr(QF)}, {c}")
    def fb_merged(c):
        n = U()
        for r in range(16): fb(f"v_mov_b32 v{S[1]+r}, {NEGBIG}")
        fb(f"s_cmp_gt_i32 s{sJS}, 0")
        fb(f"s_cbranch_scc1 L_fm{n}")
        fb_tile(0, c, S[1])
        fb.label(f"L_fm{n}")
        fb_tile(8, c, S[0])
        for r in range(16): fb(f"v_cndmask_b32 v{S[0]+r}, v{S[1]+r}, v{S[0]+r}, s[{MP[r]}:{MP[r]+1}]")
    def fb_max(s_):
        for r in range(0, 16, 2): fb(f"v_max3_f32 v{vM}, v{s_+r}, v{s_+r+1}, v{vM}")
    def fb_pv(j, p):
        fb(f"v_mul_u32_u24 v{KF[1]}, {j}, v{vVS}")
        fb(f"v_add_u32 v{KF[1]}, v{KF[1]}, v{vVR}")
        for q in range(4): fb(f"ds_read_b64_tr_b16 {vr(VT+2*q,2)}, v{KF[1]} offset:{(q>>1)*512+(q&1)*256}")
        fb("s_waitcnt lgkmcnt(0)")
        for t in range(2): fb(f"{MF32} {vr(O,16)}, {vr(VT+4*t)}, {vr(p+4*t)}, {vr(O,16)}")
    fb_merged("0"); fb_max(S[0])
    for j in range(1, 8):
        n = U()
        fb(f"s_cmp_gt_i32 s{sJS}, {j}"); fb(f"s_cbranch_scc1 L_fa{n}")
        fb_tile(j, "0", S[0]); fb_max(S[0])
        fb.label(f"L_fa{n}")
    fb(f"""
    v_mov_b32 v{VT}, v{vM}
    v_permlane32_swap_b32 v{vM}, v{VT}
    v_max_f32 v{vM}, v{vM}, v{VT}
    """)
    fb(cset(negm))
    for r in range(16): fb(f"v_mov_b32 v{O+r}, 0")
    fb_merged(vr(NEG, 16))
    for r in range(16): fb(f"v_exp_f32 v{S[0]+r}, v{S[0]+r}")
    for r in range(16): fb(f"v_cndmask_b32 v{S[1]+r}, 0, v{S[0]+r}, s[{MP[r]}:{MP[r]+1}]")
    for r in range(8): fb(f"v_cvt_pk_bf16_f32 v{P+r}, v{S[1]+2*r}, v{S[1]+2*r+1}")
    fb_pv(8, P)
    for r in range(16): fb(f"v_cndmask_b32 v{S[1]+r}, v{S[0]+r}, 0, s[{MP[r]}:{MP[r]+1}]")
    for r in range(8): fb(f"v_cvt_pk_bf16_f32 v{P+r}, v{S[1]+2*r}, v{S[1]+2*r+1}")
    fb_pv(0, P)
    for j in range(1, 8):
        n = U()
        fb(f"s_cmp_gt_i32 s{sJS}, {j}"); fb(f"s_cbranch_scc1 L_fc{n}")
        fb_tile(j, vr(NEG, 16), S[0])
        for r in range(16): fb(f"v_exp_f32 v{S[0]+r}, v{S[0]+r}")
        for r in range(8): fb(f"v_cvt_pk_bf16_f32 v{P+r}, v{S[0]+2*r}, v{S[0]+2*r+1}")
        fb_pv(j, P)
        fb.label(f"L_fc{n}")
    fb(f"""
    s_nop 15
    s_cmp_eq_u32 s{sE1}, 0
    s_cbranch_scc1 L_fbd0
    s_branch L_fbd1
    """)
    vXO = 4; XR = 8; vOA = 5; OFB = 16; vXD = 6; vXL = 7
    a(f"""
    s_lshl_b32 s{sT1}, s{sMT}, 16
    s_lshl_b32 s{sT2}, s{sNH}, 15
    s_add_u32 s{sT1}, s{sT1}, s{sT2}
    s_lshl_b32 s{sT2}, s{sNT}, 7
    s_add_u32 s{sT1}, s{sT1}, s{sT2}
    s_lshr_b32 s{sT2}, s{sCT}, 1
    s_lshl_b32 s{sT2}, s{sT2}, 6
    s_add_u32 s{sT1}, s{sT1}, s{sT2}
    v_and_b32 v{XR}, 31, v{vL}
    v_lshrrev_b32 v{XR+1}, 5, v{vL}
    v_lshlrev_b32 v{vXO}, 10, v{XR}
    v_lshl_add_u32 v{vXO}, v{XR+1}, 4, v{vXO}
    v_add_u32 v{vXO}, s{sT1}, v{vXO}
    v_lshlrev_b32 v{vXL}, 6, v{XR}
    v_lshl_add_u32 v{vXL}, v{XR+1}, 3, v{vXL}
    v_lshrrev_b32 v{vXD}, 2, v{vL}
    v_lshlrev_b32 v{vXD}, 10, v{vXD}
    v_and_b32 v{XR}, 3, v{vL}
    v_lshl_add_u32 v{vXD}, v{XR}, 4, v{vXD}
    s_add_u32 s{sT2}, s{sT1}, 0x4000
    s_add_u32 s{sT3}, s{sLB}, {LK}
    v_add_u32 v{vXL}, s{sT3}, v{vXL}
    s_lshl_b32 s{sE0}, s{sQB}, 2
    s_add_u32 s{sE0}, s{sE0}, s{sCT}
    s_lshl_b32 s{sE0}, s{sE0}, 7
    s_lshl_b32 s{sE1}, s{sHD}, 2
    s_add_u32 s{sE0}, s{sE0}, s{sE1}
    s_add_u32 s{sE0}, s{sE0}, {WS_F + 3*4096}
    v_mov_b32 v{vOA}, s{sTAG}
    """)
    abar()
    a(f"""
    s_mov_b32 m0, s{sT3}
    s_lshl_b32 s{sPB}, s{sMT}, 7
    buffer_load_dwordx4 v{vXD}, {sr(SX)}, s{sT1} offen lds
    s_add_u32 m0, s{sT3}, 1024
    s_add_u32 s{sPB}, s{sPB}, {WS_F + 3*4096}
    buffer_load_dwordx4 v{vXD}, {sr(SX)}, s{sT2} offen lds
    v_and_b32 v{vPO}, 31, v{vL}
    v_lshlrev_b32 v{vPO}, 2, v{vPO}
    """)
    vm.issue("x", 2)
    W(vm.wait("o"))
    a(f"""
    s_mov_b64 exec, 1
    buffer_store_dword v{vOA}, off, {sr(SWS)}, s{sE0}{SC}
    s_mov_b64 exec, -1
    s_lshl_b32 s{sE0}, s{sMT}, 11
    s_lshl_b32 s{sT1}, s{sNH}, 10
    s_add_u32 s{sE0}, s{sE0}, s{sT1}
    s_add_u32 s{sE0}, s{sE0}, {WS_O}
    v_mov_b32 v{vPOLL}, 0
    """)
    while nbar[0] < NB - 1: abar()
    stamp(name="A bars")
    a(f"""
    s_mov_b32 s{sCNT}, 0
    L_p3:
    buffer_load_dword v{vPOLL}, v{vPO}, {sr(SWS)}, s{sPB} offen{SC}
    s_sleep {OPT["psl"]}
    s_waitcnt vmcnt({OPT["pdepth"]})
    v_cmp_ne_u32 vcc, s{sTAG}, v{vPOLL}
    s_add_u32 s{sCNT}, s{sCNT}, 1
    s_cmp_gt_u32 s{sCNT}, 0x20000
    s_cbranch_scc1 L_p3d
    s_nop 2
    s_cbranch_vccnz L_p3
    L_p3d:
    """)
    vm.q = []
    stamp(name="p3")
    OQ = list(range(16, 72, 4)) + list(range(76, 112, 4))
    NO = len(OQ)
    def ofr(f): return OQ[f] if f < NO else WOF + 4 * (f - NO)
    def oload(f):
        if f: a(f"s_add_u32 s{sE0}, s{sE0}, 0x10000")
        a(f"buffer_load_dwordx4 {vr(ofr(f))}, v{vD}, {sr(SWS)}, s{sE0} offen"); vm.issue(("of", f))
    for f in range(NO): oload(f)
    GX = WOF + 40
    for f in range(32):
        W(vm.wait(("of", f)))
        a(f"{MF32} {vr(ACC3,16)}, {vr(WOF+4*f)}, {vr(ofr(f))}, {vr(ACC3,16) if f else 0}")
        if f + NO < 32: oload(NO + f)
        if f == 9:
            for q in range(4): a(f"ds_read_b64 v[{XR+2*q}:{XR+2*q+1}], v{vXL} offset:{16*q}")
        if f == 13: a("s_waitcnt lgkmcnt(0)")
        if 14 <= f < 22:
            d = f - 14
            a(f"v_lshlrev_b32 v{OFB+2*d}, 16, v{XR+d}")
            a(f"v_and_b32 v{OFB+2*d+1}, 0xffff0000, v{XR+d}")
        if f == 27:
            abar()
            a(f"s_lshl_b32 s{sT1}, s{sCT}, 12")
            a(f"v_add_u32 v{vOA}, s{sT1}, v{vD}")
            for q in range(4): a(f"ds_read_b128 {vr(GX+4*q)}, v{vOA} offset:{q*1024}")
    assert nbar[0] == NB
    stamp(name="G3")
    a("s_waitcnt lgkmcnt(0)")
    TM = OFB
    for i in range(16): a(f"v_fmac_f32 v{TM+i}, v{ACC3+i}, v{GX+i}")
    for i in range(8): a(f"v_cvt_pk_bf16_f32 v{TM+16+i}, v{TM+2*i}, v{TM+2*i+1}")
    for h2 in range(2):
        T4 = TM + 16 + 4 * h2
        a(f"v_permlane32_swap_b32 v{T4}, v{T4+2}")
        a(f"v_permlane32_swap_b32 v{T4+1}, v{T4+3}")
        a(f"buffer_store_dwordx4 {vr(T4)}, v{vXO}, {sr(SOUT)}, 0 offen offset:{32*h2}")
    a("s_branch L_fin")
    nsA = nstamp[0]
    a.label("L_B")
    vm.restore(svv); lg.restore(svl); nstamp[0] = sn2
    sav_names = list(SNAMES)
    vAR, vWRd = hAR, hWRd
    vAa = [182, 183]; vWa = [184, 185]
    ACC2 = 112; GF = 128
    ex_ = []
    for pre, ld in wdma(2)[0]:
        ex_.append(lambda pre=pre: a.extend(pre)); ex_.append(lambda ld=ld: (a(ld), vm.issue(("g", 2))))
    st_last = e1_body(ex_)
    for it in st_last: do_fill(it)
    a(f"v_add_u32 v{vWRd}, 0x4000, v{vWRd}")
    stamp(name="E1")
    W(vm.wait("kv"))
    a("s_barrier")
    stamp(name="bar0")
    if OPT["bprio"]: a(f"s_setprio {OPT['bprio']}")
    for sg in range(2):
        emit_dma(wdma(sg)); emit_dma(adma(sg, calc=False))
    DB = OPT['bdist']; NR = DB + 2
    GF = 192
    def ga(n): return GF + (n % NR) * 8
    def gw(n): return GF + (n % NR) * 8 + 4
    def g_reads(n):
        sg, i = n >> 3, n & 7
        return [(f"ds_read_b128 {vr(ga(n))}, v{vAa[sg & 1]} offset:{i*2048}", ("ga", n), 0)] + \
               [(f"ds_read_b64_tr_b16 {vr(gw(n)+2*hh,2)}, v{vWa[sg & 1]} offset:{i*2048+hh*1024}", ("ga", n), 0) for hh in range(2)]
    def bst(i):
        if not (STAMP and OPT["fineb"]): return
        a("s_memtime s[92:93]"); a("s_waitcnt lgkmcnt(0)"); lg.q = []
        a(f"v_writelane_b32 v{vSTAMP}, s92, {i}")
    def bbar(sg):
        if sg > 0: W(lg.wait(("ga", 8 * sg - 1)))
        bst(20 + 3 * sg)
        if sg == OPT["pub3"]: W(vm.wait("e1"))
        W(vm.wait(("g", sg)))
        bst(21 + 3 * sg)
        a("s_barrier")
        bst(22 + 3 * sg)
        a(f"v_add_u32 v{vAa[sg & 1]}, {AREAS[sg % 3]}, v{vAR}")
        a(f"v_add_u32 v{vWa[sg & 1]}, {AREAS[sg % 3]}, v{vWRd}")
    bbar(0)
    for n in range(DB):
        for ins, tg, _ in g_reads(n): a(ins); lg.issue(tg)
    pend = [(pre, ld, ("g", 2)) for pre, ld in adma(2)[0]]
    for n in range(112):
        sg, i = n >> 3, n & 7
        if i == 8 - DB and sg < 13:
            assert not pend
            bbar(sg + 1)
            s3 = sg + 3
            if s3 < 14:
                assert s3 < 6 or sg + 1 >= OPT["ck3"]
                pend = [(pre, ld, ("g", s3)) for pre, ld in wdma(s3)[0] + adma(s3, calc=False)[0]]
        dm = {0: pend.pop(0)} if pend else {}
        mfs = [([("ga", n)], f"{MF32} {vr(ACC2,16)}, {vr(gw(n))}, {vr(ga(n))}, {vr(ACC2,16) if n else 0}")]
        run_slots(mfs, g_reads(n + DB) if n + DB < 112 else [], [], dm, rper=3.0)
        for _ in range(OPT["bdma"] - 1):
            if pend:
                pre, ld, tg = pend.pop(0); a.extend(pre); a(ld); vm.issue(tg)
    stamp(name="att")
    Tz = GF
    for i in range(16): a(f"v_mul_f32 v{Tz+i}, {hx(-LOG2E)}, v{ACC2+i}")
    for i in range(16): a(f"v_exp_f32 v{Tz+i}, v{Tz+i}")
    a(f"""
    s_lshl_b32 s{sT1}, s{sCT}, 12
    v_add_u32 v{vAa[0]}, s{sT1}, v{vD}
    """)
    for i in range(16): a(f"v_add_f32 v{Tz+i}, 1.0, v{Tz+i}")
    for i in range(16): a(f"v_rcp_f32 v{Tz+i}, v{Tz+i}")
    for i in range(16): a(f"v_mul_f32 v{Tz+i}, v{ACC2+i}, v{Tz+i}")
    for q in range(4): a(f"ds_write_b128 v{vAa[0]}, {vr(Tz+4*q)} offset:{q*1024}")
    a("s_waitcnt lgkmcnt(0)")
    a("s_barrier")
    while nstamp[0] < nsA: stamp(name="")
    SNAMES[:] = sav_names
    a.label("L_fin")
    TM = 16
    if STAMP:
        stamp(name="final"); stamp(True)
        a(f"""
        s_lshl_b32 s{sT0}, s2, 3
        s_add_u32 s{sT0}, s{sT0}, s{sW}
        s_lshl_b32 s{sT0}, s{sT0}, 8
        s_add_u32 s{sT0}, s{sT0}, {WS_STAMP}
        s_mov_b32 s{SWS+2}, {WS_STAMP + (1 << 20)}
        v_lshlrev_b32 v{TM}, 2, v{vL}
        buffer_store_dword v{vSTAMP}, v{TM}, {sr(SWS)}, s{sT0} offen
        """)
        if OPT["dbgst"]:
            a(f"""
            s_lshl_b32 s{sT0}, s2, 3
            s_add_u32 s{sT0}, s{sT0}, s{sW}
            s_cmp_eq_u32 s{sT0}, {OPT["dbgst"]}
            s_cbranch_scc0 L_end
            v_add_u32 v{TM}, 4, v{TM}
            s_mov_b64 exec, 0x7fff
            buffer_store_dword v{vSTAMP}, v{TM}, {sr(SDBG)}, 0 offen
            """)
        print("stamps:", nstamp[0], file=sys.stderr)
        open("snames.txt", "w").write("\n".join(SNAMES))
    a.label("L_end")
    a("s_endpgm")
    a.items += ool.items
    a.label("L_code_end")
    a.items += fb.items
    return dict(lds=LDS_TOTAL, vgpr=256, sgpr=100)

HEADER = open("cdna_kernels/%s.s.ref" % NAME).read().split("; Override launch")[0]

def build(path):
    a = Asm(); info = gen(a)
    items = []; inside = False; inm = False
    for k, x in a.items:
        if k == 'l' and x == "X_begin": inside = True
        if k == 'l' and x == "X_end": inside = False
        if k == 'l' and x == "M_begin": inm = True
        if k == 'l' and x == "M_end": inm = False
        if inm and k == 'i':
            if OPT["m_nodma"] and x.startswith("buffer_load") and x.endswith("lds"): continue
            if OPT["m_noexp"] and x.startswith("v_exp"): continue
            if OPT["m_nobar"] and x.startswith("s_barrier"): continue
        if inside and k == 'i':
            if OPT["x_nodma"] and x.startswith("buffer_load") and x.endswith("lds"): continue
            if OPT["x_nomfma"] and x.startswith("v_mfma"): continue
            if OPT["x_nords"] and x.startswith("ds_read"): continue
            if OPT["x_nostat"] and re.match(r"(v_fmac_f32 v1[67]|v_add_f32 v1[45]|v_lshlrev_b32 v18, 16|v_and_b32 v19, 0xffff0000)", x): continue
        if k == 'i' and OPT["x_nocs"] and x.startswith("v_mfma_f32_16x16x32"): continue
        items.append((k, x))
    a.items = items
    txt = a.render()
    label = NAME + "_kernel"
    n = sum(1 for k, _ in a.items if k == 'i')
    print("instrs", n, "nops", a.nnop, file=sys.stderr)
    out = HEADER + f"; @launch grid=(256,1,1) block=(512,1,1) lds={info['lds']}\n"
    out += '.amdgcn_target "amdgcn-amd-amdhsa--gfx950"\n.text\n'
    out += f".globl {label}\n.p2align 8\n.type {label},@function\n{label}:\n"
    out += txt.replace("CODE_BYTES", "(L_code_end - L_pc)")
    out += f""".section .rodata,"a"
.p2align 6
.amdhsa_kernel {label}
  .amdhsa_next_free_vgpr {info['vgpr']}
  .amdhsa_next_free_sgpr {info['sgpr']}
  .amdhsa_accum_offset {info['vgpr']}
  .amdhsa_group_segment_fixed_size 0
  .amdhsa_kernarg_size 80
  .amdhsa_user_sgpr_count 2
  .amdhsa_user_sgpr_kernarg_segment_ptr 1
  .amdhsa_system_sgpr_workgroup_id_x 1
.end_amdhsa_kernel
"""
    open(path, "w").write(out)

if __name__ == "__main__":
    path = sys.argv[1]
    for arg in sys.argv[2:]:
        if arg == "stamp": STAMP = True
        elif "=" in arg:
            k, v = arg.split("="); assert k in OPT, k; OPT[k] = int(v)
    build(path)
```

```python
import sys, math, struct, re
sys.path.insert(0, "gen")
from asmlib import Asm, Ins

NAME = "recurrent_scan__sliding_block__geglu_ffn__prompt"
WS_H = 0
WS_O = 56 * 128 * 1024
WS_QKV = 72 * 128 * 1024
WS_F = WS_QKV + 96 * 65536
WS_END = WS_F + 4 * 4096
LOG2E = 1.4426950408889634
QSCALE = 0.25 * LOG2E
GK1 = -2.0 * math.sqrt(2.0 / math.pi) * LOG2E
GK2 = GK1 * 0.044715
NEGBIG = "0xf149f2ca"
def f2u(x): return struct.unpack("<I", struct.pack("<f", x))[0]
def hx(x): return "0x%08x" % f2u(x)
def vr(b, n=4): return f"v[{b}:{b+n-1}]"
def sr(b, n=4): return f"s[{b}:{b+n-1}]"

class Cnt:
    def __init__(self, name, mx): self.q = []; self.name = name; self.mx = mx; self.total = 0; self.marks = {}
    def issue(self, tag, n=1): self.q += [tag] * n; self.total += n
    def wait(self, tag):
        idxs = [i for i, t in enumerate(self.q) if t == tag]
        if not idxs: return None
        n = min(len(self.q) - 1 - max(idxs), self.mx)
        self.q = self.q[len(self.q) - n:] if n else []
        return f"s_waitcnt {self.name}({n})"
    def mark(self, tag): self.marks[tag] = self.total
    def peek(self, tag): return f"s_waitcnt {self.name}({min(self.total - self.marks[tag], self.mx)})"
    def drain(self): self.q = []; return f"s_waitcnt {self.name}(0)"
    def save(self): return (list(self.q), self.total, dict(self.marks))
    def restore(self, st): self.q, self.total, self.marks = list(st[0]), st[1], dict(st[2])

STAMP = False
SNAMES = []
WS_STAMP = 32 << 20
OPT = dict(codepf=32, rot=1, rot2=0, fine=0, start=3, fper=5, early_b=2, wpf=1, hpf=0, p2late=1, ck3=4, ck4=12, pub3=0, gdelay=14, gd0=4, fbexp=60, ab1=30, ab2=150, abs=85, pollbk=1, apost=3, aprio=0, p1pf=3, xpf=0, hpfa=1, w0pf=0, psl=4, pdepth=2, bdist=3, bprio=0, bdma=2, fineb=0, m_nodma=0, m_noexp=0, m_nobar=0, grate=40, odel=2, outf=0, prio=0, wmerge=1, dbgst=0, x_nodma=0, x_nomfma=0, x_nostat=0, x_nords=0, x_nocs=0)

def gen(a):
    SC = " sc1"
    vm = Cnt("vmcnt", 63); lg = Cnt("lgkmcnt", 15)
    ool = Asm()
    def W(x):
        if x: a(x)
    SX, SU0, SU1, SU2, SPG, SPU, SWS, SDBG = 24, 28, 32, 36, 40, 44, 48, 52
    sW, sMG, sNH, sRB, sCGQ, sCGL, sTB, sRL = 56, 57, 58, 59, 60, 61, 62, 63
    sP12, sKX, sK0, sK12, sT0, sT1, sT2, sT3 = 64, 65, 66, 67, 68, 69, 70, 71
    sLX, sLW, sU0, sPF, sXB, sSC0, sP0, sFL = 72, 73, 74, 75, 76, 77, 78, 79
    sCNT = 80
    SWD, SWO, SOUT = 28, 32, 36
    sHD, sQB, sJS, sMT, sNT, sCT, sKH, sAO = 81, 82, 83, 84, 85, 86, 87, 88
    sWQ, sWL, sROT, sTAG, sE0, sE1 = 89, 90, 91, 96, 97, 98
    sR2 = 63
    STP = 92
    STP = 20
    sPFo = 99
    R2MASK = 7 if OPT['rot2'] else 0
    ROTMASK = {1: 0, 2: 4, 4: 6, 8: 7}[OPT['rot']]
    uid = [0]
    def U(): uid[0] += 1; return uid[0]
    nstamp = [0]
    def fstamp(name):
        if OPT["fine"] == 1: stamp(name=name)
    def f2stamp(name):
        if OPT["fine"] == 2: stamp(name=name)
    def f3stamp(name):
        if OPT["fine"] == 3: stamp(name=name)
    def stamp(real=False, name=""):
        if not STAMP: return
        i = nstamp[0]; nstamp[0] += 1
        SNAMES.append(name)
        a("s_memrealtime s[92:93]" if real else "s_memtime s[92:93]")
        a("s_waitcnt lgkmcnt(0)"); lg.q = []
        a(f"v_writelane_b32 v{vSTAMP}, s92, {i}")
    def rare(cond, body):
        n = U()
        a.extend(cond)
        a(f"s_cbranch_scc1 R{n}")
        a.label(f"B{n}")
        ool.label(f"R{n}")
        ool("s_nop 7"); ool("s_nop 7")
        ool(body)
        ool("s_nop 7")
        ool(f"s_branch B{n}")
    vL, vX0, vX1, vWq, vW12, vWg = 0, 1, 2, 3, 4, 5
    vXR = [6, 7, 8, 9]; vWR = [10, 11, 12, 13]
    vS = [14, 15]; vQ = [16, 17]; vST = [18, 19]
    SEL = 20; CA = [24, 28, 32]
    FR = 36; NF = 9
    vD, vPOLL, vPO, vSTAMP = 72, 73, 74, 75
    SPARE = 76
    vPUB = 74
    vPF, vJK = 74, 73
    ACC = 80; XF = 128; ACC1 = 40
    def xf(s): return XF + s * 4
    def acc(u): return ACC + u * 16
    SLOT = 40960
    SCR = 3 * SLOT
    L_RS = SCR
    L_CSA = SCR + 1024
    L_CSB = SCR + 2560
    LK = SCR + 4096; LV = LK + 16384; LONE = LV + 16384 + 128
    LDS_TOTAL = 163840
    T = [FR + i for i in range(8)]

    a("s_cmp_ge_u32 s2, 256")
    a("s_cbranch_scc1 L_end")
    a("s_load_dwordx16 s[4:19], s[0:1], 0")
    a("s_load_dwordx4 s[20:23], s[0:1], 64")
    if OPT["codepf"]:
        a(f"""
        s_cmp_ge_u32 s2, {OPT["codepf"]}
        s_cbranch_scc1 L_npf
        s_getpc_b64 s[92:93]
        L_pc:
        s_and_b32 s92, s92, 0xffffff00
        s_and_b32 s93, s93, 0xffff
        s_mov_b32 s94, CODE_BYTES
        s_mov_b32 s95, 0x20000
        v_lshlrev_b32 v{T[0]}, 7, v0
        buffer_load_dword v{vPOLL}, v{T[0]}, s[92:95], 0 offen
        L_npf:
        """)
    a(f"""
    v_lshrrev_b32 v{T[0]}, 6, v0
    v_and_b32 v{vL}, 63, v0
    v_readfirstlane_b32 s{sW}, v{T[0]}
    s_and_b32 s{sT0}, s2, 7
    s_lshr_b32 s{sT1}, s2, 3
    s_and_b32 s{sRB}, s{sT0}, 1
    s_lshl_b32 s{sRB}, s{sRB}, 3
    s_and_b32 s{sRL}, s{sT1}, 7
    s_add_u32 s{sRB}, s{sRB}, s{sRL}
    s_lshr_b32 s{sCGQ}, s{sT0}, 1
    s_lshr_b32 s{sCGL}, s{sT1}, 3
    s_lshl_b32 s{sROT}, s{sCGL}, 1
    s_add_u32 s{sROT}, s{sROT}, s{sRL}
    s_and_b32 s{sROT}, s{sROT}, {ROTMASK}
    s_lshl_b32 s{sLX}, s{sW}, 11
    s_lshl_b32 s{sLW}, s{sW}, 10
    s_lshl_b32 s{sXB}, s{sRB}, 17
    s_mul_i32 s{sT0}, s{sCGQ}, 3
    s_add_u32 s{sT1}, s{sT0}, s{sCGL}
    s_add_u32 s{sT2}, s{sT0}, 12
    s_mov_b32 s{sP0}, s{sT1}
    s_add_u32 s{sT3}, s{sP0}, 12
    s_add_u32 s{sPF}, s{sCGQ}, 24
    s_movk_i32 s{sP12}, 3584
    s_cmp_eq_u32 s{sCGL}, 3
    s_cselect_b32 s{sTB}, 1, 0
    s_cselect_b32 s{sU0}, s{sT2}, s{sT1}
    s_cselect_b32 s{sPF}, s{sPF}, s{sT3}
    s_cselect_b32 s{sP12}, 3072, s{sP12}
    """)
    if STAMP: a(f"v_mov_b32 v{vSTAMP}, 0")
    a(f"""
    v_lshrrev_b32 v{T[0]}, 3, v{vL}
    v_and_b32 v{T[1]}, 7, v{vL}
    v_lshrrev_b32 v{T[2]}, 4, v{vL}
    v_xor_b32 v{T[3]}, v{T[1]}, v{T[2]}
    s_lshl_b32 s{sT0}, s{sW}, 4
    v_add_u32 v{T[4]}, s{sT0}, v{T[0]}
    v_lshlrev_b32 v{T[4]}, 10, v{T[4]}
    v_lshl_add_u32 v{vX0}, v{T[3]}, 4, v{T[4]}
    v_xor_b32 v{vX1}, 64, v{vX0}
    v_add_u32 v{vX1}, 0x2000, v{vX1}
    s_lshl_b32 s{sT0}, s{sW}, 3
    v_add_u32 v{T[4]}, s{sT0}, v{T[0]}
    v_and_b32 v{T[2]}, 1, v{T[2]}
    v_lshlrev_b32 v{T[2]}, 2, v{T[2]}
    v_xor_b32 v{T[5]}, v{T[1]}, v{T[2]}
    v_lshlrev_b32 v{T[5]}, 4, v{T[5]}
    v_mul_u32_u24 v{vWq}, 3072, v{T[4]}
    v_add_u32 v{vWq}, v{vWq}, v{T[5]}
    v_mul_u32_u24 v{vWg}, 3584, v{T[4]}
    v_add_u32 v{vWg}, v{vWg}, v{T[5]}
    v_mul_u32_u24 v{vW12}, s{sP12}, v{T[4]}
    v_add_u32 v{vW12}, v{vW12}, v{T[5]}
    s_lshl_b32 s{sP12}, s{sP12}, 6
    s_mov_b32 s{SX+2}, {2048*1024}
    s_mov_b32 s{SX+3}, 0x20000
    s_mov_b32 s{SU0+3}, 0x20000
    s_mov_b32 s{SU1+3}, 0x20000
    s_mov_b32 s{SU2+3}, 0x20000
    s_waitcnt lgkmcnt(0)
    """)
    stamp(); stamp(True)
    QSZ, GSZ = 512 * 3072, 512 * 3584
    a(f"""
    s_mov_b32 s{SX}, s4
    s_and_b32 s{SX+1}, s5, 0xffff
    s_lshl_b32 s{sT0}, s{sU0}, 7
    s_add_u32 s{SU0}, s6, s{sT0}
    s_addc_u32 s{SU0+1}, s7, 0
    s_and_b32 s{SU0+1}, s{SU0+1}, 0xffff
    s_sub_u32 s{SU0+2}, {QSZ}, s{sT0}
    """)
    for k, (S, plo) in enumerate(((SU1, 12), (SU2, 14))):
        a(f"""
        s_lshl_b32 s{sT0}, s{sP0}, 7
        s_add_u32 s{sT1}, s{sU0}, {k+1}
        s_lshl_b32 s{sT1}, s{sT1}, 7
        s_mov_b32 s{S+2}, {GSZ}
        s_cmp_eq_u32 s{sTB}, 1
        s_cselect_b32 s{sT0}, s{sT1}, s{sT0}
        s_cselect_b32 s{S}, s6, s{plo}
        s_cselect_b32 s{S+1}, s7, s{plo+1}
        s_cselect_b32 s{S+2}, {QSZ}, s{S+2}
        s_add_u32 s{S}, s{S}, s{sT0}
        s_addc_u32 s{S+1}, s{S+1}, 0
        s_and_b32 s{S+1}, s{S+1}, 0xffff
        s_sub_u32 s{S+2}, s{S+2}, s{sT0}
        """)
    def dma_p0(t):
        sl = (t % 3) * SLOT
        pre = [f"s_add_u32 s{sT3}, s{sROT}, {t}", f"s_and_b32 s{sT3}, s{sT3}, 7", f"s_lshl_b32 s{sKX}, s{sT3}, 7",
               f"s_add_u32 s{sKX}, s{sKX}, s{sXB}", f"s_mul_i32 s{sK0}, s{sT3}, {64*3072}", f"s_mul_i32 s{sK12}, s{sP12}, s{sT3}"]
        if OPT["rot"] == 1:
            pre = [f"s_add_u32 s{sKX}, s{sXB}, {t*128}", f"s_mov_b32 s{sK0}, {t*64*3072}", f"s_mul_i32 s{sK12}, s{sP12}, {t}"]
        g = [(pre + [f"s_add_u32 m0, s{sLX}, {sl}"], f"buffer_load_dwordx4 v{vX0}, {sr(SX)}, s{sKX} offen lds"),
             ([f"s_add_u32 m0, s{sLX}, {sl+1024}"], f"buffer_load_dwordx4 v{vX1}, {sr(SX)}, s{sKX} offen lds"),
             ([f"s_add_u32 m0, s{sLW}, {sl+16384}"], f"buffer_load_dwordx4 v{vWq}, {sr(SU0)}, s{sK0} offen lds"),
             ([f"s_add_u32 m0, s{sLW}, {sl+24576}"], f"buffer_load_dwordx4 v{vW12}, {sr(SU1)}, s{sK12} offen lds"),
             ([f"s_add_u32 m0, s{sLW}, {sl+32768}"], f"buffer_load_dwordx4 v{vW12}, {sr(SU2)}, s{sK12} offen lds")]
        return g, ("st", t)
    def dma_p1(Tq):
        sl = ((8 + Tq) % 3) * SLOT
        g = []
        for c2 in range(2):
            sk = sK0 if c2 == 0 else sK12
            pre = [f"s_add_u32 s{sT3}, s{sROT}, {2*Tq+c2}", f"s_and_b32 s{sT3}, s{sT3}, 7", f"s_mul_i32 s{sk}, s{sT3}, {64*3584}"]
            if OPT["rot"] == 1: pre = [f"s_mov_b32 s{sk}, {(2*Tq+c2)*64*3584}"]
            g += [(pre + [f"s_add_u32 m0, s{sLW}, {sl+c2*16384}"], f"buffer_load_dwordx4 v{vWg}, {sr(SPG)}, s{sk} offen lds"),
                  ([f"s_add_u32 m0, s{sLW}, {sl+c2*16384+8192}"], f"buffer_load_dwordx4 v{vWg}, {sr(SPU)}, s{sk} offen lds")]
        return g, ("st", 8 + Tq)
    def emit_dma(d):
        g, tag = d
        for pre, ld in g:
            a.extend(pre); a(ld); vm.issue(tag)
    emit_dma(dma_p0(0))
    if OPT["start"] == 0: emit_dma(dma_p0(1))
    for S, plo in ((SPG, 12), (SPU, 14)):
        a(f"""
        s_lshl_b32 s{sT0}, s{sPF}, 7
        s_add_u32 s{S}, s{plo}, s{sT0}
        s_addc_u32 s{S+1}, s{plo+1}, 0
        s_and_b32 s{S+1}, s{S+1}, 0xffff
        s_sub_u32 s{S+2}, {GSZ}, s{sT0}
        s_mov_b32 s{S+3}, 0x20000
        """)
    a(f"""
    s_mov_b32 s{SWS}, s22
    s_and_b32 s{SWS+1}, s23, 0xffff
    s_mov_b32 s{SWS+2}, {WS_END}
    s_mov_b32 s{SWS+3}, 0x20000
    s_mov_b32 s{SDBG}, s20
    s_and_b32 s{SDBG+1}, s21, 0xffff
    s_movk_i32 s{SDBG+2}, 256
    s_mov_b32 s{SDBG+3}, 0x20000
    s_lshr_b32 s{sMG}, s{sW}, 1
    s_and_b32 s{sNH}, s{sW}, 1
    """)
    rare([f"s_or_b32 s{sT0}, s2, s{sW}", f"s_cmp_eq_u32 s{sT0}, 0"], f"""
    s_memrealtime s[92:93]
    s_waitcnt lgkmcnt(0)
    s_or_b32 s92, s92, 1
    v_mov_b32 v{T[0]}, s92
    s_mov_b64 exec, 1
    buffer_store_dword v{T[0]}, off, {sr(SDBG)}, 0{SC}
    s_mov_b64 exec, -1
    """)
    a(f"""
    s_and_b32 s{sT0}, s{sMG}, 1
    s_lshl_b32 s{sT0}, s{sT0}, 1
    s_lshr_b32 s{sT1}, s{sMG}, 1
    s_xor_b32 s{sT1}, s{sT1}, s{sNH}
    s_add_u32 s{sT0}, s{sT0}, s{sT1}
    v_and_b32 v{T[0]}, 31, v{vL}
    v_lshrrev_b32 v{T[1]}, 5, v{vL}
    v_bfe_u32 v{T[2]}, v{vL}, 1, 3
    v_xor_b32 v{T[2]}, v{T[2]}, v{T[1]}
    v_lshlrev_b32 v{T[2]}, 4, v{T[2]}
    v_lshl_add_u32 v{T[2]}, v{T[0]}, 7, v{T[2]}
    s_lshl_b32 s{sT1}, s{sMG}, 12
    v_add_u32 v{T[2]}, s{sT1}, v{T[2]}
    s_lshl_b32 s{sT1}, s{sT0}, 5
    v_xor_b32 v{vXR[0]}, s{sT1}, v{T[2]}
    v_xor_b32 v{vXR[1]}, 32, v{vXR[0]}
    v_xor_b32 v{vXR[2]}, 64, v{vXR[0]}
    v_xor_b32 v{vXR[3]}, 0x60, v{vXR[0]}
    """)
    a(f"""
    v_bfe_u32 v{T[2]}, v{vL}, 2, 2
    v_lshl_add_u32 v{T[3]}, v{T[1]}, 3, v{T[2]}
    v_lshlrev_b32 v{T[3]}, 7, v{T[3]}
    v_lshrrev_b32 v{T[2]}, 1, v{T[2]}
    v_xor_b32 v{T[2]}, s{sNH}, v{T[2]}
    v_lshl_add_u32 v{T[3]}, v{T[2]}, 6, v{T[3]}
    v_bfe_u32 v{T[2]}, v{vL}, 4, 1
    v_lshl_add_u32 v{T[3]}, v{T[2]}, 5, v{T[3]}
    v_and_b32 v{T[2]}, 3, v{vL}
    v_lshl_add_u32 v{T[3]}, v{T[2]}, 3, v{T[3]}
    s_lshl_b32 s{sT1}, s{sT0}, 11
    v_xor_b32 v{vWR[0]}, s{sT1}, v{T[3]}
    v_xor_b32 v{vWR[1]}, 0x800, v{vWR[0]}
    v_xor_b32 v{vWR[2]}, 0x1000, v{vWR[0]}
    v_xor_b32 v{vWR[3]}, 0x1800, v{vWR[0]}
    v_lshlrev_b32 v{vD}, 4, v{vL}
    """)
    a(f"""
    v_lshrrev_b32 v{T[2]}, 4, v{vL}
    v_xor_b32 v{T[2]}, v{T[2]}, v{vL}
    v_and_b32 v{T[2]}, 1, v{T[2]}
    v_cmp_eq_u32 vcc, 0, v{T[2]}
    v_mov_b32 v{T[3]}, 0x3f803f80
    v_cndmask_b32 v{SEL}, 0, v{T[3]}, vcc
    v_mov_b32 v{SEL+1}, v{SEL}
    v_mov_b32 v{SEL+2}, v{SEL}
    v_mov_b32 v{SEL+3}, v{SEL}
    v_mov_b32 v{T[4]}, v{T[3]}
    v_mov_b32 v{T[5]}, v{T[3]}
    v_mov_b32 v{T[6]}, v{T[3]}
    v_mov_b32 v{T[7]}, v{T[3]}
    v_add_u32 v{T[0]}, {LONE}, v{vD}
    ds_write_b128 v{T[0]}, {vr(T[4])}
    """)
    for r in vS + vQ: a(f"v_mov_b32 v{r}, 0")
    lg.issue("misc", 1)
    if OPT["start"] == 0: emit_dma(dma_p0(2))
    elif OPT["start"] in (1, 3): emit_dma(dma_p0(1))
    def lds(lst):
        for ins, tag in lst: a(ins); lg.issue(tag)
    def run_slots(mfs, reads=(), valu=(), dmas=None, rstart=0, rper=2.0, vper=2, fill=None, fper=0):
        ri = vi = 0
        for k, (tags, ins) in enumerate(mfs):
            for tg in tags: W(lg.wait(tg))
            a(ins)
            if dmas and k in dmas: a.extend(dmas[k][0])
            for _ in range(vper):
                if vi < len(valu): a(valu[vi]); vi += 1
            if k >= rstart:
                lim = int(rper * (k - rstart + 1) + 0.999)
                while ri < len(reads) and ri < lim and reads[ri][2] <= k:
                    a(reads[ri][0]); lg.issue(reads[ri][1]); ri += 1
            if fill is not None:
                n = 0
                while fill and n < fper:
                    if fill[0][0] == 'at':
                        if cur["step"] < fill[0][1]: break
                        fill.pop(0); continue
                    n += do_fill(fill.pop(0))
            if dmas and k in dmas: a(dmas[k][1]); vm.issue(dmas[k][2])
        while vi < len(valu): a(valu[vi]); vi += 1
        while ri < len(reads): a(reads[ri][0]); lg.issue(reads[ri][1]); ri += 1
    cur = {"step": None}
    def do_fill(it):
        kind = it[0]
        if cur["step"] is not None and kind in "vl":
            for t_, r_ in Ins(it[1]).wr:
                if t_ == 'v' and r_ >= XF: assert (r_ - XF) // 4 < cur["step"], (it, cur)
        if kind == 'v': a(it[1]); return 2 if it[1].startswith(("v_exp", "v_rcp")) else 1
        if kind == 's': a(it[1]); return 0.5
        if kind == 'm': a(it[1]); vm.issue(it[2]); return 1
        if kind == 'l': a(it[1]); lg.issue(it[2]); return 0.5
        if kind == 'w': W(lg.wait(it[1])); return 0.5
        if kind == 'gap': return it[1]
        raise ValueError
    def F(text, tag=None):
        out = []
        lines = [l.strip() for l in text.strip().split("\n") if l.strip()]
        i = 0
        while i < len(lines):
            l = lines[i]
            if l.startswith("s_cmp"):
                out.append(('s', l + "\n" + lines[i + 1])); i += 2; continue
            if l.startswith("WAIT"): out.append(('w', l.split()[1]))
            elif l.startswith("ds_"):
                body, tg = l.split(" @"); out.append(('l', body, tg))
            elif l.startswith("s_"): out.append(('s', l))
            else: out.append(('v', l))
            i += 1
        return out
    def slot_adv(t_next, regs):
        d = SLOT if (t_next % 3) else -2 * SLOT
        return [f"v_add_u32 v{r}, {d & 0xffffffff}, v{r}" for r in regs]
    MF32 = "v_mfma_f32_32x32x16_bf16"; MF16 = "v_mfma_f32_16x16x32_bf16"

    a(f"""
    v_and_b32 v{vPO}, 3, v{vL}
    v_lshlrev_b32 v{vPO}, 7, v{vPO}
    s_lshr_b32 s{sPFo}, s2, 3
    s_lshl_b32 s{sPFo}, s{sPFo}, 3
    s_add_u32 s{sPFo}, s{sPFo}, s{sW}
    s_lshl_b32 s{sPFo}, s{sPFo}, 10
    s_and_b32 s{sT0}, s2, 1
    s_lshl_b32 s{sT0}, s{sT0}, 9
    s_add_u32 s{sPFo}, s{sPFo}, s{sT0}
    v_add_u32 v{vPF}, s{sPFo}, v{vPO}
    s_mov_b32 s{STP}, s8
    s_and_b32 s{STP+1}, s9, 0xffff
    s_mov_b32 s{STP+2}, {512*1024}
    s_mov_b32 s{STP+3}, 0x20000
    """)
    def wtouch(k):
        pre = []
        if k == 2: pre = [f"s_mov_b32 s{STP}, s16", f"s_and_b32 s{STP+1}, s17, 0xffff", f"s_mov_b32 s{STP+2}, {1792*1024}"]
        kk = k if k < 2 else k - 2
        pre += [f"s_mov_b32 m0, {LONE + 1280}", f"s_mov_b32 s{sPFo}, {kk << 18}"]
        a.extend(pre)
        a(f"buffer_load_dword v{vPF}, {sr(STP)}, s{sPFo} offen lds"); vm.issue("wpf")
    L_P = SCR; L_T = SCR + 3072; L_RS = LK + 8192
    def xaddr(cw, pr, tw, tr, sa, sb):
        return f"""
        v_lshrrev_b32 v{cw}, 4, v{vL}
        v_lshlrev_b32 v{cw}, 4, v{cw}
        v_and_b32 v{pr}, 1, v{vL}
        v_lshl_add_u32 v{cw}, v{pr}, 6, v{cw}
        s_lshl_b32 s{sa}, s{sNH}, 2
        s_add_u32 s{sa}, s{sa}, s{sMG}
        s_mul_i32 s{sa}, s{sa}, 384
        s_add_u32 s{sa}, s{sa}, {L_P}
        v_add_u32 v{cw}, s{sa}, v{cw}
        v_min_u32 v{pr}, 47, v{vL}
        v_lshlrev_b32 v{pr}, 3, v{pr}
        s_mul_i32 s{sa}, s{sNH}, 384
        s_add_u32 s{sa}, s{sa}, {L_T}
        v_add_u32 v{tw}, s{sa}, v{pr}
        s_mul_i32 s{sb}, s{sNH}, {4*384}
        s_add_u32 s{sb}, s{sb}, {L_P}
        v_add_u32 v{pr}, s{sb}, v{pr}
        v_lshrrev_b32 v{tr}, 5, v{vL}
        v_lshlrev_b32 v{tr}, 4, v{tr}
        v_add_u32 v{tr}, s{sa}, v{tr}
        """
    XA0 = [SPARE, SPARE + 1, SPARE + 2, SPARE + 3]
    a(xaddr(*XA0, sT0, sT1))
    def x_reduce(XA, tmp, extra=""):
        cw, pr, tw, tr = XA
        return F("\n".join(f"ds_read_b64 {vr(tmp+2*m,2)}, v{pr} offset:{m*384} @cp" for m in range(4)) + "\n" + extra) + [('gap', 5)] + F(f"""
        WAIT cp
        v_add_f32 v{tmp}, v{tmp}, v{tmp+2}
        v_add_f32 v{tmp+1}, v{tmp+1}, v{tmp+3}
        v_add_f32 v{tmp+4}, v{tmp+4}, v{tmp+6}
        v_add_f32 v{tmp+5}, v{tmp+5}, v{tmp+7}
        v_add_f32 v{tmp}, v{tmp}, v{tmp+4}
        v_add_f32 v{tmp+1}, v{tmp+1}, v{tmp+5}
        ds_write_b64 v{tw}, {vr(tmp,2)} @ct
        """)
    vNM, vVE, vA_, vC1, vC2 = vS[0], vQ[0], vS[1], vQ[1], vST[0]
    def fslot(n): return FR + (n % NF) * 4
    def rd_x(s): return [(f"ds_read_b128 {vr(xf(s))}, v{vXR[s & 3]}", ("x", s))]
    def rd_w0(s, u):
        f = fslot(3 * s + u)
        return [(f"ds_read_b64_tr_b16 {vr(f+2*hh, 2)}, v{vWR[s & 3]} offset:{16384+u*8192+hh*512}", ("w", s, u)) for hh in range(2)]
    def stat_ops(s):
        o = []
        for j in range(4):
            x = xf(s) + j
            o += [f"v_lshlrev_b32 v{vST[0]}, 16, v{x}", f"v_and_b32 v{vST[1]}, 0xffff0000, v{x}",
                  f"v_add_f32 v{vS[0]}, v{vS[0]}, v{vST[0]}", f"v_add_f32 v{vS[1]}, v{vS[1]}, v{vST[1]}",
                  f"v_fmac_f32 v{vQ[0]}, v{vST[0]}, v{vST[0]}", f"v_fmac_f32 v{vQ[1]}, v{vST[1]}, v{vST[1]}"]
        return o
    if OPT["prio"]:
        a(f"s_cmp_{'ge' if OPT['prio'] == 1 else 'lt'}_u32 s{sW}, 4")
        a("s_cbranch_scc0 L_np")
        a("s_setprio 1")
        a.label("L_np")
    stamp(name="setup")
    W(vm.wait(("st", 0)))
    if OPT["start"] == 2: emit_dma(dma_p0(1))
    if OPT["start"] in (1, 2): emit_dma(dma_p0(2))
    a(lg.drain())
    a("s_barrier")
    stamp(name="wait st0")
    a.label("X_begin")
    for s in range(2):
        lds(rd_x(s))
        for u in range(3): lds(rd_w0(s, u))
    pend = []
    WTH = [3, 5, 7, 9, 11, 13, 15]
    for h in range(16):
        t = h >> 1; odd = h & 1
        valu = []
        if odd:
            if t < 7: valu = slot_adv(t + 1, [vXR[0], vWR[0], vXR[1], vWR[1], vXR[2], vWR[2], vXR[3], vWR[3]])
            else: valu = slot_adv(t + 1, vWR)
            g, tag = dma_p0(t + 3) if t + 3 < 8 else dma_p1(t + 3 - 8)
            pend = [(pre, ld, tag) for pre, ld in g]
        if h < 15: valu += stat_ops(2 * h)
        if h == 14: valu += stat_ops(30)
        dm = {}
        if h == 0 and OPT["start"] == 3:
            g, tag = dma_p0(2); dm = dict(zip([0, 2, 4, 6, 8], [(pre, ld, tag) for pre, ld in g]))
        if h == 0 and OPT["start"] == 4:
            g, tag = dma_p0(1); g2, tag2 = dma_p0(2)
            lst = [(pre, ld, tag) for pre, ld in g] + [(pre, ld, tag2) for pre, ld in g2[:4]]
            dm = dict(zip(range(9), lst)); late4 = (g2[4], tag2)
        if h >= 1:
            if odd and h < 15: now = pend[:3]; pend = pend[3:]; sl_ = [0, 2, 4]
            elif odd: now = pend; pend = []; sl_ = [0, 2, 3, 5]
            else: now = pend; pend = []; sl_ = [1, 5]
            dm = dict(zip(sl_, now))

        mfs = []
        for ss in range(2):
            s = 2 * h + ss
            for u in range(3):
                tags = ([("x", s)] if u == 0 else []) + [("w", s, u)]
                if OPT["wmerge"]: tags = [("w", s, 2)] if u == 0 else []
                mfs.append((tags, f"{MF32} {vr(acc(u),16)}, {vr(fslot(3*s+u))}, {vr(xf(s))}, {vr(acc(u),16) if s else 0}"))
                if (s & 3) == 0:
                    mfs.append(([], f"{MF16} {vr(CA[u])}, {vr(fslot(3*s+u))}, {vr(SEL)}, {vr(CA[u]) if s else 0}"))
        free = {}
        idx = 0
        for ss in range(2):
            for u in range(3):
                idx += 2 if ((2 * h + ss) & 3) == 0 else 1
                free[(ss, u)] = idx - 1
        reads = []
        if h + 1 < 16:
            s0 = 2 * h + 2
            reads += [(i_, tg, 0) for i_, tg in rd_x(s0)]
            for u in range(3): reads += [(i_, tg, 0) for i_, tg in rd_w0(s0, u)]
            reads += [(i_, tg, 0) for i_, tg in rd_x(s0 + 1)]
            for u in range(3): reads += [(i_, tg, free[(0, u)]) for i_, tg in rd_w0(s0 + 1, u)]
        if h == 7:
            a(f"buffer_load_dword v{vPOLL}, off, {sr(SDBG)}, 0"); vm.issue("nonce")
        if OPT["wpf"] and h in WTH: wtouch(WTH.index(h))
        if OPT["xpf"] and h == OPT["xpf"] - 1:
            a(f"""
            s_lshl_b32 s{sE0}, s{sCGL}, 3
            s_add_u32 s{sE0}, s{sE0}, s{sW}
            s_lshl_b32 s{sE0}, s{sE0}, 12
            s_add_u32 s{sE0}, s{sE0}, s{sXB}
            v_bfe_u32 v{vPOLL}, v{vL}, 2, 2
            v_lshlrev_b32 v{vPOLL}, 10, v{vPOLL}
            v_and_b32 v{vST[0]}, 3, v{vL}
            v_lshl_add_u32 v{vPOLL}, v{vST[0]}, 7, v{vPOLL}
            s_mov_b32 m0, {LONE + 1280 - 512}
            s_nop 0
            buffer_load_dword v{vPOLL}, {sr(SX)}, s{sE0} offen offset:512 lds
            """)
            vm.issue("wpf", 1)
        if OPT["w0pf"] and h == OPT["w0pf"] - 1:
            a(f"""
            s_lshl_b32 s{sE0}, s{sRL}, 3
            s_add_u32 s{sE0}, s{sE0}, s{sW}
            s_lshl_b32 s{sE0}, s{sE0}, 2
            s_add_u32 s{sE0}, s{sE0}, 256
            v_and_b32 v{vST[0]}, 3, v{vL}
            v_add_u32 v{vST[0]}, s{sE0}, v{vST[0]}
            v_mul_u32_u24 v{vPOLL}, 3072, v{vST[0]}
            s_lshr_b32 s{sE1}, s{sP12}, 6
            v_mul_u32_u24 v{vST[0]}, s{sE1}, v{vST[0]}
            s_mov_b32 m0, {LONE + 1280}
            s_nop 0
            buffer_load_dword v{vPOLL}, {sr(SU0)}, 0 offen lds
            buffer_load_dword v{vST[0]}, {sr(SU1)}, 0 offen lds
            buffer_load_dword v{vST[0]}, {sr(SU2)}, 0 offen lds
            """)
            vm.issue("wpf", 3)
        if OPT["p1pf"] and h == OPT["p1pf"]:
            a(f"""
            s_lshl_b32 s{sE0}, s{sRL}, 3
            s_add_u32 s{sE0}, s{sE0}, s{sW}
            s_mul_i32 s{sE0}, s{sE0}, {8*3584}
            v_and_b32 v{vPOLL}, 7, v{vL}
            v_mul_u32_u24 v{vPOLL}, 3584, v{vPOLL}
            s_mov_b32 m0, {LONE + 1280}
            s_nop 0
            buffer_load_dword v{vPOLL}, {sr(SPG)}, s{sE0} offen lds
            buffer_load_dword v{vPOLL}, {sr(SPU)}, s{sE0} offen lds
            """)
            vm.issue("wpf", 2)
        fl = None
        if h == 14:
            mfs[4] = (mfs[4][0] + [("x", 30)], mfs[4][1])
        if h == 15:
            TR = fslot(3 * 29)
            assert fslot(3*29+1) == TR + 4
            fl = x_reduce(XA0, TR, f"ds_read_b64 v[{vQ[0]}:{vQ[1]}], v{vX0} @cp") + F(f"""
            v_add_f32 v{vS[0]}, v{vS[0]}, v{vQ[0]}
            v_add_f32 v{vS[1]}, v{vS[1]}, v{vQ[1]}
            v_mul_f32 v{vNM}, {hx(-1.0/512)}, v{vS[0]}
            v_mul_f32 v{vQ[1]}, v{vNM}, v{vNM}
            v_mov_b32 v{vST[1]}, {hx(1.0/512)}
            v_fma_f32 v{vVE}, v{vS[1]}, v{vST[1]}, -v{vQ[1]}
            v_max_f32 v{vVE}, 0, v{vVE}
            v_add_f32 v{vVE}, {hx(1e-5)}, v{vVE}
            v_rsq_f32 v{vA_}, v{vVE}
            v_mul_f32 v{vC1}, {hx(GK1)}, v{vA_}
            v_mul_f32 v{vC2}, v{vA_}, v{vA_}
            v_mul_f32 v{vC2}, v{vC2}, v{vA_}
            v_mul_f32 v{vC2}, {hx(GK2)}, v{vC2}
            v_and_b32 v{vX0}, 31, v{vL}
            v_lshrrev_b32 v{vX1}, 5, v{vL}
            v_lshlrev_b32 v{vX1}, 4, v{vX1}
            v_lshl_add_u32 v{vX0}, v{vX0}, 5, v{vX1}
            s_lshl_b32 s{sT0}, s{sRB}, 12
            s_lshl_b32 s{sT1}, s{sMG}, 10
            s_add_u32 s{sT0}, s{sT0}, s{sT1}
            v_add_u32 v{vX0}, s{sT0}, v{vX0}
            """)
        run_slots(mfs, reads, valu, dm, rstart=0, rper=(3.0 if odd else 2.0), vper=(6 if (odd or h == 14) else 3), fill=fl, fper=6)
        while fl: do_fill(fl.pop(0))
        if h == 14:
            a(f"""
            v_add_f32 v{vS[0]}, v{vS[0]}, v{vS[1]}
            v_add_f32 v{vQ[0]}, v{vQ[0]}, v{vQ[1]}
            v_mov_b32 v{vS[1]}, v{vS[0]}
            v_mov_b32 v{vQ[1]}, v{vQ[0]}
            v_and_b32 v{vX0}, 31, v{vL}
            v_lshlrev_b32 v{vX0}, 3, v{vX0}
            v_permlane32_swap_b32 v{vS[0]}, v{vS[1]}
            v_permlane32_swap_b32 v{vQ[0]}, v{vQ[1]}
            s_lshl_b32 s{sT0}, s{sW}, 8
            s_add_u32 s{sT0}, s{sT0}, {L_RS}
            v_add_u32 v{vX0}, s{sT0}, v{vX0}
            v_add_f32 v{vS[0]}, v{vS[0]}, v{vS[1]}
            v_add_f32 v{vS[1]}, v{vQ[0]}, v{vQ[1]}
            ds_write_b128 v{XA0[0]}, {vr(CA[0])}
            ds_write_b128 v{XA0[0]}, {vr(CA[1])} offset:128
            ds_write_b128 v{XA0[0]}, {vr(CA[2])} offset:256
            ds_write_b64 v{vX0}, v[{vS[0]}:{vS[1]}]
            v_xor_b32 v{vX0}, 0x100, v{vX0}
            """)
            lg.issue("misc", 4)
        if h == 0 and OPT["start"] == 4:
            a.extend(late4[0][0]); a(late4[0][1]); vm.issue(late4[1])
        if not odd:
            if OPT["fine"] == 4: stamp(name=f"p0 mm{t}")
            a(lg.drain())
            W(vm.wait(("st", t + 1)))
            if OPT["fine"] == 4: stamp(name=f"p0 vm{t}")
            a("s_barrier")
            if OPT["fine"] == 4: stamp(name=f"p0 bar{t}")
    a.label("X_end")
    stamp(name="pass0")
    fillS = F(f"""
    s_lshl_b32 s{sFL}, s{sRB}, 4
    s_lshl_b32 s{sT1}, s{sCGQ}, 2
    s_add_u32 s{sT1}, s{sT1}, s{sCGL}
    s_add_u32 s{sFL}, s{sFL}, s{sT1}
    s_lshr_b32 s{sQB}, s{sRB}, 1
    s_and_b32 s{sHD}, s{sFL}, 31
    s_lshl_b32 s{sMT}, s{sCGQ}, 3
    s_add_u32 s{sMT}, s{sMT}, s{sRL}
    s_and_b32 s{sNT}, s2, 1
    s_lshl_b32 s{sNT}, s{sNT}, 2
    s_add_u32 s{sNT}, s{sNT}, s{sCGL}
    s_and_b32 s{sCT}, s{sW}, 3
    s_lshr_b32 s{sKH}, s{sW}, 2
    s_lshl_b32 s{sJS}, s{sCT}, 1
    s_sub_u32 s{sJS}, 8, s{sJS}
    s_cmp_eq_u32 s{sQB}, 0
    s_cselect_b32 s{sJS}, s{sJS}, 0
    """)
    E = 40
    vQA = vX0
    W(vm.wait("nonce"))
    a(f"v_readfirstlane_b32 s{sTAG}, v{vPOLL}")
    rare([f"s_cmp_eq_u32 s{sTAG}, 0"], f"""
    s_mov_b32 s{sCNT}, 0
    L_nc:
    s_sleep 2
    buffer_load_dword v{vPOLL}, off, {sr(SDBG)}, 0{SC}
    s_waitcnt vmcnt(0)
    v_readfirstlane_b32 s{sTAG}, v{vPOLL}
    s_add_u32 s{sCNT}, s{sCNT}, 1
    s_cmp_gt_u32 s{sCNT}, 0x8000
    s_cbranch_scc1 L_nd
    s_cmp_eq_u32 s{sTAG}, 0
    s_cbranch_scc1 L_nc
    L_nd:
    """)
    def cs_fold(nu, accf, tmp, tr):
        def rd(u):
            for q in range(4):
                a(f"ds_read_b128 {vr(tmp+16*(u&1)+4*q)}, v{tr} offset:{u*128+q*32}"); lg.issue(("cf", u))
        rd(0); rd(1)
        for u in range(nu):
            W(lg.wait(("cf", u)))
            for r in range(16): a(f"v_fmac_f32 v{accf(u)+r}, v{vNM}, v{tmp+16*(u&1)+r}")
            if u + 2 < nu: rd(u + 2)
    cs_fold(3, acc, E, XA0[3])
    stamp(name="E0 serial")
    def f_qkv(x, uadd, tmp, tag):
        o = [('s', f"s_add_u32 s{sE0}, s{sU0}, {uadd}"), ('s', f"s_cmp_lt_u32 s{sE0}, 8\ns_cselect_b32 s{sSC0}, {hx(QSCALE)}, 1.0"),
             ('s', f"s_lshl_b32 s{sE0}, s{sE0}, 2"), ('s', f"s_lshl_b32 s{sE1}, s{sNH}, 1"), ('s', f"s_add_u32 s{sE0}, s{sE0}, s{sE1}"),
             ('s', f"s_lshl_b32 s{sE0}, s{sE0}, 16"), ('s', f"s_add_u32 s{sE0}, s{sE0}, {WS_QKV}"), ('s', f"s_add_u32 s{sE1}, s{sE0}, 0x10000"),
             ('v', f"v_mul_f32 v{tmp+8}, s{sSC0}, v{vA_}")]
        for e in range(2):
            for r in range(8): o.append(('v', f"v_mul_f32 v{x+8*e+r}, v{tmp+8}, v{x+8*e+r}"))
            for r in range(4): o.append(('v', f"v_cvt_pk_bf16_f32 v{tmp+4*e+r}, v{x+8*e+2*r}, v{x+8*e+2*r+1}"))
            o.append(('m', f"buffer_store_dwordx4 {vr(tmp+4*e)}, v{vQA}, {sr(SWS)}, s{sE0 if e == 0 else sE1} offen{SC}", tag))
        return o
    def f_h(g, u, spair, tmp, tag):
        o = [('s', f"s_lshl_b32 s{sE0}, s{spair}, 1"), ('s', f"s_add_u32 s{sE0}, s{sE0}, s{sNH}"), ('s', f"s_lshl_b32 s{sE0}, s{sE0}, 7"),
             ('s', f"s_lshl_b32 s{sE1}, s{sRB}, 2"), ('s', f"s_add_u32 s{sE0}, s{sE0}, s{sE1}"),
             ('s', f"s_add_u32 s{sE0}, s{sE0}, s{sMG}"), ('s', f"s_lshl_b32 s{sE0}, s{sE0}, 10"), ('s', f"s_add_u32 s{sE1}, s{sE0}, 0x10000")]
        t = tmp + 8
        for e in range(2):
            for q in range(2):
                G_, U_ = g + 8 * e + 4 * q, u + 8 * e + 4 * q
                for r in range(4): o.append(('v', f"v_mul_f32 v{t+r}, v{G_+r}, v{G_+r}"))
                for r in range(4): o.append(('v', f"v_fma_f32 v{t+r}, v{t+r}, v{vC2}, v{vC1}"))
                for r in range(4): o.append(('v', f"v_mul_f32 v{t+r}, v{t+r}, v{G_+r}"))
                for r in range(4): o.append(('v', f"v_exp_f32 v{t+r}, v{t+r}"))
                for r in range(4): o.append(('v', f"v_mul_f32 v{G_+r}, v{G_+r}, v{U_+r}"))
                for r in range(4): o.append(('v', f"v_fma_f32 v{t+r}, v{t+r}, v{vVE}, v{vVE}"))
                for r in range(4): o.append(('v', f"v_rcp_f32 v{t+r}, v{t+r}"))
                for r in range(4): o.append(('v', f"v_mul_f32 v{G_+r}, v{G_+r}, v{t+r}"))
                o.append(('v', f"v_cvt_pk_bf16_f32 v{tmp+4*e+2*q}, v{G_}, v{G_+1}"))
                o.append(('v', f"v_cvt_pk_bf16_f32 v{tmp+4*e+2*q+1}, v{G_+2}, v{G_+3}"))
            o.append(('m', f"buffer_store_dwordx4 {vr(tmp+4*e)}, v{vD}, {sr(SWS)}, s{sE0 if e == 0 else sE1} offen{SC}", tag))
        return o
    vWS, vWS2 = vWq, vX1
    sRE, sRLt, sB6, sB8 = sR2, sWQ, sWL, sCGQ
    fillS += F(f"""
    v_and_b32 v{vWS2}, 7, v{vL}
    v_bfe_u32 v{vST[1]}, v{vL}, 4, 1
    v_lshlrev_b32 v{vST[1]}, 2, v{vST[1]}
    v_xor_b32 v{vWS2}, v{vWS2}, v{vST[1]}
    v_lshlrev_b32 v{vWS2}, 4, v{vWS2}
    v_lshrrev_b32 v{vST[1]}, 3, v{vL}
    v_lshl_add_u32 v{vWS}, v{vST[1]}, 10, v{vWS2}
    s_lshl_b32 s{sT1}, s{sNT}, 7
    s_lshl_b32 s{sT2}, s{sCT}, 14
    s_add_u32 s{sT1}, s{sT1}, s{sT2}
    v_add_u32 v{vWS}, s{sT1}, v{vWS}
    v_add_u32 v{vWS2}, {8192-1024}, v{vWS}
    s_mov_b32 s{SWD}, s16
    s_and_b32 s{SWD+1}, s17, 0xffff
    s_mov_b32 s{SWD+2}, {1792*1024}
    s_mov_b32 s{SWO}, s8
    s_and_b32 s{SWO+1}, s9, 0xffff
    s_mov_b32 s{SWO+2}, {512*1024}
    s_mov_b32 s{SOUT}, s18
    s_and_b32 s{SOUT+1}, s19, 0xffff
    s_mov_b32 s{SOUT+2}, {2048*1024}
    s_lshl_b32 s{sAO}, s{sMT}, 11
    s_lshl_b32 s{sT1}, s{sCT}, 16
    s_add_u32 s{sAO}, s{sAO}, s{sT1}
    s_lshl_b32 s{sT1}, s{sCGL}, 1
    s_add_u32 s{sRLt}, s{sR2}, s{sT1}
    s_and_b32 s{sRLt}, s{sRLt}, {R2MASK}
    s_sub_u32 s{sT1}, s{sRLt}, 6
    s_min_u32 s{sRE}, s{sRLt}, s{sT1}
    s_lshl_b32 s{sB6}, s{sCT}, 11
    """)
    AREAS = [0, SLOT, 2 * SLOT]
    sLB = sB6
    def unit_calc(sg):
        if sg < 6:
            return [f"s_add_u32 s{sT2}, s{sRE}, {sg}", f"s_sub_u32 s{sT3}, s{sT2}, 6", f"s_min_u32 s{sT2}, s{sT2}, s{sT3}"]
        return [f"s_add_u32 s{sT2}, s{sRLt}, {sg-6}", f"s_and_b32 s{sT2}, s{sT2}, 7", f"s_add_u32 s{sT2}, s{sT2}, 12"]
    def wdma(sg, calc=True):
        ar = AREAS[sg % 3]; d = 6 if sg < 6 else 8; g = []
        for q in range(2):
            pre = (unit_calc(sg) if (calc and q == 0) else []) + [f"s_add_u32 m0, s{sLB}, {ar+16384+q*8192}"]
            pre += [f"s_lshl_b32 s{sT0}, s{sT2}, 16"] if q == 0 else [f"s_add_u32 s{sT0}, s{sT0}, {d << 16}"]
            g += [(pre, f"buffer_load_dwordx4 v{vWS}, {sr(SWD)}, s{sT0} offen lds"),
                  ([], f"buffer_load_dwordx4 v{vWS2}, {sr(SWD)}, s{sT0} offen offset:1024 lds")]
        return g, ("g", sg)
    def adma(sg, calc=True):
        ar = AREAS[sg % 3]; d = 6 if sg < 6 else 8; g = []
        for q in range(2):
            pre = (unit_calc(sg) if (calc and q == 0) else []) + [f"s_add_u32 m0, s{sLB}, {ar+q*8192}"]
            pre += [f"s_lshl_b32 s{sT0}, s{sT2}, 18", f"s_add_u32 s{sT0}, s{sT0}, s{sAO}"] if q == 0 else [f"s_add_u32 s{sT0}, s{sT0}, {d << 18}"]
            g += [(pre, f"buffer_load_dwordx4 v{vD}, {sr(SWS)}, s{sT0} offen lds"),
                  ([], f"buffer_load_dwordx4 v{vD}, {sr(SWS)}, s{sT0} offen offset:1024 lds")]
        return g, ("g", sg)
    def wodma(pz):
        ar = AREAS[pz]; g = []
        for q in range(2):
            pre = [f"s_add_u32 m0, s{sLX}, {ar+q*16384}", f"s_lshl_b32 s{sT0}, s{sKH}, 18", f"s_add_u32 s{sT0}, s{sT0}, {(2*pz+q) << 16}"]
            g += [(pre, f"buffer_load_dwordx4 v{vWS}, {sr(SWO)}, s{sT0} offen lds"),
                  ([], f"buffer_load_dwordx4 v{vWS2}, {sr(SWO)}, s{sT0} offen offset:1024 lds")]
        return g, ("wo", pz)
    W0 = [f"s_cmp_eq_u32 s{sW}, 0"]
    def publish(level):
        if level < 4:
            adr = f"""s_lshr_b32 s92, s{sFL}, 4
            s_lshl_b32 s92, s92, 7
            s_and_b32 s93, s{sFL}, 15
            s_lshl_b32 s93, s93, 2
            s_add_u32 s92, s92, s93"""
        else:
            adr = f"s_lshl_b32 s92, s{sFL}, 2"
        rare(W0, f"""
        {adr}
        s_add_u32 s92, s92, {WS_F + (level-1)*4096}
        v_mov_b32 v{vPUB}, s{sTAG}
        s_mov_b64 exec, 1
        buffer_store_dword v{vPUB}, off, {sr(SWS)}, s92{SC}
        s_mov_b64 exec, -1
        """)
    def poll_addr(kind):
        if kind == 1:
            return f"""v_lshrrev_b32 v{vPO}, 4, v{vL}
            v_lshlrev_b32 v{vPO}, 7, v{vPO}
            v_and_b32 v{vPOLL}, 15, v{vL}
            v_lshl_add_u32 v{vPO}, v{vPOLL}, 2, v{vPO}"""
        m = 15 if kind == 2 else 31
        return f"""v_and_b32 v{vPO}, {m}, v{vL}
            v_lshlrev_b32 v{vPO}, 2, v{vPO}"""
    def poll_issue(tag, sbase, kind):
        rare(W0, f"""
        {poll_addr(kind)}
        buffer_load_dword v{vPOLL}, v{vPO}, {sr(SWS)}, s{sbase} offen{SC}
        """)
        vm.mark(tag)
    def poll_check(tag, sbase, kind):
        n = U()
        rare(W0, f"""
        {vm.peek(tag)}
        s_mov_b32 s{sCNT}, 0
        L_pl{n}:
        v_cmp_ne_u32 vcc, s{sTAG}, v{vPOLL}
        s_nop 4
        s_cbranch_vccz L_pd{n}
        s_add_u32 s{sCNT}, s{sCNT}, 1
        s_cmp_gt_u32 s{sCNT}, 0x20000
        s_cbranch_scc1 L_pd{n}
        buffer_load_dword v{vPOLL}, v{vPO}, {sr(SWS)}, s{sbase} offen{SC}
        s_sleep {OPT["psl"]}
        s_waitcnt vmcnt({OPT["pdepth"]})
        s_branch L_pl{n}
        L_pd{n}:
        """)
        fstamp(f"poll {tag}")
    sPB = sXB
    for it in f_qkv(acc(0), 0, E, "eq"): do_fill(it)
    def acc1_init():
        pass
    R1 = [36, SPARE, 6, CA[2], xf(0), xf(1)]
    def f1(s, u): return R1[(2 * s + u) % 6]
    def acc1(u): return ACC1 + 16 * u
    def rd_w1(s):
        c2 = (s >> 2) & 1
        return [(f"ds_read_b64_tr_b16 {vr(f1(s,u)+2*hh,2)}, v{vWR[s & 3]} offset:{c2*16384+u*8192+hh*512}", ("w1", s, u)) for u in range(2) for hh in range(2)]
    PFS = [0, 3, 10, 13, 19]
    def pass1(fill, nq):
        lds(rd_w1(0)); lds(rd_w1(1))
        early = list(fillS)
        for s in range(32):
            Tq, r8 = s >> 3, s & 7; g = 8 + Tq
            cur["step"] = s
            valu = []; dm = {}
            if r8 == 6 and Tq < 3:
                a(lg.drain())
                f2stamp(f"p1 mm{Tq}")
                if Tq == 0:
                    while early: do_fill(early.pop(0))
                if Tq == 1: W(vm.wait("eq"))
                W(vm.wait(("st", g + 1)))
                f2stamp(f"p1 vmwait{Tq}")
                a("s_barrier")
                f2stamp(f"p1 bar{Tq}")
                if OPT["wpf"] and Tq < 2: wtouch(7 + Tq)
                if Tq == 1: publish(1)
                valu = slot_adv(g + 1, vWR)
                if Tq <= OPT["early_b"]:
                    gr, tag = dma_p1(3) if Tq == 0 else wodma(Tq - 1)
                    pass1.pend = [(pre, ld, tag) for pre, ld in gr]
            if s == 30:
                assert not fill, "fillers must be done before the exchange barrier"
                a(f"ds_write_b128 v{XA1[0]}, {vr(CA[0])}")
                a(f"ds_write_b128 v{XA1[0]}, {vr(CA[1])} offset:128")
                poll_check("p1", sPB, 1)
                if "eh" in vm.q: W(vm.wait("eh"))
                W(vm.wait(("wo", 1)))
                a(lg.drain())
                a("s_barrier")
                publish(2)
                kv_loads()
                fill.extend(x_reduce(XA1, xf(4)))
            if getattr(pass1, "pend", None) and (r8 in (6, 7, 0, 1)):
                dm = {1: pass1.pend.pop(0)}
            mfs = []
            for u in range(2):
                mfs.append((([("w1", s, 1)] if u == 0 else []) if OPT["wmerge"] else [("w1", s, u)], f"{MF32} {vr(acc1(u),16)}, {vr(f1(s,u))}, {vr(xf(s))}, {vr(acc1(u),16) if s else 0}"))
                if (s & 3) == 0:
                    mfs.append(([], f"{MF16} {vr(CA[u])}, {vr(f1(s,u))}, {vr(SEL)}, {vr(CA[u]) if s else 0}"))
            last = len(mfs) - 1
            reads = []
            if s + 2 < 32:
                e = last if s == 0 else 0
                if s == 0:
                    reads = [(i_, tg, last) for i_, tg in rd_w1(2)[:2]]
                elif s == 1:
                    reads = [(i_, tg, last) for i_, tg in rd_w1(2)[2:]] + [(i_, tg, last) for i_, tg in rd_w1(3)]
                else:
                    reads = [(i_, tg, 0) for i_, tg in rd_w1(s + 2)]
            run_slots(mfs, reads, valu, dm, rper=2.0 if s > 1 else 8.0, vper=4, fill=(early if early else (fill if s >= 5 else None)), fper=(4 if early else OPT["fper"]))
            if s == 25:
                a(f"""
                s_lshl_b32 s{sPB}, s{sQB}, 8
                s_sub_i32 s{sPB}, s{sPB}, 256
                s_max_i32 s{sPB}, s{sPB}, 0
                s_add_u32 s{sPB}, s{sPB}, {WS_F}
                """)
                poll_issue("p1", sPB, 1)
        cur["step"] = None
        print("fill left after pass1:", len(fill), file=sys.stderr)
        while fill: do_fill(fill.pop(0))
    vM, vKR, vVR, vVS, vBIG = 1, 4, 5, 6, 7
    P2r = 8; KF = [16, 20]; VT = 24; P = 32; S = [40, 56]; NEG = 80; O = 96
    QF = 76; QF1 = 112; ACC3 = 112; WOF = 128
    hKR, hVR, hVS, hWRd, hAR = 176, 177, 178, 179, 180
    t0, t1, t2 = 190, 191, 175
    MP = [4 + 2 * i for i in range(10)] + [40, 42, 44, 46] + [64, 66]
    fillM = F(f"""
    v_and_b32 v{t0}, 31, v{vL}
    v_lshrrev_b32 v{t1}, 5, v{vL}
    v_lshlrev_b32 v{t2}, 2, v{t1}
    v_sub_u32 v{t2}, v{t0}, v{t2}
    """ + "\n".join(f"v_cmp_le_i32 s[{MP[r]}:{MP[r]+1}], {8*(r>>2)+(r&3)}, v{t2}" for r in range(16)) + f"""
    v_lshlrev_b32 v{hKR}, 4, v{t1}
    v_lshl_add_u32 v{hKR}, v{t0}, 5, v{hKR}
    v_bfe_u32 v{t0}, v{vL}, 2, 2
    v_lshl_add_u32 v{t0}, v{t1}, 2, v{t0}
    v_and_b32 v{t2}, 1, v{vL}
    v_lshlrev_b32 v{t2}, 4, v{t2}
    v_lshl_add_u32 v{hVR}, v{t0}, 5, v{t2}
    v_bfe_u32 v{t2}, v{vL}, 1, 1
    v_lshl_add_u32 v{hVR}, v{t2}, 3, v{hVR}
    v_lshlrev_b32 v{hWRd}, 7, v{t0}
    v_bfe_u32 v{t2}, v{vL}, 3, 1
    s_bfe_u32 s{sE0}, s{sW}, 0x10001
    v_xor_b32 v{t2}, s{sE0}, v{t2}
    v_lshl_add_u32 v{hWRd}, v{t2}, 6, v{hWRd}
    v_bfe_u32 v{t2}, v{vL}, 4, 1
    v_lshl_add_u32 v{hWRd}, v{t2}, 5, v{hWRd}
    v_and_b32 v{t2}, 3, v{vL}
    v_lshl_add_u32 v{hWRd}, v{t2}, 3, v{hWRd}
    s_lshl_b32 s{sT2}, s{sNH}, 10
    v_add_u32 v{hAR}, s{sT2}, v{vD}
    v_bfe_u32 v{t2}, v{vL}, 4, 1
    v_xor_b32 v{t2}, 1, v{t2}
    v_lshlrev_b32 v{hVS}, 10, v{t2}
    s_add_u32 s{sT1}, s{sLB}, {(LV - LONE) & 0xffffffff}
    v_mul_lo_u32 v{t0}, v{t2}, s{sT1}
    v_add_u32 v{hVR}, v{hVR}, v{t0}
    v_add_u32 v{hVR}, {LONE}, v{hVR}
    """)
    def kv_loads():
        a(f"""
        s_lshl_b32 s{sT0}, s{sQB}, 8
        s_lshl_b32 s{sT1}, s{sW}, 6
        s_add_u32 s{sT1}, s{sT1}, s{sT0}
        s_sub_i32 s{sT1}, s{sT1}, 256
        s_max_i32 s{sT1}, s{sT1}, 0
        s_lshl_b32 s{sT1}, s{sT1}, 5
        s_lshl_b32 s{sT2}, s{sHD}, 16
        s_add_u32 m0, s{sLX}, {LK}
        s_add_u32 s{sT1}, s{sT1}, s{sT2}
        s_add_u32 s{sT3}, s{sT1}, {WS_QKV + 64*65536}
        s_add_u32 s{sT1}, s{sT1}, {WS_QKV + 32*65536}
        buffer_load_dwordx4 v{vD}, {sr(SWS)}, s{sT1} offen lds
        buffer_load_dwordx4 v{vD}, {sr(SWS)}, s{sT1} offen offset:1024 lds
        s_add_u32 m0, s{sLX}, {LV}
        s_nop 0
        buffer_load_dwordx4 v{vD}, {sr(SWS)}, s{sT3} offen lds
        buffer_load_dwordx4 v{vD}, {sr(SWS)}, s{sT3} offen offset:1024 lds
        """)
        vm.issue("kv", 4)
    XA1 = [172, 173, 174, 167]
    fillM = F(xaddr(*XA1, sT1, sT2)) + fillM
    TF = xf(2)
    fillA = f_h(acc(1), acc(2), sP0, TF, "eh") + [('at', 17)] + list(fillM)
    fillB = [('at', 17)] + list(fillM)
    sv, sl0, sn = vm.save(), lg.save(), nstamp[0]
    a(f"s_cmp_eq_u32 s{sTB}, 1")
    a("s_cbranch_scc1 L_p1b")
    acc1_init()
    pass1.pend = []
    pass1(fillA, 2)
    stA = vm.save()
    a("s_branch L_e1")
    a.label("L_p1b")
    vm.restore(sv); lg.restore(sl0); nstamp[0] = sn; del SNAMES[sn:]
    for it in f_qkv(acc(1), 1, E + 12, "eq") + f_qkv(acc(2), 2, E, "eq"): do_fill(it)
    acc1_init()
    pass1.pend = []
    pass1(fillB, 6)
    stB = vm.save()
    a.label("L_e1")
    qa = [t for t in stA[0] if t not in ("eq", "eh")]; qb_ = [t for t in stB[0] if t not in ("eq", "eh")]
    if len(qb_) > len(qa): qa, qb_ = qb_, qa
    assert qa[len(qa) - len(qb_):] == qb_, (qa, qb_)
    vm.q = list(qa)
    vm.total = 1000; vm.marks = {}
    stamp(name="pass1")
    NB = 16
    def e1_body(extra):
        cs_fold(2, acc1, ACC, XA1[3])
        fe1 = f_h(acc1(0), acc1(1), sPF, ACC, "e1")
        st_last = [it for it in fe1 if it[0] == 'm']
        fe1 = [it for it in fe1 if it[0] != 'm']
        rate = len(extra) / (len(fe1) - 8); acc_ = 0.0
        for it in fe1:
            do_fill(it); acc_ += rate
            while extra and acc_ >= 1.0: extra.pop(0)(); acc_ -= 1.0
        while extra: extra.pop(0)()
        return st_last
    svv, svl, sn2 = vm.save(), lg.save(), nstamp[0]
    a(f"s_cmp_eq_u32 s{sKH}, 1")
    a("s_cbranch_scc1 L_B")
    vW0, vW1 = 10, 11
    a(f"""
    s_lshl_b32 s{sT0}, s{sQB}, 13
    s_add_u32 s{sT0}, s{sT0}, s{sLB}
    s_lshl_b32 s{sT2}, s{sHD}, 16
    s_add_u32 s{sT0}, s{sT0}, s{sT2}
    s_add_u32 s{sT0}, s{sT0}, {WS_QKV}
    buffer_load_dwordx4 {vr(QF)}, v{hKR}, {sr(SWS)}, s{sT0} offen
    buffer_load_dwordx4 {vr(QF1)}, v{hKR}, {sr(SWS)}, s{sT0} offen offset:1024
    s_add_u32 s{sT0}, s{sLB}, {LK}
    v_add_u32 v{vKR}, s{sT0}, v{hKR}
    v_mov_b32 v{vVR}, v{hVR}
    v_mov_b32 v{vVS}, v{hVS}
    v_mov_b32 v{vBIG}, {hx(2.0**OPT["fbexp"])}
    v_mov_b32 v{vW0}, v{hWRd}
    v_add_u32 v{vW1}, {SLOT}, v{hWRd}
    s_lshr_b32 s{sPB}, s{sMT}, 1
    s_lshl_b32 s{sPB}, s{sPB}, 7
    s_add_u32 s{sPB}, s{sPB}, {WS_F + 4096}
    """)
    vm.issue("q", 2)
    wof = []
    for f in range(32):
        unit, i = f >> 2, f & 3
        khp, pz, q = unit >> 2, (unit >> 1) & 1, unit & 1
        for hh in range(2):
            ins = f"ds_read_b64_tr_b16 {vr(WOF+4*f+2*hh,2)}, v{vW0 if pz == 0 else vW1} offset:{q*16384+(khp*4+i)*2048+hh*1024}"
            wof.append(lambda ins=ins: (a(ins), lg.issue("wof")))
    wof.insert(40, lambda: poll_issue("pe", sPB, 2))
    st_last = e1_body(wof)
    for it in st_last: do_fill(it)
    stamp(name="E1")
    poll_check("pe", sPB, 2)
    W(lg.wait("wof"))
    W(vm.wait("q"))
    a("s_barrier")
    stamp(name="bar0")
    def hpfA(k16base, n):
        if not OPT["hpfa"]: return
        a(f"""
        s_lshl_b32 s{sT0}, s{sCGL}, 2
        s_add_u32 s{sT0}, s{sT0}, s{sCT}
        s_mul_i32 s{sT0}, s{sT0}, {n}
        v_min_u32 v{ACC3+8}, {n-1}, v{vL}
        v_add_u32 v{ACC3+8}, s{sT0}, v{ACC3+8}
        v_and_b32 v{ACC3+9}, 15, v{ACC3+8}
        v_lshrrev_b32 v{ACC3+8}, 4, v{ACC3+8}
        v_lshlrev_b32 v{ACC3+8}, 16, v{ACC3+8}
        v_lshl_add_u32 v{ACC3+8}, v{ACC3+9}, 7, v{ACC3+8}
        s_lshl_b32 s{sT0}, s{sMT}, 11
        s_add_u32 s{sT0}, s{sT0}, {k16base << 16}
        buffer_load_dword v{ACC3+10}, v{ACC3+8}, {sr(SWS)}, s{sT0} offen
        """)
        vm.issue("hpf")
    hpfA(0, 48)
    nbar = [1]
    def abar():
        k = nbar[0]; nbar[0] += 1
        sg = k - 1
        if sg == OPT["ck3"]: poll_check("p2", sPB, 2)
        if sg == OPT["pub3"]: W(vm.wait("e1"))
        a("s_barrier")
        if sg == OPT["pub3"]: publish(3)
        if sg == OPT["ck3"]: hpfA(48, 64)
        if sg == OPT["ck3"] - 1:
            a(f"s_add_u32 s{sPB}, s{sPB}, 4096")
            poll_issue("p2", sPB, 2)
    credit = [0.0]; marks = [OPT["ab2"] + OPT["abs"] * i for i in range(20)]
    def A(ins, w=1.0):
        a(ins); credit[0] += w
        if marks and credit[0] >= marks[0] and nbar[0] < NB - OPT['apost']:
            marks.pop(0); abar()
    def mf_s(dst, kf): return f"{MF32} {vr(dst,16)}, {vr(kf)}, {vr(QF)}, {vr(NEG,16)}"
    def rdk(j, buf=None):
        a(f"ds_read_b128 {vr(KF[j & 1 if buf is None else buf])}, v{vKR} offset:{j*1024}"); lg.issue(("k", j))
    def cset(val): return "\n".join(val(r) for r in range(16))
    big = lambda r: f"v_mov_b32 v{NEG+r}, {NEGBIG}"
    negm = lambda r: f"v_sub_f32 v{NEG+r}, 0, v{vM}"
    def rdv(tag):
        for t in range(2):
            for hh in range(2):
                a(f"ds_read_b64_tr_b16 {vr(VT+4*t+2*hh,2)}, v{vVR} offset:{t*512+hh*256}"); lg.issue(tag)
    PB = [P, P2r]
    fb = Asm()
    def attention(rr):
        npv = [0]
        def pv1(p, t):
            npv[0] += 1
            return f"{MF32} {vr(O,16)}, {vr(VT+4*t)}, {vr(p+4*t)}, {vr(O,16) if npv[0] > 1 else 0}"
        rdk(8, 0); rdk(1)
        a(f"v_mov_b32 v{vM}, 0")
        W(lg.wait(("k", 8)))
        for r in range(4): a(f"v_dot2c_f32_bf16 v{vM}, v{QF+r}, v{KF[0]+r}")
        a(f"""
        v_mov_b32 v{VT}, v{vM}
        v_permlane32_swap_b32 v{vM}, v{VT}
        v_add_f32 v{vM}, v{vM}, v{VT}
        """)
        for r in range(16): A(negm(r))
        rare([f"s_cmp_gt_i32 s{sJS}, 1"], cset(big))
        for j in range(1, 9):
            if j >= 2: rare([f"s_cmp_eq_u32 s{sJS}, {j}"], cset(negm))
            W(lg.wait(("k", j)))
            a(mf_s(S[j & 1], KF[j & 1]))
            if j < 8: rdk(j + 1)
            else: rdk(0, 1)
            if j > 1:
                sx = S[(j - 1) & 1]; px = PB[(j - 1) & 1]
                ex = [f"v_exp_f32 v{sx+r}, v{sx+r}" for r in range(16)]
                cv = [f"v_cvt_pk_bf16_f32 v{px+r}, v{sx+2*r}, v{sx+2*r+1}" for r in range(8)]
                for x in ex[0:5]: A(x, 2)
                if j > 2:
                    W(lg.wait(("v", j - 2))); a(pv1(PB[j & 1], 0))
                for x in ex[5:10]: A(x, 2)
                if j > 2: a(pv1(PB[j & 1], 1))
                A(ex[10], 2); A(ex[11], 2)
                a(f"v_add_u32 v{vVR}, v{vVR}, v{vVS}")
                for q in range(4):
                    A(ex[12 + q], 2)
                    a(f"ds_read_b64_tr_b16 {vr(VT+2*q,2)}, v{vVR} offset:{(q>>1)*512+(q&1)*256}"); lg.issue(("v", j - 1))
                for x in cv: A(x)
        W(lg.wait(("k", 0)))
        a(mf_s(S[1], KF[1]))
        rare([f"s_cmp_gt_i32 s{sJS}, 0"], "s_nop 15\n" + "\n".join(f"v_mov_b32 v{S[1]+r}, {NEGBIG}" for r in range(16)))
        W(lg.wait(("v", 7)))
        a(pv1(PB[1], 0)); a(pv1(PB[1], 1))
        for r in range(16): A(f"v_cndmask_b32 v{S[0]+r}, v{S[1]+r}, v{S[0]+r}, s[{MP[r]}:{MP[r]+1}]")
        a(f"v_add_u32 v{vVR}, v{vVR}, v{vVS}")
        rdv(("v", 8))
        for r in range(16): A(f"v_exp_f32 v{S[0]+r}, v{S[0]+r}", 2)
        for r in range(16): A(f"v_cndmask_b32 v{S[1]+r}, 0, v{S[0]+r}, s[{MP[r]}:{MP[r]+1}]")
        for r in range(8): A(f"v_cvt_pk_bf16_f32 v{PB[0]+r}, v{S[1]+2*r}, v{S[1]+2*r+1}")
        W(lg.wait(("v", 8)))
        a(pv1(PB[0], 0))
        for r in range(8): A(f"v_cndmask_b32 v{S[0]+r}, v{S[0]+r}, 0, s[{MP[r]}:{MP[r]+1}]")
        a(pv1(PB[0], 1))
        a(f"v_lshlrev_b32 v{KF[0]}, 3, v{vVS}")
        a(f"v_sub_u32 v{vVR}, v{vVR}, v{KF[0]}")
        rdv(("v", 0))
        for r in range(8, 16): A(f"v_cndmask_b32 v{S[0]+r}, v{S[0]+r}, 0, s[{MP[r]}:{MP[r]+1}]")
        for r in range(8): A(f"v_cvt_pk_bf16_f32 v{PB[1]+r}, v{S[0]+2*r}, v{S[0]+2*r+1}")
        W(lg.wait(("v", 0)))
        a(pv1(PB[1], 0)); a(pv1(PB[1], 1))
        a(f"""
        s_lshl_b32 s{sE0}, s{sHD}, 16
        s_lshl_b32 s{sE1}, s{sQB}, 13
        s_add_u32 s{sE0}, s{sE0}, s{sE1}
        s_add_u32 s{sE0}, s{sE0}, s{sLB}
        s_add_u32 s{sE0}, s{sE0}, {WS_O + rr*1024}
        s_mov_b32 s{sE1}, {rr}
        v_cmp_nlt_f32 vcc, v{O+8}, v{vBIG}
        s_nop 4
        s_cbranch_vccnz L_fb
        L_fbd{rr}:
        v_rcp_f32 v{vM}, v{O+8}
        """)
        for r in range(8): a(f"v_mul_f32 v{O+r}, v{O+r}, v{vM}")
        for r in range(4): a(f"v_cvt_pk_bf16_f32 v{S[1]+r}, v{O+2*r}, v{O+2*r+1}")
        a(f"buffer_store_dwordx4 {vr(S[1])}, v{vD}, {sr(SWS)}, s{sE0} offen{SC}")
        vm.issue("o")
    if OPT["aprio"]: a(f"s_setprio {OPT['aprio']}")
    attention(0)
    for r in range(4): a(f"v_mov_b32 v{QF+r}, v{QF1+r}")
    a(f"""
    v_add_u32 v{vKR}, 0x400, v{vKR}
    v_add_u32 v{vVR}, v{vVR}, v{vVS}
    s_sub_i32 s{sJS}, s{sJS}, 1
    """)
    attention(1)
    print("barriers inside attention:", nbar[0], "credit", credit[0], file=sys.stderr)
    stamp(name="att")
    fb.label("L_fb")
    fb("s_nop 15")
    fb(f"v_mov_b32 v{vM}, {NEGBIG}")
    def fb_tile(j, c, dst):
        fb(f"ds_read_b128 {vr(KF[0])}, v{vKR} offset:{j*1024}")
        fb("s_waitcnt lgkmcnt(0)")
        fb(f"{MF32} {vr(dst,16)}, {vr(KF[0])}, {vr(QF)}, {c}")
    def fb_merged(c):
        n = U()
        for r in range(16): fb(f"v_mov_b32 v{S[1]+r}, {NEGBIG}")
        fb(f"s_cmp_gt_i32 s{sJS}, 0")
        fb(f"s_cbranch_scc1 L_fm{n}")
        fb_tile(0, c, S[1])
        fb.label(f"L_fm{n}")
        fb_tile(8, c, S[0])
        for r in range(16): fb(f"v_cndmask_b32 v{S[0]+r}, v{S[1]+r}, v{S[0]+r}, s[{MP[r]}:{MP[r]+1}]")
    def fb_max(s_):
        for r in range(0, 16, 2): fb(f"v_max3_f32 v{vM}, v{s_+r}, v{s_+r+1}, v{vM}")
    def fb_pv(j, p):
        fb(f"v_mul_u32_u24 v{KF[1]}, {j}, v{vVS}")
        fb(f"v_add_u32 v{KF[1]}, v{KF[1]}, v{vVR}")
        for q in range(4): fb(f"ds_read_b64_tr_b16 {vr(VT+2*q,2)}, v{KF[1]} offset:{(q>>1)*512+(q&1)*256}")
        fb("s_waitcnt lgkmcnt(0)")
        for t in range(2): fb(f"{MF32} {vr(O,16)}, {vr(VT+4*t)}, {vr(p+4*t)}, {vr(O,16)}")
    fb_merged("0"); fb_max(S[0])
    for j in range(1, 8):
        n = U()
        fb(f"s_cmp_gt_i32 s{sJS}, {j}"); fb(f"s_cbranch_scc1 L_fa{n}")
        fb_tile(j, "0", S[0]); fb_max(S[0])
        fb.label(f"L_fa{n}")
    fb(f"""
    v_mov_b32 v{VT}, v{vM}
    v_permlane32_swap_b32 v{vM}, v{VT}
    v_max_f32 v{vM}, v{vM}, v{VT}
    """)
    fb(cset(negm))
    for r in range(16): fb(f"v_mov_b32 v{O+r}, 0")
    fb_merged(vr(NEG, 16))
    for r in range(16): fb(f"v_exp_f32 v{S[0]+r}, v{S[0]+r}")
    for r in range(16): fb(f"v_cndmask_b32 v{S[1]+r}, 0, v{S[0]+r}, s[{MP[r]}:{MP[r]+1}]")
    for r in range(8): fb(f"v_cvt_pk_bf16_f32 v{P+r}, v{S[1]+2*r}, v{S[1]+2*r+1}")
    fb_pv(8, P)
    for r in range(16): fb(f"v_cndmask_b32 v{S[1]+r}, v{S[0]+r}, 0, s[{MP[r]}:{MP[r]+1}]")
    for r in range(8): fb(f"v_cvt_pk_bf16_f32 v{P+r}, v{S[1]+2*r}, v{S[1]+2*r+1}")
    fb_pv(0, P)
    for j in range(1, 8):
        n = U()
        fb(f"s_cmp_gt_i32 s{sJS}, {j}"); fb(f"s_cbranch_scc1 L_fc{n}")
        fb_tile(j, vr(NEG, 16), S[0])
        for r in range(16): fb(f"v_exp_f32 v{S[0]+r}, v{S[0]+r}")
        for r in range(8): fb(f"v_cvt_pk_bf16_f32 v{P+r}, v{S[0]+2*r}, v{S[0]+2*r+1}")
        fb_pv(j, P)
        fb.label(f"L_fc{n}")
    fb(f"""
    s_nop 15
    s_cmp_eq_u32 s{sE1}, 0
    s_cbranch_scc1 L_fbd0
    s_branch L_fbd1
    """)
    vXO = 4; XR = 8; vOA = 5; OFB = 16; vXD = 6; vXL = 7
    a(f"""
    s_lshl_b32 s{sT1}, s{sMT}, 16
    s_lshl_b32 s{sT2}, s{sNH}, 15
    s_add_u32 s{sT1}, s{sT1}, s{sT2}
    s_lshl_b32 s{sT2}, s{sNT}, 7
    s_add_u32 s{sT1}, s{sT1}, s{sT2}
    s_lshr_b32 s{sT2}, s{sCT}, 1
    s_lshl_b32 s{sT2}, s{sT2}, 6
    s_add_u32 s{sT1}, s{sT1}, s{sT2}
    v_and_b32 v{XR}, 31, v{vL}
    v_lshrrev_b32 v{XR+1}, 5, v{vL}
    v_lshlrev_b32 v{vXO}, 10, v{XR}
    v_lshl_add_u32 v{vXO}, v{XR+1}, 4, v{vXO}
    v_add_u32 v{vXO}, s{sT1}, v{vXO}
    v_lshlrev_b32 v{vXL}, 6, v{XR}
    v_lshl_add_u32 v{vXL}, v{XR+1}, 3, v{vXL}
    v_lshrrev_b32 v{vXD}, 2, v{vL}
    v_lshlrev_b32 v{vXD}, 10, v{vXD}
    v_and_b32 v{XR}, 3, v{vL}
    v_lshl_add_u32 v{vXD}, v{XR}, 4, v{vXD}
    s_add_u32 s{sT2}, s{sT1}, 0x4000
    s_add_u32 s{sT3}, s{sLB}, {LK}
    v_add_u32 v{vXL}, s{sT3}, v{vXL}
    s_lshl_b32 s{sE0}, s{sQB}, 2
    s_add_u32 s{sE0}, s{sE0}, s{sCT}
    s_lshl_b32 s{sE0}, s{sE0}, 7
    s_lshl_b32 s{sE1}, s{sHD}, 2
    s_add_u32 s{sE0}, s{sE0}, s{sE1}
    s_add_u32 s{sE0}, s{sE0}, {WS_F + 3*4096}
    v_mov_b32 v{vOA}, s{sTAG}
    """)
    abar()
    a(f"""
    s_mov_b32 m0, s{sT3}
    s_lshl_b32 s{sPB}, s{sMT}, 7
    buffer_load_dwordx4 v{vXD}, {sr(SX)}, s{sT1} offen lds
    s_add_u32 m0, s{sT3}, 1024
    s_add_u32 s{sPB}, s{sPB}, {WS_F + 3*4096}
    buffer_load_dwordx4 v{vXD}, {sr(SX)}, s{sT2} offen lds
    v_and_b32 v{vPO}, 31, v{vL}
    v_lshlrev_b32 v{vPO}, 2, v{vPO}
    """)
    vm.issue("x", 2)
    W(vm.wait("o"))
    a(f"""
    s_mov_b64 exec, 1
    buffer_store_dword v{vOA}, off, {sr(SWS)}, s{sE0}{SC}
    s_mov_b64 exec, -1
    s_lshl_b32 s{sE0}, s{sMT}, 11
    s_lshl_b32 s{sT1}, s{sNH}, 10
    s_add_u32 s{sE0}, s{sE0}, s{sT1}
    s_add_u32 s{sE0}, s{sE0}, {WS_O}
    v_mov_b32 v{vPOLL}, 0
    """)
    while nbar[0] < NB - 1: abar()
    stamp(name="A bars")
    a(f"""
    s_mov_b32 s{sCNT}, 0
    L_p3:
    buffer_load_dword v{vPOLL}, v{vPO}, {sr(SWS)}, s{sPB} offen{SC}
    s_sleep {OPT["psl"]}
    s_waitcnt vmcnt({OPT["pdepth"]})
    v_cmp_ne_u32 vcc, s{sTAG}, v{vPOLL}
    s_add_u32 s{sCNT}, s{sCNT}, 1
    s_cmp_gt_u32 s{sCNT}, 0x20000
    s_cbranch_scc1 L_p3d
    s_nop 2
    s_cbranch_vccnz L_p3
    L_p3d:
    """)
    vm.q = []
    stamp(name="p3")
    OQ = list(range(16, 72, 4)) + list(range(76, 112, 4))
    NO = len(OQ)
    def ofr(f): return OQ[f] if f < NO else WOF + 4 * (f - NO)
    def oload(f):
        if f: a(f"s_add_u32 s{sE0}, s{sE0}, 0x10000")
        a(f"buffer_load_dwordx4 {vr(ofr(f))}, v{vD}, {sr(SWS)}, s{sE0} offen"); vm.issue(("of", f))
    for f in range(NO): oload(f)
    GX = WOF + 40
    for f in range(32):
        W(vm.wait(("of", f)))
        a(f"{MF32} {vr(ACC3,16)}, {vr(WOF+4*f)}, {vr(ofr(f))}, {vr(ACC3,16) if f else 0}")
        if f + NO < 32: oload(NO + f)
        if f == 9:
            for q in range(4): a(f"ds_read_b64 v[{XR+2*q}:{XR+2*q+1}], v{vXL} offset:{16*q}")
        if f == 13: a("s_waitcnt lgkmcnt(0)")
        if 14 <= f < 22:
            d = f - 14
            a(f"v_lshlrev_b32 v{OFB+2*d}, 16, v{XR+d}")
            a(f"v_and_b32 v{OFB+2*d+1}, 0xffff0000, v{XR+d}")
        if f == 27:
            abar()
            a(f"s_lshl_b32 s{sT1}, s{sCT}, 12")
            a(f"v_add_u32 v{vOA}, s{sT1}, v{vD}")
            for q in range(4): a(f"ds_read_b128 {vr(GX+4*q)}, v{vOA} offset:{q*1024}")
    assert nbar[0] == NB
    stamp(name="G3")
    a("s_waitcnt lgkmcnt(0)")
    TM = OFB
    for i in range(16): a(f"v_fmac_f32 v{TM+i}, v{ACC3+i}, v{GX+i}")
    for i in range(8): a(f"v_cvt_pk_bf16_f32 v{TM+16+i}, v{TM+2*i}, v{TM+2*i+1}")
    for h2 in range(2):
        T4 = TM + 16 + 4 * h2
        a(f"v_permlane32_swap_b32 v{T4}, v{T4+2}")
        a(f"v_permlane32_swap_b32 v{T4+1}, v{T4+3}")
        a(f"buffer_store_dwordx4 {vr(T4)}, v{vXO}, {sr(SOUT)}, 0 offen offset:{32*h2}")
    a("s_branch L_fin")
    nsA = nstamp[0]
    a.label("L_B")
    vm.restore(svv); lg.restore(svl); nstamp[0] = sn2
    sav_names = list(SNAMES)
    vAR, vWRd = hAR, hWRd
    vAa = [182, 183]; vWa = [184, 185]
    ACC2 = 112; GF = 128
    ex_ = []
    for pre, ld in wdma(2)[0]:
        ex_.append(lambda pre=pre: a.extend(pre)); ex_.append(lambda ld=ld: (a(ld), vm.issue(("g", 2))))
    st_last = e1_body(ex_)
    for it in st_last: do_fill(it)
    a(f"v_add_u32 v{vWRd}, 0x4000, v{vWRd}")
    stamp(name="E1")
    W(vm.wait("kv"))
    a("s_barrier")
    stamp(name="bar0")
    if OPT["bprio"]: a(f"s_setprio {OPT['bprio']}")
    for sg in range(2):
        emit_dma(wdma(sg)); emit_dma(adma(sg, calc=False))
    DB = OPT['bdist']; NR = DB + 2
    GF = 192
    def ga(n): return GF + (n % NR) * 8
    def gw(n): return GF + (n % NR) * 8 + 4
    def g_reads(n):
        sg, i = n >> 3, n & 7
        return [(f"ds_read_b128 {vr(ga(n))}, v{vAa[sg & 1]} offset:{i*2048}", ("ga", n), 0)] + \
               [(f"ds_read_b64_tr_b16 {vr(gw(n)+2*hh,2)}, v{vWa[sg & 1]} offset:{i*2048+hh*1024}", ("ga", n), 0) for hh in range(2)]
    def bst(i):
        if not (STAMP and OPT["fineb"]): return
        a("s_memtime s[92:93]"); a("s_waitcnt lgkmcnt(0)"); lg.q = []
        a(f"v_writelane_b32 v{vSTAMP}, s92, {i}")
    def bbar(sg):
        if sg > 0: W(lg.wait(("ga", 8 * sg - 1)))
        bst(20 + 3 * sg)
        if sg == OPT["pub3"]: W(vm.wait("e1"))
        W(vm.wait(("g", sg)))
        bst(21 + 3 * sg)
        a("s_barrier")
        bst(22 + 3 * sg)
        a(f"v_add_u32 v{vAa[sg & 1]}, {AREAS[sg % 3]}, v{vAR}")
        a(f"v_add_u32 v{vWa[sg & 1]}, {AREAS[sg % 3]}, v{vWRd}")
    bbar(0)
    for n in range(DB):
        for ins, tg, _ in g_reads(n): a(ins); lg.issue(tg)
    pend = [(pre, ld, ("g", 2)) for pre, ld in adma(2)[0]]
    for n in range(112):
        sg, i = n >> 3, n & 7
        if i == 8 - DB and sg < 13:
            assert not pend
            bbar(sg + 1)
            s3 = sg + 3
            if s3 < 14:
                assert s3 < 6 or sg + 1 >= OPT["ck3"]
                pend = [(pre, ld, ("g", s3)) for pre, ld in wdma(s3)[0] + adma(s3, calc=False)[0]]
        dm = {0: pend.pop(0)} if pend else {}
        mfs = [([("ga", n)], f"{MF32} {vr(ACC2,16)}, {vr(gw(n))}, {vr(ga(n))}, {vr(ACC2,16) if n else 0}")]
        run_slots(mfs, g_reads(n + DB) if n + DB < 112 else [], [], dm, rper=3.0)
        for _ in range(OPT["bdma"] - 1):
            if pend:
                pre, ld, tg = pend.pop(0); a.extend(pre); a(ld); vm.issue(tg)
    stamp(name="att")
    Tz = GF
    for i in range(16): a(f"v_mul_f32 v{Tz+i}, {hx(-LOG2E)}, v{ACC2+i}")
    for i in range(16): a(f"v_exp_f32 v{Tz+i}, v{Tz+i}")
    a(f"""
    s_lshl_b32 s{sT1}, s{sCT}, 12
    v_add_u32 v{vAa[0]}, s{sT1}, v{vD}
    """)
    for i in range(16): a(f"v_add_f32 v{Tz+i}, 1.0, v{Tz+i}")
    for i in range(16): a(f"v_rcp_f32 v{Tz+i}, v{Tz+i}")
    for i in range(16): a(f"v_mul_f32 v{Tz+i}, v{ACC2+i}, v{Tz+i}")
    for q in range(4): a(f"ds_write_b128 v{vAa[0]}, {vr(Tz+4*q)} offset:{q*1024}")
    a("s_waitcnt lgkmcnt(0)")
    a("s_barrier")
    while nstamp[0] < nsA: stamp(name="")
    SNAMES[:] = sav_names
    a.label("L_fin")
    TM = 16
    if STAMP:
        stamp(name="final"); stamp(True)
        a(f"""
        s_lshl_b32 s{sT0}, s2, 3
        s_add_u32 s{sT0}, s{sT0}, s{sW}
        s_lshl_b32 s{sT0}, s{sT0}, 8
        s_add_u32 s{sT0}, s{sT0}, {WS_STAMP}
        s_mov_b32 s{SWS+2}, {WS_STAMP + (1 << 20)}
        v_lshlrev_b32 v{TM}, 2, v{vL}
        buffer_store_dword v{vSTAMP}, v{TM}, {sr(SWS)}, s{sT0} offen
        """)
        if OPT["dbgst"]:
            a(f"""
            s_lshl_b32 s{sT0}, s2, 3
            s_add_u32 s{sT0}, s{sT0}, s{sW}
            s_cmp_eq_u32 s{sT0}, {OPT["dbgst"]}
            s_cbranch_scc0 L_end
            v_add_u32 v{TM}, 4, v{TM}
            s_mov_b64 exec, 0x7fff
            buffer_store_dword v{vSTAMP}, v{TM}, {sr(SDBG)}, 0 offen
            """)
        print("stamps:", nstamp[0], file=sys.stderr)
        open("snames.txt", "w").write("\n".join(SNAMES))
    a.label("L_end")
    a("s_endpgm")
    a.items += ool.items
    a.label("L_code_end")
    a.items += fb.items
    return dict(lds=LDS_TOTAL, vgpr=256, sgpr=100)

HEADER = open("cdna_kernels/%s.s.ref" % NAME).read().split("; Override launch")[0]

def build(path):
    a = Asm(); info = gen(a)
    items = []; inside = False; inm = False
    for k, x in a.items:
        if k == 'l' and x == "X_begin": inside = True
        if k == 'l' and x == "X_end": inside = False
        if k == 'l' and x == "M_begin": inm = True
        if k == 'l' and x == "M_end": inm = False
        if inm and k == 'i':
            if OPT["m_nodma"] and x.startswith("buffer_load") and x.endswith("lds"): continue
            if OPT["m_noexp"] and x.startswith("v_exp"): continue
            if OPT["m_nobar"] and x.startswith("s_barrier"): continue
        if inside and k == 'i':
            if OPT["x_nodma"] and x.startswith("buffer_load") and x.endswith("lds"): continue
            if OPT["x_nomfma"] and x.startswith("v_mfma"): continue
            if OPT["x_nords"] and x.startswith("ds_read"): continue
            if OPT["x_nostat"] and re.match(r"(v_fmac_f32 v1[67]|v_add_f32 v1[45]|v_lshlrev_b32 v18, 16|v_and_b32 v19, 0xffff0000)", x): continue
        if k == 'i' and OPT["x_nocs"] and x.startswith("v_mfma_f32_16x16x32"): continue
        items.append((k, x))
    a.items = items
    txt = a.render()
    label = NAME + "_kernel"
    n = sum(1 for k, _ in a.items if k == 'i')
    print("instrs", n, "nops", a.nnop, file=sys.stderr)
    out = HEADER + f"; @launch grid=(256,1,1) block=(512,1,1) lds={info['lds']}\n"
    out += '.amdgcn_target "amdgcn-amd-amdhsa--gfx950"\n.text\n'
    out += f".globl {label}\n.p2align 8\n.type {label},@function\n{label}:\n"
    out += txt.replace("CODE_BYTES", "(L_code_end - L_pc)")
    out += f""".section .rodata,"a"
.p2align 6
.amdhsa_kernel {label}
  .amdhsa_next_free_vgpr {info['vgpr']}
  .amdhsa_next_free_sgpr {info['sgpr']}
  .amdhsa_accum_offset {info['vgpr']}
  .amdhsa_group_segment_fixed_size 0
  .amdhsa_kernarg_size 80
  .amdhsa_user_sgpr_count 2
  .amdhsa_user_sgpr_kernarg_segment_ptr 1
  .amdhsa_system_sgpr_workgroup_id_x 1
.end_amdhsa_kernel
"""
    open(path, "w").write(out)

if __name__ == "__main__":
    path = sys.argv[1]
    for arg in sys.argv[2:]:
        if arg == "stamp": STAMP = True
        elif "=" in arg:
            k, v = arg.split("="); assert k in OPT, k; OPT[k] = int(v)
    build(path)
```

```python
import sys, math, struct, re
sys.path.insert(0, "gen")
from asmlib import Asm, Ins

NAME = "recurrent_scan__sliding_block__geglu_ffn__prompt"
WS_H = 0
WS_O = 56 * 128 * 1024
WS_QKV = 72 * 128 * 1024
WS_F = WS_QKV + 96 * 65536
WS_END = WS_F + 4 * 4096
LOG2E = 1.4426950408889634
QSCALE = 0.25 * LOG2E
GK1 = -2.0 * math.sqrt(2.0 / math.pi) * LOG2E
GK2 = GK1 * 0.044715
NEGBIG = "0xf149f2ca"
def f2u(x): return struct.unpack("<I", struct.pack("<f", x))[0]
def hx(x): return "0x%08x" % f2u(x)
def vr(b, n=4): return f"v[{b}:{b+n-1}]"
def sr(b, n=4): return f"s[{b}:{b+n-1}]"

class Cnt:
    def __init__(self, name, mx): self.q = []; self.name = name; self.mx = mx; self.total = 0; self.marks = {}
    def issue(self, tag, n=1): self.q += [tag] * n; self.total += n
    def wait(self, tag):
        idxs = [i for i, t in enumerate(self.q) if t == tag]
        if not idxs: return None
        n = min(len(self.q) - 1 - max(idxs), self.mx)
        self.q = self.q[len(self.q) - n:] if n else []
        return f"s_waitcnt {self.name}({n})"
    def mark(self, tag): self.marks[tag] = self.total
    def peek(self, tag): return f"s_waitcnt {self.name}({min(self.total - self.marks[tag], self.mx)})"
    def drain(self): self.q = []; return f"s_waitcnt {self.name}(0)"
    def save(self): return (list(self.q), self.total, dict(self.marks))
    def restore(self, st): self.q, self.total, self.marks = list(st[0]), st[1], dict(st[2])

STAMP = False
SNAMES = []
WS_STAMP = 32 << 20
OPT = dict(codepf=32, rot=1, rot2=0, fine=0, start=3, fper=5, early_b=2, wpf=1, hpf=0, p2late=1, ck3=4, ck4=12, pub3=0, gdelay=14, gd0=4, fbexp=60, ab1=30, ab2=150, abs=85, pollbk=1, apost=3, aprio=0, p1pf=4, xpf=0, hpfa=0, texec=1, clk=0, dsch=0, rpo=30, rpe=20, vpe=3, wsh=2, w0pf=0, psl=4, pdepth=2, bdist=3, bprio=0, bdma=2, fineb=0, m_nodma=0, m_noexp=0, m_nobar=0, grate=40, odel=2, outf=0, prio=0, wmerge=1, dbgst=0, x_nodma=0, x_nomfma=0, x_nostat=0, x_nords=0, x_nocs=0)

def gen(a):
    SC = " sc1"
    vm = Cnt("vmcnt", 63); lg = Cnt("lgkmcnt", 15)
    ool = Asm()
    def W(x):
        if x: a(x)
    SX, SU0, SU1, SU2, SPG, SPU, SWS, SDBG = 24, 28, 32, 36, 40, 44, 48, 52
    sW, sMG, sNH, sRB, sCGQ, sCGL, sTB, sRL = 56, 57, 58, 59, 60, 61, 62, 63
    sP12, sKX, sK0, sK12, sT0, sT1, sT2, sT3 = 64, 65, 66, 67, 68, 69, 70, 71
    sLX, sLW, sU0, sPF, sXB, sSC0, sP0, sFL = 72, 73, 74, 75, 76, 77, 78, 79
    sCNT = 80
    SWD, SWO, SOUT = 28, 32, 36
    sHD, sQB, sJS, sMT, sNT, sCT, sKH, sAO = 81, 82, 83, 84, 85, 86, 87, 88
    sWQ, sWL, sROT, sTAG, sE0, sE1 = 89, 90, 91, 96, 97, 98
    sR2 = 63
    STP = 92
    STP = 20
    sPFo = 99
    R2MASK = 7 if OPT['rot2'] else 0
    ROTMASK = {1: 0, 2: 4, 4: 6, 8: 7}[OPT['rot']]
    uid = [0]
    def U(): uid[0] += 1; return uid[0]
    nstamp = [0]
    def fstamp(name):
        if OPT["fine"] == 1: stamp(name=name)
    def f2stamp(name):
        if OPT["fine"] == 2: stamp(name=name)
    def f3stamp(name):
        if OPT["fine"] == 3: stamp(name=name)
    def stamp(real=False, name=""):
        if not STAMP: return
        i = nstamp[0]; nstamp[0] += 1
        SNAMES.append(name)
        a("s_memrealtime s[92:93]" if real else "s_memtime s[92:93]")
        a("s_waitcnt lgkmcnt(0)"); lg.q = []
        a(f"v_writelane_b32 v{vSTAMP}, s92, {i}")
        if OPT["clk"] and not real:
            a("s_memrealtime s[92:93]"); a("s_waitcnt lgkmcnt(0)")
            a(f"v_writelane_b32 v{vSTAMP}, s92, {32 + i}")
    def rare(cond, body):
        n = U()
        a.extend(cond)
        a(f"s_cbranch_scc1 R{n}")
        a.label(f"B{n}")
        ool.label(f"R{n}")
        ool("s_nop 7"); ool("s_nop 7")
        ool(body)
        ool("s_nop 7")
        ool(f"s_branch B{n}")
    vL, vX0, vX1, vWq, vW12, vWg = 0, 1, 2, 3, 4, 5
    vXR = [6, 7, 8, 9]; vWR = [10, 11, 12, 13]
    vS = [14, 15]; vQ = [16, 17]; vST = [18, 19]
    SEL = 20; CA = [24, 28, 32]
    FR = 36; NF = 9
    vD, vPOLL, vPO, vSTAMP = 72, 73, 74, 75
    SPARE = 76
    vPUB = 74
    vPF, vJK = 74, 73
    ACC = 80; XF = 128; ACC1 = 40
    def xf(s): return XF + s * 4
    def acc(u): return ACC + u * 16
    SLOT = 40960
    SCR = 3 * SLOT
    L_RS = SCR
    L_CSA = SCR + 1024
    L_CSB = SCR + 2560
    LK = SCR + 4096; LV = LK + 16384; LONE = LV + 16384 + 128
    LDS_TOTAL = 163840
    T = [FR + i for i in range(8)]

    a("s_cmp_ge_u32 s2, 256")
    a("s_cbranch_scc1 L_end")
    a("s_load_dwordx16 s[4:19], s[0:1], 0")
    a("s_load_dwordx4 s[20:23], s[0:1], 64")
    if OPT["codepf"]:
        a(f"""
        s_cmp_ge_u32 s2, {OPT["codepf"]}
        s_cbranch_scc1 L_npf
        s_getpc_b64 s[92:93]
        L_pc:
        s_and_b32 s92, s92, 0xffffff00
        s_and_b32 s93, s93, 0xffff
        s_mov_b32 s94, CODE_BYTES
        s_mov_b32 s95, 0x20000
        v_lshlrev_b32 v{T[0]}, 7, v0
        buffer_load_dword v{vPOLL}, v{T[0]}, s[92:95], 0 offen
        L_npf:
        """)
    a(f"""
    v_lshrrev_b32 v{T[0]}, 6, v0
    v_and_b32 v{vL}, 63, v0
    v_readfirstlane_b32 s{sW}, v{T[0]}
    s_and_b32 s{sT0}, s2, 7
    s_lshr_b32 s{sT1}, s2, 3
    s_and_b32 s{sRB}, s{sT0}, 1
    s_lshl_b32 s{sRB}, s{sRB}, 3
    s_and_b32 s{sRL}, s{sT1}, 7
    s_add_u32 s{sRB}, s{sRB}, s{sRL}
    s_lshr_b32 s{sCGQ}, s{sT0}, 1
    s_lshr_b32 s{sCGL}, s{sT1}, 3
    s_lshl_b32 s{sROT}, s{sCGL}, 1
    s_add_u32 s{sROT}, s{sROT}, s{sRL}
    s_and_b32 s{sROT}, s{sROT}, {ROTMASK}
    s_lshl_b32 s{sLX}, s{sW}, 11
    s_lshl_b32 s{sLW}, s{sW}, 10
    s_lshl_b32 s{sXB}, s{sRB}, 17
    s_mul_i32 s{sT0}, s{sCGQ}, 3
    s_add_u32 s{sT1}, s{sT0}, s{sCGL}
    s_add_u32 s{sT2}, s{sT0}, 12
    s_mov_b32 s{sP0}, s{sT1}
    s_add_u32 s{sT3}, s{sP0}, 12
    s_add_u32 s{sPF}, s{sCGQ}, 24
    s_movk_i32 s{sP12}, 3584
    s_cmp_eq_u32 s{sCGL}, 3
    s_cselect_b32 s{sTB}, 1, 0
    s_cselect_b32 s{sU0}, s{sT2}, s{sT1}
    s_cselect_b32 s{sPF}, s{sPF}, s{sT3}
    s_cselect_b32 s{sP12}, 3072, s{sP12}
    """)
    if STAMP: a(f"v_mov_b32 v{vSTAMP}, 0")
    a(f"""
    v_lshrrev_b32 v{T[0]}, 3, v{vL}
    v_and_b32 v{T[1]}, 7, v{vL}
    v_lshrrev_b32 v{T[2]}, 4, v{vL}
    v_xor_b32 v{T[3]}, v{T[1]}, v{T[2]}
    s_lshl_b32 s{sT0}, s{sW}, 4
    v_add_u32 v{T[4]}, s{sT0}, v{T[0]}
    v_lshlrev_b32 v{T[4]}, 10, v{T[4]}
    v_lshl_add_u32 v{vX0}, v{T[3]}, 4, v{T[4]}
    v_xor_b32 v{vX1}, 64, v{vX0}
    v_add_u32 v{vX1}, 0x2000, v{vX1}
    s_lshl_b32 s{sT0}, s{sW}, 3
    v_add_u32 v{T[4]}, s{sT0}, v{T[0]}
    v_and_b32 v{T[2]}, 1, v{T[2]}
    v_lshlrev_b32 v{T[2]}, 2, v{T[2]}
    v_xor_b32 v{T[5]}, v{T[1]}, v{T[2]}
    v_lshlrev_b32 v{T[5]}, 4, v{T[5]}
    v_mul_u32_u24 v{vWq}, 3072, v{T[4]}
    v_add_u32 v{vWq}, v{vWq}, v{T[5]}
    v_mul_u32_u24 v{vWg}, 3584, v{T[4]}
    v_add_u32 v{vWg}, v{vWg}, v{T[5]}
    v_mul_u32_u24 v{vW12}, s{sP12}, v{T[4]}
    v_add_u32 v{vW12}, v{vW12}, v{T[5]}
    s_lshl_b32 s{sP12}, s{sP12}, 6
    s_mov_b32 s{SX+2}, {2048*1024}
    s_mov_b32 s{SX+3}, 0x20000
    s_mov_b32 s{SU0+3}, 0x20000
    s_mov_b32 s{SU1+3}, 0x20000
    s_mov_b32 s{SU2+3}, 0x20000
    s_waitcnt lgkmcnt(0)
    """)
    stamp(); stamp(True)
    QSZ, GSZ = 512 * 3072, 512 * 3584
    a(f"""
    s_mov_b32 s{SX}, s4
    s_and_b32 s{SX+1}, s5, 0xffff
    s_lshl_b32 s{sT0}, s{sU0}, 7
    s_add_u32 s{SU0}, s6, s{sT0}
    s_addc_u32 s{SU0+1}, s7, 0
    s_and_b32 s{SU0+1}, s{SU0+1}, 0xffff
    s_sub_u32 s{SU0+2}, {QSZ}, s{sT0}
    """)
    for k, (S, plo) in enumerate(((SU1, 12), (SU2, 14))):
        a(f"""
        s_lshl_b32 s{sT0}, s{sP0}, 7
        s_add_u32 s{sT1}, s{sU0}, {k+1}
        s_lshl_b32 s{sT1}, s{sT1}, 7
        s_mov_b32 s{S+2}, {GSZ}
        s_cmp_eq_u32 s{sTB}, 1
        s_cselect_b32 s{sT0}, s{sT1}, s{sT0}
        s_cselect_b32 s{S}, s6, s{plo}
        s_cselect_b32 s{S+1}, s7, s{plo+1}
        s_cselect_b32 s{S+2}, {QSZ}, s{S+2}
        s_add_u32 s{S}, s{S}, s{sT0}
        s_addc_u32 s{S+1}, s{S+1}, 0
        s_and_b32 s{S+1}, s{S+1}, 0xffff
        s_sub_u32 s{S+2}, s{S+2}, s{sT0}
        """)
    def dma_p0(t):
        sl = (t % 3) * SLOT
        pre = [f"s_add_u32 s{sT3}, s{sROT}, {t}", f"s_and_b32 s{sT3}, s{sT3}, 7", f"s_lshl_b32 s{sKX}, s{sT3}, 7",
               f"s_add_u32 s{sKX}, s{sKX}, s{sXB}", f"s_mul_i32 s{sK0}, s{sT3}, {64*3072}", f"s_mul_i32 s{sK12}, s{sP12}, s{sT3}"]
        if OPT["rot"] == 1:
            pre = [f"s_add_u32 s{sKX}, s{sXB}, {t*128}", f"s_mov_b32 s{sK0}, {t*64*3072}", f"s_mul_i32 s{sK12}, s{sP12}, {t}"]
        g = [(pre + [f"s_add_u32 m0, s{sLX}, {sl}"], f"buffer_load_dwordx4 v{vX0}, {sr(SX)}, s{sKX} offen lds"),
             ([f"s_add_u32 m0, s{sLX}, {sl+1024}"], f"buffer_load_dwordx4 v{vX1}, {sr(SX)}, s{sKX} offen lds"),
             ([f"s_add_u32 m0, s{sLW}, {sl+16384}"], f"buffer_load_dwordx4 v{vWq}, {sr(SU0)}, s{sK0} offen lds"),
             ([f"s_add_u32 m0, s{sLW}, {sl+24576}"], f"buffer_load_dwordx4 v{vW12}, {sr(SU1)}, s{sK12} offen lds"),
             ([f"s_add_u32 m0, s{sLW}, {sl+32768}"], f"buffer_load_dwordx4 v{vW12}, {sr(SU2)}, s{sK12} offen lds")]
        return g, ("st", t)
    def dma_p1(Tq):
        sl = ((8 + Tq) % 3) * SLOT
        g = []
        for c2 in range(2):
            sk = sK0 if c2 == 0 else sK12
            pre = [f"s_add_u32 s{sT3}, s{sROT}, {2*Tq+c2}", f"s_and_b32 s{sT3}, s{sT3}, 7", f"s_mul_i32 s{sk}, s{sT3}, {64*3584}"]
            if OPT["rot"] == 1: pre = [f"s_mov_b32 s{sk}, {(2*Tq+c2)*64*3584}"]
            g += [(pre + [f"s_add_u32 m0, s{sLW}, {sl+c2*16384}"], f"buffer_load_dwordx4 v{vWg}, {sr(SPG)}, s{sk} offen lds"),
                  ([f"s_add_u32 m0, s{sLW}, {sl+c2*16384+8192}"], f"buffer_load_dwordx4 v{vWg}, {sr(SPU)}, s{sk} offen lds")]
        return g, ("st", 8 + Tq)
    def emit_dma(d):
        g, tag = d
        for pre, ld in g:
            a.extend(pre); a(ld); vm.issue(tag)
    emit_dma(dma_p0(0))
    if OPT["start"] == 0: emit_dma(dma_p0(1))
    for S, plo in ((SPG, 12), (SPU, 14)):
        a(f"""
        s_lshl_b32 s{sT0}, s{sPF}, 7
        s_add_u32 s{S}, s{plo}, s{sT0}
        s_addc_u32 s{S+1}, s{plo+1}, 0
        s_and_b32 s{S+1}, s{S+1}, 0xffff
        s_sub_u32 s{S+2}, {GSZ}, s{sT0}
        s_mov_b32 s{S+3}, 0x20000
        """)
    a(f"""
    s_mov_b32 s{SWS}, s22
    s_and_b32 s{SWS+1}, s23, 0xffff
    s_mov_b32 s{SWS+2}, {WS_END}
    s_mov_b32 s{SWS+3}, 0x20000
    s_mov_b32 s{SDBG}, s20
    s_and_b32 s{SDBG+1}, s21, 0xffff
    s_movk_i32 s{SDBG+2}, 256
    s_mov_b32 s{SDBG+3}, 0x20000
    s_lshr_b32 s{sMG}, s{sW}, 1
    s_and_b32 s{sNH}, s{sW}, 1
    """)
    rare([f"s_or_b32 s{sT0}, s2, s{sW}", f"s_cmp_eq_u32 s{sT0}, 0"], f"""
    s_memrealtime s[92:93]
    s_waitcnt lgkmcnt(0)
    s_or_b32 s92, s92, 1
    v_mov_b32 v{T[0]}, s92
    s_mov_b64 exec, 1
    buffer_store_dword v{T[0]}, off, {sr(SDBG)}, 0{SC}
    s_mov_b64 exec, -1
    """)
    a(f"""
    s_and_b32 s{sT0}, s{sMG}, 1
    s_lshl_b32 s{sT0}, s{sT0}, 1
    s_lshr_b32 s{sT1}, s{sMG}, 1
    s_xor_b32 s{sT1}, s{sT1}, s{sNH}
    s_add_u32 s{sT0}, s{sT0}, s{sT1}
    v_and_b32 v{T[0]}, 31, v{vL}
    v_lshrrev_b32 v{T[1]}, 5, v{vL}
    v_bfe_u32 v{T[2]}, v{vL}, 1, 3
    v_xor_b32 v{T[2]}, v{T[2]}, v{T[1]}
    v_lshlrev_b32 v{T[2]}, 4, v{T[2]}
    v_lshl_add_u32 v{T[2]}, v{T[0]}, 7, v{T[2]}
    s_lshl_b32 s{sT1}, s{sMG}, 12
    v_add_u32 v{T[2]}, s{sT1}, v{T[2]}
    s_lshl_b32 s{sT1}, s{sT0}, 5
    v_xor_b32 v{vXR[0]}, s{sT1}, v{T[2]}
    v_xor_b32 v{vXR[1]}, 32, v{vXR[0]}
    v_xor_b32 v{vXR[2]}, 64, v{vXR[0]}
    v_xor_b32 v{vXR[3]}, 0x60, v{vXR[0]}
    """)
    a(f"""
    v_bfe_u32 v{T[2]}, v{vL}, 2, 2
    v_lshl_add_u32 v{T[3]}, v{T[1]}, 3, v{T[2]}
    v_lshlrev_b32 v{T[3]}, 7, v{T[3]}
    v_lshrrev_b32 v{T[2]}, 1, v{T[2]}
    v_xor_b32 v{T[2]}, s{sNH}, v{T[2]}
    v_lshl_add_u32 v{T[3]}, v{T[2]}, 6, v{T[3]}
    v_bfe_u32 v{T[2]}, v{vL}, 4, 1
    v_lshl_add_u32 v{T[3]}, v{T[2]}, 5, v{T[3]}
    v_and_b32 v{T[2]}, 3, v{vL}
    v_lshl_add_u32 v{T[3]}, v{T[2]}, 3, v{T[3]}
    s_lshl_b32 s{sT1}, s{sT0}, 11
    v_xor_b32 v{vWR[0]}, s{sT1}, v{T[3]}
    v_xor_b32 v{vWR[1]}, 0x800, v{vWR[0]}
    v_xor_b32 v{vWR[2]}, 0x1000, v{vWR[0]}
    v_xor_b32 v{vWR[3]}, 0x1800, v{vWR[0]}
    v_lshlrev_b32 v{vD}, 4, v{vL}
    """)
    a(f"""
    v_lshrrev_b32 v{T[2]}, 4, v{vL}
    v_xor_b32 v{T[2]}, v{T[2]}, v{vL}
    v_and_b32 v{T[2]}, 1, v{T[2]}
    v_cmp_eq_u32 vcc, 0, v{T[2]}
    v_mov_b32 v{T[3]}, 0x3f803f80
    v_cndmask_b32 v{SEL}, 0, v{T[3]}, vcc
    v_mov_b32 v{SEL+1}, v{SEL}
    v_mov_b32 v{SEL+2}, v{SEL}
    v_mov_b32 v{SEL+3}, v{SEL}
    v_mov_b32 v{T[4]}, v{T[3]}
    v_mov_b32 v{T[5]}, v{T[3]}
    v_mov_b32 v{T[6]}, v{T[3]}
    v_mov_b32 v{T[7]}, v{T[3]}
    v_add_u32 v{T[0]}, {LONE}, v{vD}
    ds_write_b128 v{T[0]}, {vr(T[4])}
    """)
    for r in vS + vQ: a(f"v_mov_b32 v{r}, 0")
    lg.issue("misc", 1)
    if OPT["start"] == 0: emit_dma(dma_p0(2))
    elif OPT["start"] in (1, 3): emit_dma(dma_p0(1))
    def lds(lst):
        for ins, tag in lst: a(ins); lg.issue(tag)
    def run_slots(mfs, reads=(), valu=(), dmas=None, rstart=0, rper=2.0, vper=2, fill=None, fper=0):
        ri = vi = 0
        for k, (tags, ins) in enumerate(mfs):
            for tg in tags: W(lg.wait(tg))
            a(ins)
            if dmas and k in dmas: a.extend(dmas[k][0])
            for _ in range(vper):
                if vi < len(valu): a(valu[vi]); vi += 1
            if k >= rstart:
                lim = int(rper * (k - rstart + 1) + 0.999)
                while ri < len(reads) and ri < lim and reads[ri][2] <= k:
                    a(reads[ri][0]); lg.issue(reads[ri][1]); ri += 1
            if fill is not None:
                n = 0
                while fill and n < fper:
                    if fill[0][0] == 'at':
                        if cur["step"] < fill[0][1]: break
                        fill.pop(0); continue
                    n += do_fill(fill.pop(0))
            if dmas and k in dmas: a(dmas[k][1]); vm.issue(dmas[k][2])
        while vi < len(valu): a(valu[vi]); vi += 1
        while ri < len(reads): a(reads[ri][0]); lg.issue(reads[ri][1]); ri += 1
    cur = {"step": None}
    def do_fill(it):
        kind = it[0]
        if cur["step"] is not None and kind in "vl":
            for t_, r_ in Ins(it[1]).wr:
                if t_ == 'v' and r_ >= XF: assert (r_ - XF) // 4 < cur["step"], (it, cur)
        if kind == 'v': a(it[1]); return 2 if it[1].startswith(("v_exp", "v_rcp")) else 1
        if kind == 's': a(it[1]); return 0.5
        if kind == 'm': a(it[1]); vm.issue(it[2]); return 1
        if kind == 'l': a(it[1]); lg.issue(it[2]); return 0.5
        if kind == 'w': W(lg.wait(it[1])); return 0.5
        if kind == 'gap': return it[1]
        raise ValueError
    def F(text, tag=None):
        out = []
        lines = [l.strip() for l in text.strip().split("\n") if l.strip()]
        i = 0
        while i < len(lines):
            l = lines[i]
            if l.startswith("s_cmp"):
                out.append(('s', l + "\n" + lines[i + 1])); i += 2; continue
            if l.startswith("WAIT"): out.append(('w', l.split()[1]))
            elif l.startswith("ds_"):
                body, tg = l.split(" @"); out.append(('l', body, tg))
            elif l.startswith("s_"): out.append(('s', l))
            else: out.append(('v', l))
            i += 1
        return out
    def slot_adv(t_next, regs):
        d = SLOT if (t_next % 3) else -2 * SLOT
        return [f"v_add_u32 v{r}, {d & 0xffffffff}, v{r}" for r in regs]
    MF32 = "v_mfma_f32_32x32x16_bf16"; MF16 = "v_mfma_f32_16x16x32_bf16"

    a(f"""
    v_and_b32 v{vPO}, 3, v{vL}
    v_lshlrev_b32 v{vPO}, 7, v{vPO}
    s_lshr_b32 s{sPFo}, s2, 3
    s_lshl_b32 s{sPFo}, s{sPFo}, 3
    s_add_u32 s{sPFo}, s{sPFo}, s{sW}
    s_lshl_b32 s{sPFo}, s{sPFo}, 10
    s_and_b32 s{sT0}, s2, 1
    s_lshl_b32 s{sT0}, s{sT0}, 9
    s_add_u32 s{sPFo}, s{sPFo}, s{sT0}
    v_add_u32 v{vPF}, s{sPFo}, v{vPO}
    s_mov_b32 s{STP}, s8
    s_and_b32 s{STP+1}, s9, 0xffff
    s_mov_b32 s{STP+2}, {512*1024}
    s_mov_b32 s{STP+3}, 0x20000
    """)
    def wtouch(k):
        pre = []
        if k == 2: pre = [f"s_mov_b32 s{STP}, s16", f"s_and_b32 s{STP+1}, s17, 0xffff", f"s_mov_b32 s{STP+2}, {1792*1024}"]
        kk = k if k < 2 else k - 2
        pre += [f"s_mov_b32 m0, {LONE + 1280}", f"s_mov_b32 s{sPFo}, {kk << 18}"]
        a.extend(pre)
        if OPT["texec"]: a("s_mov_b64 exec, 15")
        a(f"buffer_load_dword v{vPF}, {sr(STP)}, s{sPFo} offen lds"); vm.issue("wpf")
        if OPT["texec"]: a("s_mov_b64 exec, -1")
    L_P = SCR; L_T = SCR + 3072; L_RS = LK + 8192
    def xaddr(cw, pr, tw, tr, sa, sb):
        return f"""
        v_lshrrev_b32 v{cw}, 4, v{vL}
        v_lshlrev_b32 v{cw}, 4, v{cw}
        v_and_b32 v{pr}, 1, v{vL}
        v_lshl_add_u32 v{cw}, v{pr}, 6, v{cw}
        s_lshl_b32 s{sa}, s{sNH}, 2
        s_add_u32 s{sa}, s{sa}, s{sMG}
        s_mul_i32 s{sa}, s{sa}, 384
        s_add_u32 s{sa}, s{sa}, {L_P}
        v_add_u32 v{cw}, s{sa}, v{cw}
        v_min_u32 v{pr}, 47, v{vL}
        v_lshlrev_b32 v{pr}, 3, v{pr}
        s_mul_i32 s{sa}, s{sNH}, 384
        s_add_u32 s{sa}, s{sa}, {L_T}
        v_add_u32 v{tw}, s{sa}, v{pr}
        s_mul_i32 s{sb}, s{sNH}, {4*384}
        s_add_u32 s{sb}, s{sb}, {L_P}
        v_add_u32 v{pr}, s{sb}, v{pr}
        v_lshrrev_b32 v{tr}, 5, v{vL}
        v_lshlrev_b32 v{tr}, 4, v{tr}
        v_add_u32 v{tr}, s{sa}, v{tr}
        """
    XA0 = [SPARE, SPARE + 1, SPARE + 2, SPARE + 3]
    a(xaddr(*XA0, sT0, sT1))
    def x_reduce(XA, tmp, extra=""):
        cw, pr, tw, tr = XA
        return F("\n".join(f"ds_read_b64 {vr(tmp+2*m,2)}, v{pr} offset:{m*384} @cp" for m in range(4)) + "\n" + extra) + [('gap', 5)] + F(f"""
        WAIT cp
        v_add_f32 v{tmp}, v{tmp}, v{tmp+2}
        v_add_f32 v{tmp+1}, v{tmp+1}, v{tmp+3}
        v_add_f32 v{tmp+4}, v{tmp+4}, v{tmp+6}
        v_add_f32 v{tmp+5}, v{tmp+5}, v{tmp+7}
        v_add_f32 v{tmp}, v{tmp}, v{tmp+4}
        v_add_f32 v{tmp+1}, v{tmp+1}, v{tmp+5}
        ds_write_b64 v{tw}, {vr(tmp,2)} @ct
        """)
    vNM, vVE, vA_, vC1, vC2 = vS[0], vQ[0], vS[1], vQ[1], vST[0]
    def fslot(n): return FR + (n % NF) * 4
    def rd_x(s): return [(f"ds_read_b128 {vr(xf(s))}, v{vXR[s & 3]}", ("x", s))]
    def rd_w0(s, u):
        f = fslot(3 * s + u)
        return [(f"ds_read_b64_tr_b16 {vr(f+2*hh, 2)}, v{vWR[s & 3]} offset:{16384+u*8192+hh*512}", ("w", s, u)) for hh in range(2)]
    def stat_ops(s):
        o = []
        for j in range(4):
            x = xf(s) + j
            o += [f"v_lshlrev_b32 v{vST[0]}, 16, v{x}", f"v_and_b32 v{vST[1]}, 0xffff0000, v{x}",
                  f"v_add_f32 v{vS[0]}, v{vS[0]}, v{vST[0]}", f"v_add_f32 v{vS[1]}, v{vS[1]}, v{vST[1]}",
                  f"v_fmac_f32 v{vQ[0]}, v{vST[0]}, v{vST[0]}", f"v_fmac_f32 v{vQ[1]}, v{vST[1]}, v{vST[1]}"]
        return o
    if OPT["prio"]:
        a(f"s_cmp_{'ge' if OPT['prio'] == 1 else 'lt'}_u32 s{sW}, 4")
        a("s_cbranch_scc0 L_np")
        a("s_setprio 1")
        a.label("L_np")
    stamp(name="setup")
    W(vm.wait(("st", 0)))
    if OPT["start"] == 2: emit_dma(dma_p0(1))
    if OPT["start"] in (1, 2): emit_dma(dma_p0(2))
    a(lg.drain())
    a("s_barrier")
    stamp(name="wait st0")
    a.label("X_begin")
    for s in range(2):
        lds(rd_x(s))
        for u in range(3): lds(rd_w0(s, u))
    pend = []
    WTH = [[3, 5, 7, 9, 11, 13, 15], [5, 6, 7, 9, 11, 13, 15], [6, 7, 8, 9, 10, 11, 13]][OPT['wsh']]
    for h in range(16):
        t = h >> 1; odd = h & 1
        valu = []
        if odd:
            if t < 7: valu = slot_adv(t + 1, [vXR[0], vWR[0], vXR[1], vWR[1], vXR[2], vWR[2], vXR[3], vWR[3]])
            else: valu = slot_adv(t + 1, vWR)
            g, tag = dma_p0(t + 3) if t + 3 < 8 else dma_p1(t + 3 - 8)
            pend = [(pre, ld, tag) for pre, ld in g]
        if h < 15: valu += stat_ops(2 * h)
        if h == 14: valu += stat_ops(30)
        dm = {}
        if h == 0 and OPT["start"] == 3:
            g, tag = dma_p0(2); dm = dict(zip([0, 2, 4, 6, 8], [(pre, ld, tag) for pre, ld in g]))
        if h == 0 and OPT["start"] == 4:
            g, tag = dma_p0(1); g2, tag2 = dma_p0(2)
            lst = [(pre, ld, tag) for pre, ld in g] + [(pre, ld, tag2) for pre, ld in g2[:4]]
            dm = dict(zip(range(9), lst)); late4 = (g2[4], tag2)
        if h >= 1:
            if OPT["dsch"] == 0:
                if odd and h < 15: now = pend[:3]; pend = pend[3:]; sl_ = [0, 2, 4]
                elif odd: now = pend; pend = []; sl_ = [0, 2, 3, 5]
                else: now = pend; pend = []; sl_ = [1, 5]
            elif OPT["dsch"] == 1:
                if odd: now = pend; pend = []; sl_ = [0, 1, 2, 3, 4]
                else: now = []; sl_ = []
            else:
                if odd and h < 15: now = pend[:2]; pend = pend[2:]; sl_ = [1, 4]
                elif odd: now = pend; pend = []; sl_ = [0, 2, 3, 5]
                else: now = pend; pend = []; sl_ = [0, 3, 6]
            dm = dict(zip(sl_, now))

        mfs = []
        for ss in range(2):
            s = 2 * h + ss
            for u in range(3):
                tags = ([("x", s)] if u == 0 else []) + [("w", s, u)]
                if OPT["wmerge"]: tags = [("w", s, 2)] if u == 0 else []
                mfs.append((tags, f"{MF32} {vr(acc(u),16)}, {vr(fslot(3*s+u))}, {vr(xf(s))}, {vr(acc(u),16) if s else 0}"))
                if (s & 3) == 0:
                    mfs.append(([], f"{MF16} {vr(CA[u])}, {vr(fslot(3*s+u))}, {vr(SEL)}, {vr(CA[u]) if s else 0}"))
        free = {}
        idx = 0
        for ss in range(2):
            for u in range(3):
                idx += 2 if ((2 * h + ss) & 3) == 0 else 1
                free[(ss, u)] = idx - 1
        reads = []
        if h + 1 < 16:
            s0 = 2 * h + 2
            reads += [(i_, tg, 0) for i_, tg in rd_x(s0)]
            for u in range(3): reads += [(i_, tg, 0) for i_, tg in rd_w0(s0, u)]
            reads += [(i_, tg, 0) for i_, tg in rd_x(s0 + 1)]
            for u in range(3): reads += [(i_, tg, free[(0, u)]) for i_, tg in rd_w0(s0 + 1, u)]
        if h == 7:
            a(f"buffer_load_dword v{vPOLL}, off, {sr(SDBG)}, 0"); vm.issue("nonce")
        if OPT["wpf"] and h in WTH: wtouch(WTH.index(h))
        if OPT["xpf"] and h == OPT["xpf"] - 1:
            a(f"""
            s_lshl_b32 s{sE0}, s{sCGL}, 3
            s_add_u32 s{sE0}, s{sE0}, s{sW}
            s_lshl_b32 s{sE0}, s{sE0}, 12
            s_add_u32 s{sE0}, s{sE0}, s{sXB}
            v_bfe_u32 v{vPOLL}, v{vL}, 2, 2
            v_lshlrev_b32 v{vPOLL}, 10, v{vPOLL}
            v_and_b32 v{vST[0]}, 3, v{vL}
            v_lshl_add_u32 v{vPOLL}, v{vST[0]}, 7, v{vPOLL}
            s_mov_b32 m0, {LONE + 1280 - 512}
            s_nop 0
            buffer_load_dword v{vPOLL}, {sr(SX)}, s{sE0} offen offset:512 lds
            """)
            vm.issue("wpf", 1)
        if OPT["w0pf"] and h == OPT["w0pf"] - 1:
            a(f"""
            s_lshl_b32 s{sE0}, s{sRL}, 3
            s_add_u32 s{sE0}, s{sE0}, s{sW}
            s_lshl_b32 s{sE0}, s{sE0}, 2
            s_add_u32 s{sE0}, s{sE0}, 256
            v_and_b32 v{vST[0]}, 3, v{vL}
            v_add_u32 v{vST[0]}, s{sE0}, v{vST[0]}
            v_mul_u32_u24 v{vPOLL}, 3072, v{vST[0]}
            s_lshr_b32 s{sE1}, s{sP12}, 6
            v_mul_u32_u24 v{vST[0]}, s{sE1}, v{vST[0]}
            s_mov_b32 m0, {LONE + 1280}
            s_nop 0
            buffer_load_dword v{vPOLL}, {sr(SU0)}, 0 offen lds
            buffer_load_dword v{vST[0]}, {sr(SU1)}, 0 offen lds
            buffer_load_dword v{vST[0]}, {sr(SU2)}, 0 offen lds
            """)
            vm.issue("wpf", 3)
        if OPT["p1pf"] and h == OPT["p1pf"]:
            a(f"""
            s_lshl_b32 s{sE0}, s{sRL}, 3
            s_add_u32 s{sE0}, s{sE0}, s{sW}
            s_mul_i32 s{sE0}, s{sE0}, {8*3584}
            v_and_b32 v{vPOLL}, 7, v{vL}
            v_mul_u32_u24 v{vPOLL}, 3584, v{vPOLL}
            s_mov_b32 m0, {LONE + 1280}
            {"s_mov_b64 exec, 0xff" if OPT["texec"] else "s_nop 0"}
            buffer_load_dword v{vPOLL}, {sr(SPG)}, s{sE0} offen lds
            buffer_load_dword v{vPOLL}, {sr(SPU)}, s{sE0} offen lds
            s_mov_b64 exec, -1
            """)
            vm.issue("wpf", 2)
        fl = None
        if h == 14:
            mfs[4] = (mfs[4][0] + [("x", 30)], mfs[4][1])
        if h == 15:
            TR = fslot(3 * 29)
            assert fslot(3*29+1) == TR + 4
            fl = x_reduce(XA0, TR, f"ds_read_b64 v[{vQ[0]}:{vQ[1]}], v{vX0} @cp") + F(f"""
            v_add_f32 v{vS[0]}, v{vS[0]}, v{vQ[0]}
            v_add_f32 v{vS[1]}, v{vS[1]}, v{vQ[1]}
            v_mul_f32 v{vNM}, {hx(-1.0/512)}, v{vS[0]}
            v_mul_f32 v{vQ[1]}, v{vNM}, v{vNM}
            v_mov_b32 v{vST[1]}, {hx(1.0/512)}
            v_fma_f32 v{vVE}, v{vS[1]}, v{vST[1]}, -v{vQ[1]}
            v_max_f32 v{vVE}, 0, v{vVE}
            v_add_f32 v{vVE}, {hx(1e-5)}, v{vVE}
            v_rsq_f32 v{vA_}, v{vVE}
            v_mul_f32 v{vC1}, {hx(GK1)}, v{vA_}
            v_mul_f32 v{vC2}, v{vA_}, v{vA_}
            v_mul_f32 v{vC2}, v{vC2}, v{vA_}
            v_mul_f32 v{vC2}, {hx(GK2)}, v{vC2}
            v_and_b32 v{vX0}, 31, v{vL}
            v_lshrrev_b32 v{vX1}, 5, v{vL}
            v_lshlrev_b32 v{vX1}, 4, v{vX1}
            v_lshl_add_u32 v{vX0}, v{vX0}, 5, v{vX1}
            s_lshl_b32 s{sT0}, s{sRB}, 12
            s_lshl_b32 s{sT1}, s{sMG}, 10
            s_add_u32 s{sT0}, s{sT0}, s{sT1}
            v_add_u32 v{vX0}, s{sT0}, v{vX0}
            """)
        run_slots(mfs, reads, valu, dm, rstart=0, rper=(OPT['rpo']/10 if odd else OPT['rpe']/10), vper=(6 if (odd or h == 14) else OPT['vpe']), fill=fl, fper=6)
        while fl: do_fill(fl.pop(0))
        if h == 14:
            a(f"""
            v_add_f32 v{vS[0]}, v{vS[0]}, v{vS[1]}
            v_add_f32 v{vQ[0]}, v{vQ[0]}, v{vQ[1]}
            v_mov_b32 v{vS[1]}, v{vS[0]}
            v_mov_b32 v{vQ[1]}, v{vQ[0]}
            v_and_b32 v{vX0}, 31, v{vL}
            v_lshlrev_b32 v{vX0}, 3, v{vX0}
            v_permlane32_swap_b32 v{vS[0]}, v{vS[1]}
            v_permlane32_swap_b32 v{vQ[0]}, v{vQ[1]}
            s_lshl_b32 s{sT0}, s{sW}, 8
            s_add_u32 s{sT0}, s{sT0}, {L_RS}
            v_add_u32 v{vX0}, s{sT0}, v{vX0}
            v_add_f32 v{vS[0]}, v{vS[0]}, v{vS[1]}
            v_add_f32 v{vS[1]}, v{vQ[0]}, v{vQ[1]}
            ds_write_b128 v{XA0[0]}, {vr(CA[0])}
            ds_write_b128 v{XA0[0]}, {vr(CA[1])} offset:128
            ds_write_b128 v{XA0[0]}, {vr(CA[2])} offset:256
            ds_write_b64 v{vX0}, v[{vS[0]}:{vS[1]}]
            v_xor_b32 v{vX0}, 0x100, v{vX0}
            """)
            lg.issue("misc", 4)
        if h == 0 and OPT["start"] == 4:
            a.extend(late4[0][0]); a(late4[0][1]); vm.issue(late4[1])
        if not odd:
            if OPT["fine"] == 4: stamp(name=f"p0 mm{t}")
            a(lg.drain())
            W(vm.wait(("st", t + 1)))
            if OPT["fine"] == 4: stamp(name=f"p0 vm{t}")
            a("s_barrier")
            if OPT["fine"] == 4: stamp(name=f"p0 bar{t}")
    a.label("X_end")
    stamp(name="pass0")
    fillS = F(f"""
    s_lshl_b32 s{sFL}, s{sRB}, 4
    s_lshl_b32 s{sT1}, s{sCGQ}, 2
    s_add_u32 s{sT1}, s{sT1}, s{sCGL}
    s_add_u32 s{sFL}, s{sFL}, s{sT1}
    s_lshr_b32 s{sQB}, s{sRB}, 1
    s_and_b32 s{sHD}, s{sFL}, 31
    s_lshl_b32 s{sMT}, s{sCGQ}, 3
    s_add_u32 s{sMT}, s{sMT}, s{sRL}
    s_and_b32 s{sNT}, s2, 1
    s_lshl_b32 s{sNT}, s{sNT}, 2
    s_add_u32 s{sNT}, s{sNT}, s{sCGL}
    s_and_b32 s{sCT}, s{sW}, 3
    s_lshr_b32 s{sKH}, s{sW}, 2
    s_lshl_b32 s{sJS}, s{sCT}, 1
    s_sub_u32 s{sJS}, 8, s{sJS}
    s_cmp_eq_u32 s{sQB}, 0
    s_cselect_b32 s{sJS}, s{sJS}, 0
    """)
    E = 40
    vQA = vX0
    W(vm.wait("nonce"))
    a(f"v_readfirstlane_b32 s{sTAG}, v{vPOLL}")
    rare([f"s_cmp_eq_u32 s{sTAG}, 0"], f"""
    s_mov_b32 s{sCNT}, 0
    L_nc:
    s_sleep 2
    buffer_load_dword v{vPOLL}, off, {sr(SDBG)}, 0{SC}
    s_waitcnt vmcnt(0)
    v_readfirstlane_b32 s{sTAG}, v{vPOLL}
    s_add_u32 s{sCNT}, s{sCNT}, 1
    s_cmp_gt_u32 s{sCNT}, 0x8000
    s_cbranch_scc1 L_nd
    s_cmp_eq_u32 s{sTAG}, 0
    s_cbranch_scc1 L_nc
    L_nd:
    """)
    def cs_fold(nu, accf, tmp, tr):
        def rd(u):
            for q in range(4):
                a(f"ds_read_b128 {vr(tmp+16*(u&1)+4*q)}, v{tr} offset:{u*128+q*32}"); lg.issue(("cf", u))
        rd(0); rd(1)
        for u in range(nu):
            W(lg.wait(("cf", u)))
            for r in range(16): a(f"v_fmac_f32 v{accf(u)+r}, v{vNM}, v{tmp+16*(u&1)+r}")
            if u + 2 < nu: rd(u + 2)
    cs_fold(3, acc, E, XA0[3])
    stamp(name="E0 serial")
    def f_qkv(x, uadd, tmp, tag):
        o = [('s', f"s_add_u32 s{sE0}, s{sU0}, {uadd}"), ('s', f"s_cmp_lt_u32 s{sE0}, 8\ns_cselect_b32 s{sSC0}, {hx(QSCALE)}, 1.0"),
             ('s', f"s_lshl_b32 s{sE0}, s{sE0}, 2"), ('s', f"s_lshl_b32 s{sE1}, s{sNH}, 1"), ('s', f"s_add_u32 s{sE0}, s{sE0}, s{sE1}"),
             ('s', f"s_lshl_b32 s{sE0}, s{sE0}, 16"), ('s', f"s_add_u32 s{sE0}, s{sE0}, {WS_QKV}"), ('s', f"s_add_u32 s{sE1}, s{sE0}, 0x10000"),
             ('v', f"v_mul_f32 v{tmp+8}, s{sSC0}, v{vA_}")]
        for e in range(2):
            for r in range(8): o.append(('v', f"v_mul_f32 v{x+8*e+r}, v{tmp+8}, v{x+8*e+r}"))
            for r in range(4): o.append(('v', f"v_cvt_pk_bf16_f32 v{tmp+4*e+r}, v{x+8*e+2*r}, v{x+8*e+2*r+1}"))
            o.append(('m', f"buffer_store_dwordx4 {vr(tmp+4*e)}, v{vQA}, {sr(SWS)}, s{sE0 if e == 0 else sE1} offen{SC}", tag))
        return o
    def f_h(g, u, spair, tmp, tag):
        o = [('s', f"s_lshl_b32 s{sE0}, s{spair}, 1"), ('s', f"s_add_u32 s{sE0}, s{sE0}, s{sNH}"), ('s', f"s_lshl_b32 s{sE0}, s{sE0}, 7"),
             ('s', f"s_lshl_b32 s{sE1}, s{sRB}, 2"), ('s', f"s_add_u32 s{sE0}, s{sE0}, s{sE1}"),
             ('s', f"s_add_u32 s{sE0}, s{sE0}, s{sMG}"), ('s', f"s_lshl_b32 s{sE0}, s{sE0}, 10"), ('s', f"s_add_u32 s{sE1}, s{sE0}, 0x10000")]
        t = tmp + 8
        for e in range(2):
            for q in range(2):
                G_, U_ = g + 8 * e + 4 * q, u + 8 * e + 4 * q
                for r in range(4): o.append(('v', f"v_mul_f32 v{t+r}, v{G_+r}, v{G_+r}"))
                for r in range(4): o.append(('v', f"v_fma_f32 v{t+r}, v{t+r}, v{vC2}, v{vC1}"))
                for r in range(4): o.append(('v', f"v_mul_f32 v{t+r}, v{t+r}, v{G_+r}"))
                for r in range(4): o.append(('v', f"v_exp_f32 v{t+r}, v{t+r}"))
                for r in range(4): o.append(('v', f"v_mul_f32 v{G_+r}, v{G_+r}, v{U_+r}"))
                for r in range(4): o.append(('v', f"v_fma_f32 v{t+r}, v{t+r}, v{vVE}, v{vVE}"))
                for r in range(4): o.append(('v', f"v_rcp_f32 v{t+r}, v{t+r}"))
                for r in range(4): o.append(('v', f"v_mul_f32 v{G_+r}, v{G_+r}, v{t+r}"))
                o.append(('v', f"v_cvt_pk_bf16_f32 v{tmp+4*e+2*q}, v{G_}, v{G_+1}"))
                o.append(('v', f"v_cvt_pk_bf16_f32 v{tmp+4*e+2*q+1}, v{G_+2}, v{G_+3}"))
            o.append(('m', f"buffer_store_dwordx4 {vr(tmp+4*e)}, v{vD}, {sr(SWS)}, s{sE0 if e == 0 else sE1} offen{SC}", tag))
        return o
    vWS, vWS2 = vWq, vX1
    sRE, sRLt, sB6, sB8 = sR2, sWQ, sWL, sCGQ
    fillS += F(f"""
    v_and_b32 v{vWS2}, 7, v{vL}
    v_bfe_u32 v{vST[1]}, v{vL}, 4, 1
    v_lshlrev_b32 v{vST[1]}, 2, v{vST[1]}
    v_xor_b32 v{vWS2}, v{vWS2}, v{vST[1]}
    v_lshlrev_b32 v{vWS2}, 4, v{vWS2}
    v_lshrrev_b32 v{vST[1]}, 3, v{vL}
    v_lshl_add_u32 v{vWS}, v{vST[1]}, 10, v{vWS2}
    s_lshl_b32 s{sT1}, s{sNT}, 7
    s_lshl_b32 s{sT2}, s{sCT}, 14
    s_add_u32 s{sT1}, s{sT1}, s{sT2}
    v_add_u32 v{vWS}, s{sT1}, v{vWS}
    v_add_u32 v{vWS2}, {8192-1024}, v{vWS}
    s_mov_b32 s{SWD}, s16
    s_and_b32 s{SWD+1}, s17, 0xffff
    s_mov_b32 s{SWD+2}, {1792*1024}
    s_mov_b32 s{SWO}, s8
    s_and_b32 s{SWO+1}, s9, 0xffff
    s_mov_b32 s{SWO+2}, {512*1024}
    s_mov_b32 s{SOUT}, s18
    s_and_b32 s{SOUT+1}, s19, 0xffff
    s_mov_b32 s{SOUT+2}, {2048*1024}
    s_lshl_b32 s{sAO}, s{sMT}, 11
    s_lshl_b32 s{sT1}, s{sCT}, 16
    s_add_u32 s{sAO}, s{sAO}, s{sT1}
    s_lshl_b32 s{sT1}, s{sCGL}, 1
    s_add_u32 s{sRLt}, s{sR2}, s{sT1}
    s_and_b32 s{sRLt}, s{sRLt}, {R2MASK}
    s_sub_u32 s{sT1}, s{sRLt}, 6
    s_min_u32 s{sRE}, s{sRLt}, s{sT1}
    s_lshl_b32 s{sB6}, s{sCT}, 11
    """)
    AREAS = [0, SLOT, 2 * SLOT]
    sLB = sB6
    def unit_calc(sg):
        if sg < 6:
            return [f"s_add_u32 s{sT2}, s{sRE}, {sg}", f"s_sub_u32 s{sT3}, s{sT2}, 6", f"s_min_u32 s{sT2}, s{sT2}, s{sT3}"]
        return [f"s_add_u32 s{sT2}, s{sRLt}, {sg-6}", f"s_and_b32 s{sT2}, s{sT2}, 7", f"s_add_u32 s{sT2}, s{sT2}, 12"]
    def wdma(sg, calc=True):
        ar = AREAS[sg % 3]; d = 6 if sg < 6 else 8; g = []
        for q in range(2):
            pre = (unit_calc(sg) if (calc and q == 0) else []) + [f"s_add_u32 m0, s{sLB}, {ar+16384+q*8192}"]
            pre += [f"s_lshl_b32 s{sT0}, s{sT2}, 16"] if q == 0 else [f"s_add_u32 s{sT0}, s{sT0}, {d << 16}"]
            g += [(pre, f"buffer_load_dwordx4 v{vWS}, {sr(SWD)}, s{sT0} offen lds"),
                  ([], f"buffer_load_dwordx4 v{vWS2}, {sr(SWD)}, s{sT0} offen offset:1024 lds")]
        return g, ("g", sg)
    def adma(sg, calc=True):
        ar = AREAS[sg % 3]; d = 6 if sg < 6 else 8; g = []
        for q in range(2):
            pre = (unit_calc(sg) if (calc and q == 0) else []) + [f"s_add_u32 m0, s{sLB}, {ar+q*8192}"]
            pre += [f"s_lshl_b32 s{sT0}, s{sT2}, 18", f"s_add_u32 s{sT0}, s{sT0}, s{sAO}"] if q == 0 else [f"s_add_u32 s{sT0}, s{sT0}, {d << 18}"]
            g += [(pre, f"buffer_load_dwordx4 v{vD}, {sr(SWS)}, s{sT0} offen lds"),
                  ([], f"buffer_load_dwordx4 v{vD}, {sr(SWS)}, s{sT0} offen offset:1024 lds")]
        return g, ("g", sg)
    def wodma(pz):
        ar = AREAS[pz]; g = []
        for q in range(2):
            pre = [f"s_add_u32 m0, s{sLX}, {ar+q*16384}", f"s_lshl_b32 s{sT0}, s{sKH}, 18", f"s_add_u32 s{sT0}, s{sT0}, {(2*pz+q) << 16}"]
            g += [(pre, f"buffer_load_dwordx4 v{vWS}, {sr(SWO)}, s{sT0} offen lds"),
                  ([], f"buffer_load_dwordx4 v{vWS2}, {sr(SWO)}, s{sT0} offen offset:1024 lds")]
        return g, ("wo", pz)
    W0 = [f"s_cmp_eq_u32 s{sW}, 0"]
    def publish(level):
        if level < 4:
            adr = f"""s_lshr_b32 s92, s{sFL}, 4
            s_lshl_b32 s92, s92, 7
            s_and_b32 s93, s{sFL}, 15
            s_lshl_b32 s93, s93, 2
            s_add_u32 s92, s92, s93"""
        else:
            adr = f"s_lshl_b32 s92, s{sFL}, 2"
        rare(W0, f"""
        {adr}
        s_add_u32 s92, s92, {WS_F + (level-1)*4096}
        v_mov_b32 v{vPUB}, s{sTAG}
        s_mov_b64 exec, 1
        buffer_store_dword v{vPUB}, off, {sr(SWS)}, s92{SC}
        s_mov_b64 exec, -1
        """)
    def poll_addr(kind):
        if kind == 1:
            return f"""v_lshrrev_b32 v{vPO}, 4, v{vL}
            v_lshlrev_b32 v{vPO}, 7, v{vPO}
            v_and_b32 v{vPOLL}, 15, v{vL}
            v_lshl_add_u32 v{vPO}, v{vPOLL}, 2, v{vPO}"""
        m = 15 if kind == 2 else 31
        return f"""v_and_b32 v{vPO}, {m}, v{vL}
            v_lshlrev_b32 v{vPO}, 2, v{vPO}"""
    def poll_issue(tag, sbase, kind):
        rare(W0, f"""
        {poll_addr(kind)}
        buffer_load_dword v{vPOLL}, v{vPO}, {sr(SWS)}, s{sbase} offen{SC}
        """)
        vm.mark(tag)
    def poll_check(tag, sbase, kind):
        n = U()
        rare(W0, f"""
        {vm.peek(tag)}
        s_mov_b32 s{sCNT}, 0
        L_pl{n}:
        v_cmp_ne_u32 vcc, s{sTAG}, v{vPOLL}
        s_nop 4
        s_cbranch_vccz L_pd{n}
        s_add_u32 s{sCNT}, s{sCNT}, 1
        s_cmp_gt_u32 s{sCNT}, 0x20000
        s_cbranch_scc1 L_pd{n}
        buffer_load_dword v{vPOLL}, v{vPO}, {sr(SWS)}, s{sbase} offen{SC}
        s_sleep {OPT["psl"]}
        s_waitcnt vmcnt({OPT["pdepth"]})
        s_branch L_pl{n}
        L_pd{n}:
        """)
        fstamp(f"poll {tag}")
    sPB = sXB
    for it in f_qkv(acc(0), 0, E, "eq"): do_fill(it)
    def acc1_init():
        pass
    R1 = [36, SPARE, 6, CA[2], xf(0), xf(1)]
    def f1(s, u): return R1[(2 * s + u) % 6]
    def acc1(u): return ACC1 + 16 * u
    def rd_w1(s):
        c2 = (s >> 2) & 1
        return [(f"ds_read_b64_tr_b16 {vr(f1(s,u)+2*hh,2)}, v{vWR[s & 3]} offset:{c2*16384+u*8192+hh*512}", ("w1", s, u)) for u in range(2) for hh in range(2)]
    PFS = [0, 3, 10, 13, 19]
    def pass1(fill, nq):
        lds(rd_w1(0)); lds(rd_w1(1))
        early = list(fillS)
        for s in range(32):
            Tq, r8 = s >> 3, s & 7; g = 8 + Tq
            cur["step"] = s
            valu = []; dm = {}
            if r8 == 6 and Tq < 3:
                a(lg.drain())
                f2stamp(f"p1 mm{Tq}")
                if Tq == 0:
                    while early: do_fill(early.pop(0))
                if Tq == 1: W(vm.wait("eq"))
                W(vm.wait(("st", g + 1)))
                f2stamp(f"p1 vmwait{Tq}")
                a("s_barrier")
                f2stamp(f"p1 bar{Tq}")
                if OPT["wpf"] and Tq < 2: wtouch(7 + Tq)
                if Tq == 1: publish(1)
                valu = slot_adv(g + 1, vWR)
                if Tq <= OPT["early_b"]:
                    gr, tag = dma_p1(3) if Tq == 0 else wodma(Tq - 1)
                    pass1.pend = [(pre, ld, tag) for pre, ld in gr]
            if s == 30:
                assert not fill, "fillers must be done before the exchange barrier"
                a(f"ds_write_b128 v{XA1[0]}, {vr(CA[0])}")
                a(f"ds_write_b128 v{XA1[0]}, {vr(CA[1])} offset:128")
                poll_check("p1", sPB, 1)
                if "eh" in vm.q: W(vm.wait("eh"))
                W(vm.wait(("wo", 1)))
                a(lg.drain())
                a("s_barrier")
                publish(2)
                kv_loads()
                fill.extend(x_reduce(XA1, xf(4)))
            if getattr(pass1, "pend", None) and (r8 in (6, 7, 0, 1)):
                dm = {1: pass1.pend.pop(0)}
            mfs = []
            for u in range(2):
                mfs.append((([("w1", s, 1)] if u == 0 else []) if OPT["wmerge"] else [("w1", s, u)], f"{MF32} {vr(acc1(u),16)}, {vr(f1(s,u))}, {vr(xf(s))}, {vr(acc1(u),16) if s else 0}"))
                if (s & 3) == 0:
                    mfs.append(([], f"{MF16} {vr(CA[u])}, {vr(f1(s,u))}, {vr(SEL)}, {vr(CA[u]) if s else 0}"))
            last = len(mfs) - 1
            reads = []
            if s + 2 < 32:
                e = last if s == 0 else 0
                if s == 0:
                    reads = [(i_, tg, last) for i_, tg in rd_w1(2)[:2]]
                elif s == 1:
                    reads = [(i_, tg, last) for i_, tg in rd_w1(2)[2:]] + [(i_, tg, last) for i_, tg in rd_w1(3)]
                else:
                    reads = [(i_, tg, 0) for i_, tg in rd_w1(s + 2)]
            run_slots(mfs, reads, valu, dm, rper=2.0 if s > 1 else 8.0, vper=4, fill=(early if early else (fill if s >= 5 else None)), fper=(4 if early else OPT["fper"]))
            if s == 25:
                a(f"""
                s_lshl_b32 s{sPB}, s{sQB}, 8
                s_sub_i32 s{sPB}, s{sPB}, 256
                s_max_i32 s{sPB}, s{sPB}, 0
                s_add_u32 s{sPB}, s{sPB}, {WS_F}
                """)
                poll_issue("p1", sPB, 1)
        cur["step"] = None
        print("fill left after pass1:", len(fill), file=sys.stderr)
        while fill: do_fill(fill.pop(0))
    vM, vKR, vVR, vVS, vBIG = 1, 4, 5, 6, 7
    P2r = 8; KF = [16, 20]; VT = 24; P = 32; S = [40, 56]; NEG = 80; O = 96
    QF = 76; QF1 = 112; ACC3 = 112; WOF = 128
    hKR, hVR, hVS, hWRd, hAR = 176, 177, 178, 179, 180
    t0, t1, t2 = 190, 191, 175
    MP = [4 + 2 * i for i in range(10)] + [40, 42, 44, 46] + [64, 66]
    fillM = F(f"""
    v_and_b32 v{t0}, 31, v{vL}
    v_lshrrev_b32 v{t1}, 5, v{vL}
    v_lshlrev_b32 v{t2}, 2, v{t1}
    v_sub_u32 v{t2}, v{t0}, v{t2}
    """ + "\n".join(f"v_cmp_le_i32 s[{MP[r]}:{MP[r]+1}], {8*(r>>2)+(r&3)}, v{t2}" for r in range(16)) + f"""
    v_lshlrev_b32 v{hKR}, 4, v{t1}
    v_lshl_add_u32 v{hKR}, v{t0}, 5, v{hKR}
    v_bfe_u32 v{t0}, v{vL}, 2, 2
    v_lshl_add_u32 v{t0}, v{t1}, 2, v{t0}
    v_and_b32 v{t2}, 1, v{vL}
    v_lshlrev_b32 v{t2}, 4, v{t2}
    v_lshl_add_u32 v{hVR}, v{t0}, 5, v{t2}
    v_bfe_u32 v{t2}, v{vL}, 1, 1
    v_lshl_add_u32 v{hVR}, v{t2}, 3, v{hVR}
    v_lshlrev_b32 v{hWRd}, 7, v{t0}
    v_bfe_u32 v{t2}, v{vL}, 3, 1
    s_bfe_u32 s{sE0}, s{sW}, 0x10001
    v_xor_b32 v{t2}, s{sE0}, v{t2}
    v_lshl_add_u32 v{hWRd}, v{t2}, 6, v{hWRd}
    v_bfe_u32 v{t2}, v{vL}, 4, 1
    v_lshl_add_u32 v{hWRd}, v{t2}, 5, v{hWRd}
    v_and_b32 v{t2}, 3, v{vL}
    v_lshl_add_u32 v{hWRd}, v{t2}, 3, v{hWRd}
    s_lshl_b32 s{sT2}, s{sNH}, 10
    v_add_u32 v{hAR}, s{sT2}, v{vD}
    v_bfe_u32 v{t2}, v{vL}, 4, 1
    v_xor_b32 v{t2}, 1, v{t2}
    v_lshlrev_b32 v{hVS}, 10, v{t2}
    s_add_u32 s{sT1}, s{sLB}, {(LV - LONE) & 0xffffffff}
    v_mul_lo_u32 v{t0}, v{t2}, s{sT1}
    v_add_u32 v{hVR}, v{hVR}, v{t0}
    v_add_u32 v{hVR}, {LONE}, v{hVR}
    """)
    def kv_loads():
        a(f"""
        s_lshl_b32 s{sT0}, s{sQB}, 8
        s_lshl_b32 s{sT1}, s{sW}, 6
        s_add_u32 s{sT1}, s{sT1}, s{sT0}
        s_sub_i32 s{sT1}, s{sT1}, 256
        s_max_i32 s{sT1}, s{sT1}, 0
        s_lshl_b32 s{sT1}, s{sT1}, 5
        s_lshl_b32 s{sT2}, s{sHD}, 16
        s_add_u32 m0, s{sLX}, {LK}
        s_add_u32 s{sT1}, s{sT1}, s{sT2}
        s_add_u32 s{sT3}, s{sT1}, {WS_QKV + 64*65536}
        s_add_u32 s{sT1}, s{sT1}, {WS_QKV + 32*65536}
        buffer_load_dwordx4 v{vD}, {sr(SWS)}, s{sT1} offen lds
        buffer_load_dwordx4 v{vD}, {sr(SWS)}, s{sT1} offen offset:1024 lds
        s_add_u32 m0, s{sLX}, {LV}
        s_nop 0
        buffer_load_dwordx4 v{vD}, {sr(SWS)}, s{sT3} offen lds
        buffer_load_dwordx4 v{vD}, {sr(SWS)}, s{sT3} offen offset:1024 lds
        """)
        vm.issue("kv", 4)
    XA1 = [172, 173, 174, 167]
    fillM = F(xaddr(*XA1, sT1, sT2)) + fillM
    TF = xf(2)
    fillA = f_h(acc(1), acc(2), sP0, TF, "eh") + [('at', 17)] + list(fillM)
    fillB = [('at', 17)] + list(fillM)
    sv, sl0, sn = vm.save(), lg.save(), nstamp[0]
    a(f"s_cmp_eq_u32 s{sTB}, 1")
    a("s_cbranch_scc1 L_p1b")
    acc1_init()
    pass1.pend = []
    pass1(fillA, 2)
    stA = vm.save()
    a("s_branch L_e1")
    a.label("L_p1b")
    vm.restore(sv); lg.restore(sl0); nstamp[0] = sn; del SNAMES[sn:]
    for it in f_qkv(acc(1), 1, E + 12, "eq") + f_qkv(acc(2), 2, E, "eq"): do_fill(it)
    acc1_init()
    pass1.pend = []
    pass1(fillB, 6)
    stB = vm.save()
    a.label("L_e1")
    qa = [t for t in stA[0] if t not in ("eq", "eh")]; qb_ = [t for t in stB[0] if t not in ("eq", "eh")]
    if len(qb_) > len(qa): qa, qb_ = qb_, qa
    assert qa[len(qa) - len(qb_):] == qb_, (qa, qb_)
    vm.q = list(qa)
    vm.total = 1000; vm.marks = {}
    stamp(name="pass1")
    NB = 16
    def e1_body(extra):
        cs_fold(2, acc1, ACC, XA1[3])
        fe1 = f_h(acc1(0), acc1(1), sPF, ACC, "e1")
        st_last = [it for it in fe1 if it[0] == 'm']
        fe1 = [it for it in fe1 if it[0] != 'm']
        rate = len(extra) / (len(fe1) - 8); acc_ = 0.0
        for it in fe1:
            do_fill(it); acc_ += rate
            while extra and acc_ >= 1.0: extra.pop(0)(); acc_ -= 1.0
        while extra: extra.pop(0)()
        return st_last
    svv, svl, sn2 = vm.save(), lg.save(), nstamp[0]
    a(f"s_cmp_eq_u32 s{sKH}, 1")
    a("s_cbranch_scc1 L_B")
    vW0, vW1 = 10, 11
    a(f"""
    s_lshl_b32 s{sT0}, s{sQB}, 13
    s_add_u32 s{sT0}, s{sT0}, s{sLB}
    s_lshl_b32 s{sT2}, s{sHD}, 16
    s_add_u32 s{sT0}, s{sT0}, s{sT2}
    s_add_u32 s{sT0}, s{sT0}, {WS_QKV}
    buffer_load_dwordx4 {vr(QF)}, v{hKR}, {sr(SWS)}, s{sT0} offen
    buffer_load_dwordx4 {vr(QF1)}, v{hKR}, {sr(SWS)}, s{sT0} offen offset:1024
    s_add_u32 s{sT0}, s{sLB}, {LK}
    v_add_u32 v{vKR}, s{sT0}, v{hKR}
    v_mov_b32 v{vVR}, v{hVR}
    v_mov_b32 v{vVS}, v{hVS}
    v_mov_b32 v{vBIG}, {hx(2.0**OPT["fbexp"])}
    v_mov_b32 v{vW0}, v{hWRd}
    v_add_u32 v{vW1}, {SLOT}, v{hWRd}
    s_lshr_b32 s{sPB}, s{sMT}, 1
    s_lshl_b32 s{sPB}, s{sPB}, 7
    s_add_u32 s{sPB}, s{sPB}, {WS_F + 4096}
    """)
    vm.issue("q", 2)
    wof = []
    for f in range(32):
        unit, i = f >> 2, f & 3
        khp, pz, q = unit >> 2, (unit >> 1) & 1, unit & 1
        for hh in range(2):
            ins = f"ds_read_b64_tr_b16 {vr(WOF+4*f+2*hh,2)}, v{vW0 if pz == 0 else vW1} offset:{q*16384+(khp*4+i)*2048+hh*1024}"
            wof.append(lambda ins=ins: (a(ins), lg.issue("wof")))
    wof.insert(40, lambda: poll_issue("pe", sPB, 2))
    st_last = e1_body(wof)
    for it in st_last: do_fill(it)
    stamp(name="E1")
    poll_check("pe", sPB, 2)
    W(lg.wait("wof"))
    W(vm.wait("q"))
    a("s_barrier")
    stamp(name="bar0")
    def hpfA(k16base, n):
        if not OPT["hpfa"]: return
        a(f"""
        s_lshl_b32 s{sT0}, s{sCGL}, 2
        s_add_u32 s{sT0}, s{sT0}, s{sCT}
        s_mul_i32 s{sT0}, s{sT0}, {n}
        v_min_u32 v{ACC3+8}, {n-1}, v{vL}
        v_add_u32 v{ACC3+8}, s{sT0}, v{ACC3+8}
        v_and_b32 v{ACC3+9}, 15, v{ACC3+8}
        v_lshrrev_b32 v{ACC3+8}, 4, v{ACC3+8}
        v_lshlrev_b32 v{ACC3+8}, 16, v{ACC3+8}
        v_lshl_add_u32 v{ACC3+8}, v{ACC3+9}, 7, v{ACC3+8}
        s_lshl_b32 s{sT0}, s{sMT}, 11
        s_add_u32 s{sT0}, s{sT0}, {k16base << 16}
        buffer_load_dword v{ACC3+10}, v{ACC3+8}, {sr(SWS)}, s{sT0} offen
        """)
        vm.issue("hpf")
    hpfA(0, 48)
    nbar = [1]
    def abar():
        k = nbar[0]; nbar[0] += 1
        sg = k - 1
        if sg == OPT["ck3"]: poll_check("p2", sPB, 2)
        if sg == OPT["pub3"]: W(vm.wait("e1"))
        a("s_barrier")
        if sg == OPT["pub3"]: publish(3)
        if sg == OPT["ck3"]: hpfA(48, 64)
        if sg == OPT["ck3"] - 1:
            a(f"s_add_u32 s{sPB}, s{sPB}, 4096")
            poll_issue("p2", sPB, 2)
    credit = [0.0]; marks = [OPT["ab2"] + OPT["abs"] * i for i in range(20)]
    def A(ins, w=1.0):
        a(ins); credit[0] += w
        if marks and credit[0] >= marks[0] and nbar[0] < NB - OPT['apost']:
            marks.pop(0); abar()
    def mf_s(dst, kf): return f"{MF32} {vr(dst,16)}, {vr(kf)}, {vr(QF)}, {vr(NEG,16)}"
    def rdk(j, buf=None):
        a(f"ds_read_b128 {vr(KF[j & 1 if buf is None else buf])}, v{vKR} offset:{j*1024}"); lg.issue(("k", j))
    def cset(val): return "\n".join(val(r) for r in range(16))
    big = lambda r: f"v_mov_b32 v{NEG+r}, {NEGBIG}"
    negm = lambda r: f"v_sub_f32 v{NEG+r}, 0, v{vM}"
    def rdv(tag):
        for t in range(2):
            for hh in range(2):
                a(f"ds_read_b64_tr_b16 {vr(VT+4*t+2*hh,2)}, v{vVR} offset:{t*512+hh*256}"); lg.issue(tag)
    PB = [P, P2r]
    fb = Asm()
    def attention(rr):
        npv = [0]
        def pv1(p, t):
            npv[0] += 1
            return f"{MF32} {vr(O,16)}, {vr(VT+4*t)}, {vr(p+4*t)}, {vr(O,16) if npv[0] > 1 else 0}"
        rdk(8, 0); rdk(1)
        a(f"v_mov_b32 v{vM}, 0")
        W(lg.wait(("k", 8)))
        for r in range(4): a(f"v_dot2c_f32_bf16 v{vM}, v{QF+r}, v{KF[0]+r}")
        a(f"""
        v_mov_b32 v{VT}, v{vM}
        v_permlane32_swap_b32 v{vM}, v{VT}
        v_add_f32 v{vM}, v{vM}, v{VT}
        """)
        for r in range(16): A(negm(r))
        rare([f"s_cmp_gt_i32 s{sJS}, 1"], cset(big))
        for j in range(1, 9):
            if j >= 2: rare([f"s_cmp_eq_u32 s{sJS}, {j}"], cset(negm))
            W(lg.wait(("k", j)))
            a(mf_s(S[j & 1], KF[j & 1]))
            if j < 8: rdk(j + 1)
            else: rdk(0, 1)
            if j > 1:
                sx = S[(j - 1) & 1]; px = PB[(j - 1) & 1]
                ex = [f"v_exp_f32 v{sx+r}, v{sx+r}" for r in range(16)]
                cv = [f"v_cvt_pk_bf16_f32 v{px+r}, v{sx+2*r}, v{sx+2*r+1}" for r in range(8)]
                for x in ex[0:5]: A(x, 2)
                if j > 2:
                    W(lg.wait(("v", j - 2))); a(pv1(PB[j & 1], 0))
                for x in ex[5:10]: A(x, 2)
                if j > 2: a(pv1(PB[j & 1], 1))
                A(ex[10], 2); A(ex[11], 2)
                a(f"v_add_u32 v{vVR}, v{vVR}, v{vVS}")
                for q in range(4):
                    A(ex[12 + q], 2)
                    a(f"ds_read_b64_tr_b16 {vr(VT+2*q,2)}, v{vVR} offset:{(q>>1)*512+(q&1)*256}"); lg.issue(("v", j - 1))
                for x in cv: A(x)
        W(lg.wait(("k", 0)))
        a(mf_s(S[1], KF[1]))
        rare([f"s_cmp_gt_i32 s{sJS}, 0"], "s_nop 15\n" + "\n".join(f"v_mov_b32 v{S[1]+r}, {NEGBIG}" for r in range(16)))
        W(lg.wait(("v", 7)))
        a(pv1(PB[1], 0)); a(pv1(PB[1], 1))
        for r in range(16): A(f"v_cndmask_b32 v{S[0]+r}, v{S[1]+r}, v{S[0]+r}, s[{MP[r]}:{MP[r]+1}]")
        a(f"v_add_u32 v{vVR}, v{vVR}, v{vVS}")
        rdv(("v", 8))
        for r in range(16): A(f"v_exp_f32 v{S[0]+r}, v{S[0]+r}", 2)
        for r in range(16): A(f"v_cndmask_b32 v{S[1]+r}, 0, v{S[0]+r}, s[{MP[r]}:{MP[r]+1}]")
        for r in range(8): A(f"v_cvt_pk_bf16_f32 v{PB[0]+r}, v{S[1]+2*r}, v{S[1]+2*r+1}")
        W(lg.wait(("v", 8)))
        a(pv1(PB[0], 0))
        for r in range(8): A(f"v_cndmask_b32 v{S[0]+r}, v{S[0]+r}, 0, s[{MP[r]}:{MP[r]+1}]")
        a(pv1(PB[0], 1))
        a(f"v_lshlrev_b32 v{KF[0]}, 3, v{vVS}")
        a(f"v_sub_u32 v{vVR}, v{vVR}, v{KF[0]}")
        rdv(("v", 0))
        for r in range(8, 16): A(f"v_cndmask_b32 v{S[0]+r}, v{S[0]+r}, 0, s[{MP[r]}:{MP[r]+1}]")
        for r in range(8): A(f"v_cvt_pk_bf16_f32 v{PB[1]+r}, v{S[0]+2*r}, v{S[0]+2*r+1}")
        W(lg.wait(("v", 0)))
        a(pv1(PB[1], 0)); a(pv1(PB[1], 1))
        a(f"""
        s_lshl_b32 s{sE0}, s{sHD}, 16
        s_lshl_b32 s{sE1}, s{sQB}, 13
        s_add_u32 s{sE0}, s{sE0}, s{sE1}
        s_add_u32 s{sE0}, s{sE0}, s{sLB}
        s_add_u32 s{sE0}, s{sE0}, {WS_O + rr*1024}
        s_mov_b32 s{sE1}, {rr}
        v_cmp_nlt_f32 vcc, v{O+8}, v{vBIG}
        s_nop 4
        s_cbranch_vccnz L_fb
        L_fbd{rr}:
        v_rcp_f32 v{vM}, v{O+8}
        """)
        for r in range(8): a(f"v_mul_f32 v{O+r}, v{O+r}, v{vM}")
        for r in range(4): a(f"v_cvt_pk_bf16_f32 v{S[1]+r}, v{O+2*r}, v{O+2*r+1}")
        a(f"buffer_store_dwordx4 {vr(S[1])}, v{vD}, {sr(SWS)}, s{sE0} offen{SC}")
        vm.issue("o")
    if OPT["aprio"]: a(f"s_setprio {OPT['aprio']}")
    attention(0)
    for r in range(4): a(f"v_mov_b32 v{QF+r}, v{QF1+r}")
    a(f"""
    v_add_u32 v{vKR}, 0x400, v{vKR}
    v_add_u32 v{vVR}, v{vVR}, v{vVS}
    s_sub_i32 s{sJS}, s{sJS}, 1
    """)
    attention(1)
    print("barriers inside attention:", nbar[0], "credit", credit[0], file=sys.stderr)
    stamp(name="att")
    fb.label("L_fb")
    fb("s_nop 15")
    fb(f"v_mov_b32 v{vM}, {NEGBIG}")
    def fb_tile(j, c, dst):
        fb(f"ds_read_b128 {vr(KF[0])}, v{vKR} offset:{j*1024}")
        fb("s_waitcnt lgkmcnt(0)")
        fb(f"{MF32} {vr(dst,16)}, {vr(KF[0])}, {vr(QF)}, {c}")
    def fb_merged(c):
        n = U()
        for r in range(16): fb(f"v_mov_b32 v{S[1]+r}, {NEGBIG}")
        fb(f"s_cmp_gt_i32 s{sJS}, 0")
        fb(f"s_cbranch_scc1 L_fm{n}")
        fb_tile(0, c, S[1])
        fb.label(f"L_fm{n}")
        fb_tile(8, c, S[0])
        for r in range(16): fb(f"v_cndmask_b32 v{S[0]+r}, v{S[1]+r}, v{S[0]+r}, s[{MP[r]}:{MP[r]+1}]")
    def fb_max(s_):
        for r in range(0, 16, 2): fb(f"v_max3_f32 v{vM}, v{s_+r}, v{s_+r+1}, v{vM}")
    def fb_pv(j, p):
        fb(f"v_mul_u32_u24 v{KF[1]}, {j}, v{vVS}")
        fb(f"v_add_u32 v{KF[1]}, v{KF[1]}, v{vVR}")
        for q in range(4): fb(f"ds_read_b64_tr_b16 {vr(VT+2*q,2)}, v{KF[1]} offset:{(q>>1)*512+(q&1)*256}")
        fb("s_waitcnt lgkmcnt(0)")
        for t in range(2): fb(f"{MF32} {vr(O,16)}, {vr(VT+4*t)}, {vr(p+4*t)}, {vr(O,16)}")
    fb_merged("0"); fb_max(S[0])
    for j in range(1, 8):
        n = U()
        fb(f"s_cmp_gt_i32 s{sJS}, {j}"); fb(f"s_cbranch_scc1 L_fa{n}")
        fb_tile(j, "0", S[0]); fb_max(S[0])
        fb.label(f"L_fa{n}")
    fb(f"""
    v_mov_b32 v{VT}, v{vM}
    v_permlane32_swap_b32 v{vM}, v{VT}
    v_max_f32 v{vM}, v{vM}, v{VT}
    """)
    fb(cset(negm))
    for r in range(16): fb(f"v_mov_b32 v{O+r}, 0")
    fb_merged(vr(NEG, 16))
    for r in range(16): fb(f"v_exp_f32 v{S[0]+r}, v{S[0]+r}")
    for r in range(16): fb(f"v_cndmask_b32 v{S[1]+r}, 0, v{S[0]+r}, s[{MP[r]}:{MP[r]+1}]")
    for r in range(8): fb(f"v_cvt_pk_bf16_f32 v{P+r}, v{S[1]+2*r}, v{S[1]+2*r+1}")
    fb_pv(8, P)
    for r in range(16): fb(f"v_cndmask_b32 v{S[1]+r}, v{S[0]+r}, 0, s[{MP[r]}:{MP[r]+1}]")
    for r in range(8): fb(f"v_cvt_pk_bf16_f32 v{P+r}, v{S[1]+2*r}, v{S[1]+2*r+1}")
    fb_pv(0, P)
    for j in range(1, 8):
        n = U()
        fb(f"s_cmp_gt_i32 s{sJS}, {j}"); fb(f"s_cbranch_scc1 L_fc{n}")
        fb_tile(j, vr(NEG, 16), S[0])
        for r in range(16): fb(f"v_exp_f32 v{S[0]+r}, v{S[0]+r}")
        for r in range(8): fb(f"v_cvt_pk_bf16_f32 v{P+r}, v{S[0]+2*r}, v{S[0]+2*r+1}")
        fb_pv(j, P)
        fb.label(f"L_fc{n}")
    fb(f"""
    s_nop 15
    s_cmp_eq_u32 s{sE1}, 0
    s_cbranch_scc1 L_fbd0
    s_branch L_fbd1
    """)
    vXO = 4; XR = 8; vOA = 5; OFB = 16; vXD = 6; vXL = 7
    a(f"""
    s_lshl_b32 s{sT1}, s{sMT}, 16
    s_lshl_b32 s{sT2}, s{sNH}, 15
    s_add_u32 s{sT1}, s{sT1}, s{sT2}
    s_lshl_b32 s{sT2}, s{sNT}, 7
    s_add_u32 s{sT1}, s{sT1}, s{sT2}
    s_lshr_b32 s{sT2}, s{sCT}, 1
    s_lshl_b32 s{sT2}, s{sT2}, 6
    s_add_u32 s{sT1}, s{sT1}, s{sT2}
    v_and_b32 v{XR}, 31, v{vL}
    v_lshrrev_b32 v{XR+1}, 5, v{vL}
    v_lshlrev_b32 v{vXO}, 10, v{XR}
    v_lshl_add_u32 v{vXO}, v{XR+1}, 4, v{vXO}
    v_add_u32 v{vXO}, s{sT1}, v{vXO}
    v_lshlrev_b32 v{vXL}, 6, v{XR}
    v_lshl_add_u32 v{vXL}, v{XR+1}, 3, v{vXL}
    v_lshrrev_b32 v{vXD}, 2, v{vL}
    v_lshlrev_b32 v{vXD}, 10, v{vXD}
    v_and_b32 v{XR}, 3, v{vL}
    v_lshl_add_u32 v{vXD}, v{XR}, 4, v{vXD}
    s_add_u32 s{sT2}, s{sT1}, 0x4000
    s_add_u32 s{sT3}, s{sLB}, {LK}
    v_add_u32 v{vXL}, s{sT3}, v{vXL}
    s_lshl_b32 s{sE0}, s{sQB}, 2
    s_add_u32 s{sE0}, s{sE0}, s{sCT}
    s_lshl_b32 s{sE0}, s{sE0}, 7
    s_lshl_b32 s{sE1}, s{sHD}, 2
    s_add_u32 s{sE0}, s{sE0}, s{sE1}
    s_add_u32 s{sE0}, s{sE0}, {WS_F + 3*4096}
    v_mov_b32 v{vOA}, s{sTAG}
    """)
    abar()
    a(f"""
    s_mov_b32 m0, s{sT3}
    s_lshl_b32 s{sPB}, s{sMT}, 7
    buffer_load_dwordx4 v{vXD}, {sr(SX)}, s{sT1} offen lds
    s_add_u32 m0, s{sT3}, 1024
    s_add_u32 s{sPB}, s{sPB}, {WS_F + 3*4096}
    buffer_load_dwordx4 v{vXD}, {sr(SX)}, s{sT2} offen lds
    v_and_b32 v{vPO}, 31, v{vL}
    v_lshlrev_b32 v{vPO}, 2, v{vPO}
    """)
    vm.issue("x", 2)
    W(vm.wait("o"))
    a(f"""
    s_mov_b64 exec, 1
    buffer_store_dword v{vOA}, off, {sr(SWS)}, s{sE0}{SC}
    s_mov_b64 exec, -1
    s_lshl_b32 s{sE0}, s{sMT}, 11
    s_lshl_b32 s{sT1}, s{sNH}, 10
    s_add_u32 s{sE0}, s{sE0}, s{sT1}
    s_add_u32 s{sE0}, s{sE0}, {WS_O}
    v_mov_b32 v{vPOLL}, 0
    """)
    while nbar[0] < NB - 1: abar()
    stamp(name="A bars")
    a(f"""
    s_mov_b32 s{sCNT}, 0
    L_p3:
    buffer_load_dword v{vPOLL}, v{vPO}, {sr(SWS)}, s{sPB} offen{SC}
    s_sleep {OPT["psl"]}
    s_waitcnt vmcnt({OPT["pdepth"]})
    v_cmp_ne_u32 vcc, s{sTAG}, v{vPOLL}
    s_add_u32 s{sCNT}, s{sCNT}, 1
    s_cmp_gt_u32 s{sCNT}, 0x20000
    s_cbranch_scc1 L_p3d
    s_nop 2
    s_cbranch_vccnz L_p3
    L_p3d:
    """)
    vm.q = []
    stamp(name="p3")
    OQ = list(range(16, 72, 4)) + list(range(76, 112, 4))
    NO = len(OQ)
    def ofr(f): return OQ[f] if f < NO else WOF + 4 * (f - NO)
    def oload(f):
        if f: a(f"s_add_u32 s{sE0}, s{sE0}, 0x10000")
        a(f"buffer_load_dwordx4 {vr(ofr(f))}, v{vD}, {sr(SWS)}, s{sE0} offen"); vm.issue(("of", f))
    for f in range(NO): oload(f)
    GX = WOF + 40
    for f in range(32):
        W(vm.wait(("of", f)))
        a(f"{MF32} {vr(ACC3,16)}, {vr(WOF+4*f)}, {vr(ofr(f))}, {vr(ACC3,16) if f else 0}")
        if f + NO < 32: oload(NO + f)
        if f == 9:
            for q in range(4): a(f"ds_read_b64 v[{XR+2*q}:{XR+2*q+1}], v{vXL} offset:{16*q}")
        if f == 13: a("s_waitcnt lgkmcnt(0)")
        if 14 <= f < 22:
            d = f - 14
            a(f"v_lshlrev_b32 v{OFB+2*d}, 16, v{XR+d}")
            a(f"v_and_b32 v{OFB+2*d+1}, 0xffff0000, v{XR+d}")
        if f == 27:
            abar()
            a(f"s_lshl_b32 s{sT1}, s{sCT}, 12")
            a(f"v_add_u32 v{vOA}, s{sT1}, v{vD}")
            for q in range(4): a(f"ds_read_b128 {vr(GX+4*q)}, v{vOA} offset:{q*1024}")
    assert nbar[0] == NB
    stamp(name="G3")
    a("s_waitcnt lgkmcnt(0)")
    TM = OFB
    for i in range(16): a(f"v_fmac_f32 v{TM+i}, v{ACC3+i}, v{GX+i}")
    for i in range(8): a(f"v_cvt_pk_bf16_f32 v{TM+16+i}, v{TM+2*i}, v{TM+2*i+1}")
    for h2 in range(2):
        T4 = TM + 16 + 4 * h2
        a(f"v_permlane32_swap_b32 v{T4}, v{T4+2}")
        a(f"v_permlane32_swap_b32 v{T4+1}, v{T4+3}")
        a(f"buffer_store_dwordx4 {vr(T4)}, v{vXO}, {sr(SOUT)}, 0 offen offset:{32*h2}")
    a("s_branch L_fin")
    nsA = nstamp[0]
    a.label("L_B")
    vm.restore(svv); lg.restore(svl); nstamp[0] = sn2
    sav_names = list(SNAMES)
    vAR, vWRd = hAR, hWRd
    vAa = [182, 183]; vWa = [184, 185]
    ACC2 = 112; GF = 128
    ex_ = []
    for pre, ld in wdma(2)[0]:
        ex_.append(lambda pre=pre: a.extend(pre)); ex_.append(lambda ld=ld: (a(ld), vm.issue(("g", 2))))
    st_last = e1_body(ex_)
    for it in st_last: do_fill(it)
    a(f"v_add_u32 v{vWRd}, 0x4000, v{vWRd}")
    stamp(name="E1")
    W(vm.wait("kv"))
    a("s_barrier")
    stamp(name="bar0")
    if OPT["bprio"]: a(f"s_setprio {OPT['bprio']}")
    for sg in range(2):
        emit_dma(wdma(sg)); emit_dma(adma(sg, calc=False))
    DB = OPT['bdist']; NR = DB + 2
    GF = 192
    def ga(n): return GF + (n % NR) * 8
    def gw(n): return GF + (n % NR) * 8 + 4
    def g_reads(n):
        sg, i = n >> 3, n & 7
        return [(f"ds_read_b128 {vr(ga(n))}, v{vAa[sg & 1]} offset:{i*2048}", ("ga", n), 0)] + \
               [(f"ds_read_b64_tr_b16 {vr(gw(n)+2*hh,2)}, v{vWa[sg & 1]} offset:{i*2048+hh*1024}", ("ga", n), 0) for hh in range(2)]
    def bst(i):
        if not (STAMP and OPT["fineb"]): return
        a("s_memtime s[92:93]"); a("s_waitcnt lgkmcnt(0)"); lg.q = []
        a(f"v_writelane_b32 v{vSTAMP}, s92, {i}")
    def bbar(sg):
        if sg > 0: W(lg.wait(("ga", 8 * sg - 1)))
        bst(20 + 3 * sg)
        if sg == OPT["pub3"]: W(vm.wait("e1"))
        W(vm.wait(("g", sg)))
        bst(21 + 3 * sg)
        a("s_barrier")
        bst(22 + 3 * sg)
        a(f"v_add_u32 v{vAa[sg & 1]}, {AREAS[sg % 3]}, v{vAR}")
        a(f"v_add_u32 v{vWa[sg & 1]}, {AREAS[sg % 3]}, v{vWRd}")
    bbar(0)
    for n in range(DB):
        for ins, tg, _ in g_reads(n): a(ins); lg.issue(tg)
    pend = [(pre, ld, ("g", 2)) for pre, ld in adma(2)[0]]
    for n in range(112):
        sg, i = n >> 3, n & 7
        if i == 8 - DB and sg < 13:
            assert not pend
            bbar(sg + 1)
            s3 = sg + 3
            if s3 < 14:
                assert s3 < 6 or sg + 1 >= OPT["ck3"]
                pend = [(pre, ld, ("g", s3)) for pre, ld in wdma(s3)[0] + adma(s3, calc=False)[0]]
        dm = {0: pend.pop(0)} if pend else {}
        mfs = [([("ga", n)], f"{MF32} {vr(ACC2,16)}, {vr(gw(n))}, {vr(ga(n))}, {vr(ACC2,16) if n else 0}")]
        run_slots(mfs, g_reads(n + DB) if n + DB < 112 else [], [], dm, rper=3.0)
        for _ in range(OPT["bdma"] - 1):
            if pend:
                pre, ld, tg = pend.pop(0); a.extend(pre); a(ld); vm.issue(tg)
    stamp(name="att")
    Tz = GF
    for i in range(16): a(f"v_mul_f32 v{Tz+i}, {hx(-LOG2E)}, v{ACC2+i}")
    for i in range(16): a(f"v_exp_f32 v{Tz+i}, v{Tz+i}")
    a(f"""
    s_lshl_b32 s{sT1}, s{sCT}, 12
    v_add_u32 v{vAa[0]}, s{sT1}, v{vD}
    """)
    for i in range(16): a(f"v_add_f32 v{Tz+i}, 1.0, v{Tz+i}")
    for i in range(16): a(f"v_rcp_f32 v{Tz+i}, v{Tz+i}")
    for i in range(16): a(f"v_mul_f32 v{Tz+i}, v{ACC2+i}, v{Tz+i}")
    for q in range(4): a(f"ds_write_b128 v{vAa[0]}, {vr(Tz+4*q)} offset:{q*1024}")
    a("s_waitcnt lgkmcnt(0)")
    a("s_barrier")
    while nstamp[0] < nsA: stamp(name="")
    SNAMES[:] = sav_names
    a.label("L_fin")
    TM = 16
    if STAMP:
        stamp(name="final"); stamp(True)
        a(f"""
        s_lshl_b32 s{sT0}, s2, 3
        s_add_u32 s{sT0}, s{sT0}, s{sW}
        s_lshl_b32 s{sT0}, s{sT0}, 8
        s_add_u32 s{sT0}, s{sT0}, {WS_STAMP}
        s_mov_b32 s{SWS+2}, {WS_STAMP + (1 << 20)}
        v_lshlrev_b32 v{TM}, 2, v{vL}
        buffer_store_dword v{vSTAMP}, v{TM}, {sr(SWS)}, s{sT0} offen
        """)
        if OPT["dbgst"]:
            a(f"""
            s_lshl_b32 s{sT0}, s2, 3
            s_add_u32 s{sT0}, s{sT0}, s{sW}
            s_cmp_eq_u32 s{sT0}, {OPT["dbgst"]}
            s_cbranch_scc0 L_end
            v_add_u32 v{TM}, 4, v{TM}
            s_mov_b64 exec, 0x7fff
            buffer_store_dword v{vSTAMP}, v{TM}, {sr(SDBG)}, 0 offen
            """)
        print("stamps:", nstamp[0], file=sys.stderr)
        open("snames.txt", "w").write("\n".join(SNAMES))
    a.label("L_end")
    a("s_endpgm")
    a.items += ool.items
    a.label("L_code_end")
    a.items += fb.items
    return dict(lds=LDS_TOTAL, vgpr=256, sgpr=100)

HEADER = open("cdna_kernels/%s.s.ref" % NAME).read().split("; Override launch")[0]

def build(path):
    a = Asm(); info = gen(a)
    items = []; inside = False; inm = False
    for k, x in a.items:
        if k == 'l' and x == "X_begin": inside = True
        if k == 'l' and x == "X_end": inside = False
        if k == 'l' and x == "M_begin": inm = True
        if k == 'l' and x == "M_end": inm = False
        if inm and k == 'i':
            if OPT["m_nodma"] and x.startswith("buffer_load") and x.endswith("lds"): continue
            if OPT["m_noexp"] and x.startswith("v_exp"): continue
            if OPT["m_nobar"] and x.startswith("s_barrier"): continue
        if inside and k == 'i':
            if OPT["x_nodma"] and x.startswith("buffer_load") and x.endswith("lds"): continue
            if OPT["x_nomfma"] and x.startswith("v_mfma"): continue
            if OPT["x_nords"] and x.startswith("ds_read"): continue
            if OPT["x_nostat"] and re.match(r"(v_fmac_f32 v1[67]|v_add_f32 v1[45]|v_lshlrev_b32 v18, 16|v_and_b32 v19, 0xffff0000)", x): continue
        if k == 'i' and OPT["x_nocs"] and x.startswith("v_mfma_f32_16x16x32"): continue
        items.append((k, x))
    a.items = items
    txt = a.render()
    label = NAME + "_kernel"
    n = sum(1 for k, _ in a.items if k == 'i')
    print("instrs", n, "nops", a.nnop, file=sys.stderr)
    out = HEADER + f"; @launch grid=(256,1,1) block=(512,1,1) lds={info['lds']}\n"
    out += '.amdgcn_target "amdgcn-amd-amdhsa--gfx950"\n.text\n'
    out += f".globl {label}\n.p2align 8\n.type {label},@function\n{label}:\n"
    out += txt.replace("CODE_BYTES", "(L_code_end - L_pc)")
    out += f""".section .rodata,"a"
.p2align 6
.amdhsa_kernel {label}
  .amdhsa_next_free_vgpr {info['vgpr']}
  .amdhsa_next_free_sgpr {info['sgpr']}
  .amdhsa_accum_offset {info['vgpr']}
  .amdhsa_group_segment_fixed_size 0
  .amdhsa_kernarg_size 80
  .amdhsa_user_sgpr_count 2
  .amdhsa_user_sgpr_kernarg_segment_ptr 1
  .amdhsa_system_sgpr_workgroup_id_x 1
.end_amdhsa_kernel
"""
    open(path, "w").write(out)

if __name__ == "__main__":
    path = sys.argv[1]
    for arg in sys.argv[2:]:
        if arg == "stamp": STAMP = True
        elif "=" in arg:
            k, v = arg.split("="); assert k in OPT, k; OPT[k] = int(v)
    build(path)
```

```python
import sys, math, struct, re
sys.path.insert(0, "gen")
from asmlib import Asm, Ins

NAME = "recurrent_scan__sliding_block__geglu_ffn__prompt"
WS_H = 0
WS_O = 56 * 128 * 1024
WS_QKV = 72 * 128 * 1024
WS_F = WS_QKV + 96 * 65536
WS_END = WS_F + 4 * 4096
LOG2E = 1.4426950408889634
QSCALE = 0.25 * LOG2E
GK1 = -2.0 * math.sqrt(2.0 / math.pi) * LOG2E
GK2 = GK1 * 0.044715
NEGBIG = "0xf149f2ca"
def f2u(x): return struct.unpack("<I", struct.pack("<f", x))[0]
def hx(x): return "0x%08x" % f2u(x)
def vr(b, n=4): return f"v[{b}:{b+n-1}]"
def sr(b, n=4): return f"s[{b}:{b+n-1}]"

class Cnt:
    def __init__(self, name, mx): self.q = []; self.name = name; self.mx = mx; self.total = 0; self.marks = {}
    def issue(self, tag, n=1): self.q += [tag] * n; self.total += n
    def wait(self, tag):
        idxs = [i for i, t in enumerate(self.q) if t == tag]
        if not idxs: return None
        n = min(len(self.q) - 1 - max(idxs), self.mx)
        self.q = self.q[len(self.q) - n:] if n else []
        return f"s_waitcnt {self.name}({n})"
    def mark(self, tag): self.marks[tag] = self.total
    def peek(self, tag): return f"s_waitcnt {self.name}({min(self.total - self.marks[tag], self.mx)})"
    def drain(self): self.q = []; return f"s_waitcnt {self.name}(0)"
    def save(self): return (list(self.q), self.total, dict(self.marks))
    def restore(self, st): self.q, self.total, self.marks = list(st[0]), st[1], dict(st[2])

STAMP = False
SNAMES = []
WS_STAMP = 32 << 20
OPT = dict(codepf=32, rot=1, rot2=0, fine=0, start=3, fper=5, early_b=2, wpf=1, hpf=0, p2late=1, ck3=4, ck4=12, pub3=0, gdelay=14, gd0=4, fbexp=60, ab1=30, ab2=150, abs=85, pollbk=1, apost=3, aprio=0, p1pf=4, xpf=0, hpfa=0, texec=1, clk=0, dsch=0, rpo=30, rpe=20, vpe=3, wsh=2, w0pf=0, psl=4, pdepth=2, bdist=3, bprio=0, bdma=2, fineb=0, m_nodma=0, m_noexp=0, m_nobar=0, grate=40, odel=2, outf=0, prio=0, wmerge=1, dbgst=0, x_nodma=0, x_nomfma=0, x_nostat=0, x_nords=0, x_nocs=0)

def gen(a):
    SC = " sc1"
    vm = Cnt("vmcnt", 63); lg = Cnt("lgkmcnt", 15)
    ool = Asm()
    def W(x):
        if x: a(x)
    SX, SU0, SU1, SU2, SPG, SPU, SWS, SDBG = 24, 28, 32, 36, 40, 44, 48, 52
    sW, sMG, sNH, sRB, sCGQ, sCGL, sTB, sRL = 56, 57, 58, 59, 60, 61, 62, 63
    sP12, sKX, sK0, sK12, sT0, sT1, sT2, sT3 = 64, 65, 66, 67, 68, 69, 70, 71
    sLX, sLW, sU0, sPF, sXB, sSC0, sP0, sFL = 72, 73, 74, 75, 76, 77, 78, 79
    sCNT = 80
    SWD, SWO, SOUT = 28, 32, 36
    sHD, sQB, sJS, sMT, sNT, sCT, sKH, sAO = 81, 82, 83, 84, 85, 86, 87, 88
    sWQ, sWL, sROT, sTAG, sE0, sE1 = 89, 90, 91, 96, 97, 98
    sR2 = 63
    STP = 92
    STP = 20
    sPFo = 99
    R2MASK = 7 if OPT['rot2'] else 0
    ROTMASK = {1: 0, 2: 4, 4: 6, 8: 7}[OPT['rot']]
    uid = [0]
    def U(): uid[0] += 1; return uid[0]
    nstamp = [0]
    def fstamp(name):
        if OPT["fine"] == 1: stamp(name=name)
    def f2stamp(name):
        if OPT["fine"] == 2: stamp(name=name)
    def f3stamp(name):
        if OPT["fine"] == 3: stamp(name=name)
    def stamp(real=False, name=""):
        if not STAMP: return
        i = nstamp[0]; nstamp[0] += 1
        SNAMES.append(name)
        a("s_memrealtime s[92:93]" if real else "s_memtime s[92:93]")
        a("s_waitcnt lgkmcnt(0)"); lg.q = []
        a(f"v_writelane_b32 v{vSTAMP}, s92, {i}")
        if OPT["clk"] and not real:
            a("s_memrealtime s[92:93]"); a("s_waitcnt lgkmcnt(0)")
            a(f"v_writelane_b32 v{vSTAMP}, s92, {32 + i}")
    def rare(cond, body):
        n = U()
        a.extend(cond)
        a(f"s_cbranch_scc1 R{n}")
        a.label(f"B{n}")
        ool.label(f"R{n}")
        ool("s_nop 7"); ool("s_nop 7")
        ool(body)
        ool("s_nop 7")
        ool(f"s_branch B{n}")
    vL, vX0, vX1, vWq, vW12, vWg = 0, 1, 2, 3, 4, 5
    vXR = [6, 7, 8, 9]; vWR = [10, 11, 12, 13]
    vS = [14, 15]; vQ = [16, 17]; vST = [18, 19]
    SEL = 20; CA = [24, 28, 32]
    FR = 36; NF = 9
    vD, vPOLL, vPO, vSTAMP = 72, 73, 74, 75
    SPARE = 76
    vPUB = 74
    vPF, vJK = 74, 73
    ACC = 80; XF = 128; ACC1 = 40
    def xf(s): return XF + s * 4
    def acc(u): return ACC + u * 16
    SLOT = 40960
    SCR = 3 * SLOT
    L_RS = SCR
    L_CSA = SCR + 1024
    L_CSB = SCR + 2560
    LK = SCR + 4096; LV = LK + 16384; LONE = LV + 16384 + 128
    LDS_TOTAL = 163840
    T = [FR + i for i in range(8)]

    a("s_cmp_ge_u32 s2, 256")
    a("s_cbranch_scc1 L_end")
    a("s_load_dwordx16 s[4:19], s[0:1], 0")
    a("s_load_dwordx4 s[20:23], s[0:1], 64")
    if OPT["codepf"]:
        a(f"""
        s_cmp_ge_u32 s2, {OPT["codepf"]}
        s_cbranch_scc1 L_npf
        s_getpc_b64 s[92:93]
        L_pc:
        s_and_b32 s92, s92, 0xffffff00
        s_and_b32 s93, s93, 0xffff
        s_mov_b32 s94, CODE_BYTES
        s_mov_b32 s95, 0x20000
        v_lshlrev_b32 v{T[0]}, 7, v0
        buffer_load_dword v{vPOLL}, v{T[0]}, s[92:95], 0 offen
        L_npf:
        """)
    a(f"""
    v_lshrrev_b32 v{T[0]}, 6, v0
    v_and_b32 v{vL}, 63, v0
    v_readfirstlane_b32 s{sW}, v{T[0]}
    s_and_b32 s{sT0}, s2, 7
    s_lshr_b32 s{sT1}, s2, 3
    s_and_b32 s{sRB}, s{sT0}, 1
    s_lshl_b32 s{sRB}, s{sRB}, 3
    s_and_b32 s{sRL}, s{sT1}, 7
    s_add_u32 s{sRB}, s{sRB}, s{sRL}
    s_lshr_b32 s{sCGQ}, s{sT0}, 1
    s_lshr_b32 s{sCGL}, s{sT1}, 3
    s_lshl_b32 s{sROT}, s{sCGL}, 1
    s_add_u32 s{sROT}, s{sROT}, s{sRL}
    s_and_b32 s{sROT}, s{sROT}, {ROTMASK}
    s_lshl_b32 s{sLX}, s{sW}, 11
    s_lshl_b32 s{sLW}, s{sW}, 10
    s_lshl_b32 s{sXB}, s{sRB}, 17
    s_mul_i32 s{sT0}, s{sCGQ}, 3
    s_add_u32 s{sT1}, s{sT0}, s{sCGL}
    s_add_u32 s{sT2}, s{sT0}, 12
    s_mov_b32 s{sP0}, s{sT1}
    s_add_u32 s{sT3}, s{sP0}, 12
    s_add_u32 s{sPF}, s{sCGQ}, 24
    s_movk_i32 s{sP12}, 3584
    s_cmp_eq_u32 s{sCGL}, 3
    s_cselect_b32 s{sTB}, 1, 0
    s_cselect_b32 s{sU0}, s{sT2}, s{sT1}
    s_cselect_b32 s{sPF}, s{sPF}, s{sT3}
    s_cselect_b32 s{sP12}, 3072, s{sP12}
    """)
    if STAMP: a(f"v_mov_b32 v{vSTAMP}, 0")
    a(f"""
    v_lshrrev_b32 v{T[0]}, 3, v{vL}
    v_and_b32 v{T[1]}, 7, v{vL}
    v_lshrrev_b32 v{T[2]}, 4, v{vL}
    v_xor_b32 v{T[3]}, v{T[1]}, v{T[2]}
    s_lshl_b32 s{sT0}, s{sW}, 4
    v_add_u32 v{T[4]}, s{sT0}, v{T[0]}
    v_lshlrev_b32 v{T[4]}, 10, v{T[4]}
    v_lshl_add_u32 v{vX0}, v{T[3]}, 4, v{T[4]}
    v_xor_b32 v{vX1}, 64, v{vX0}
    v_add_u32 v{vX1}, 0x2000, v{vX1}
    s_lshl_b32 s{sT0}, s{sW}, 3
    v_add_u32 v{T[4]}, s{sT0}, v{T[0]}
    v_and_b32 v{T[2]}, 1, v{T[2]}
    v_lshlrev_b32 v{T[2]}, 2, v{T[2]}
    v_xor_b32 v{T[5]}, v{T[1]}, v{T[2]}
    v_lshlrev_b32 v{T[5]}, 4, v{T[5]}
    v_mul_u32_u24 v{vWq}, 3072, v{T[4]}
    v_add_u32 v{vWq}, v{vWq}, v{T[5]}
    v_mul_u32_u24 v{vWg}, 3584, v{T[4]}
    v_add_u32 v{vWg}, v{vWg}, v{T[5]}
    v_mul_u32_u24 v{vW12}, s{sP12}, v{T[4]}
    v_add_u32 v{vW12}, v{vW12}, v{T[5]}
    s_lshl_b32 s{sP12}, s{sP12}, 6
    s_mov_b32 s{SX+2}, {2048*1024}
    s_mov_b32 s{SX+3}, 0x20000
    s_mov_b32 s{SU0+3}, 0x20000
    s_mov_b32 s{SU1+3}, 0x20000
    s_mov_b32 s{SU2+3}, 0x20000
    s_waitcnt lgkmcnt(0)
    """)
    stamp(); stamp(True)
    QSZ, GSZ = 512 * 3072, 512 * 3584
    a(f"""
    s_mov_b32 s{SX}, s4
    s_and_b32 s{SX+1}, s5, 0xffff
    s_lshl_b32 s{sT0}, s{sU0}, 7
    s_add_u32 s{SU0}, s6, s{sT0}
    s_addc_u32 s{SU0+1}, s7, 0
    s_and_b32 s{SU0+1}, s{SU0+1}, 0xffff
    s_sub_u32 s{SU0+2}, {QSZ}, s{sT0}
    """)
    for k, (S, plo) in enumerate(((SU1, 12), (SU2, 14))):
        a(f"""
        s_lshl_b32 s{sT0}, s{sP0}, 7
        s_add_u32 s{sT1}, s{sU0}, {k+1}
        s_lshl_b32 s{sT1}, s{sT1}, 7
        s_mov_b32 s{S+2}, {GSZ}
        s_cmp_eq_u32 s{sTB}, 1
        s_cselect_b32 s{sT0}, s{sT1}, s{sT0}
        s_cselect_b32 s{S}, s6, s{plo}
        s_cselect_b32 s{S+1}, s7, s{plo+1}
        s_cselect_b32 s{S+2}, {QSZ}, s{S+2}
        s_add_u32 s{S}, s{S}, s{sT0}
        s_addc_u32 s{S+1}, s{S+1}, 0
        s_and_b32 s{S+1}, s{S+1}, 0xffff
        s_sub_u32 s{S+2}, s{S+2}, s{sT0}
        """)
    def dma_p0(t):
        sl = (t % 3) * SLOT
        pre = [f"s_add_u32 s{sT3}, s{sROT}, {t}", f"s_and_b32 s{sT3}, s{sT3}, 7", f"s_lshl_b32 s{sKX}, s{sT3}, 7",
               f"s_add_u32 s{sKX}, s{sKX}, s{sXB}", f"s_mul_i32 s{sK0}, s{sT3}, {64*3072}", f"s_mul_i32 s{sK12}, s{sP12}, s{sT3}"]
        if OPT["rot"] == 1:
            pre = [f"s_add_u32 s{sKX}, s{sXB}, {t*128}", f"s_mov_b32 s{sK0}, {t*64*3072}", f"s_mul_i32 s{sK12}, s{sP12}, {t}"]
        g = [(pre + [f"s_add_u32 m0, s{sLX}, {sl}"], f"buffer_load_dwordx4 v{vX0}, {sr(SX)}, s{sKX} offen lds"),
             ([f"s_add_u32 m0, s{sLX}, {sl+1024}"], f"buffer_load_dwordx4 v{vX1}, {sr(SX)}, s{sKX} offen lds"),
             ([f"s_add_u32 m0, s{sLW}, {sl+16384}"], f"buffer_load_dwordx4 v{vWq}, {sr(SU0)}, s{sK0} offen lds"),
             ([f"s_add_u32 m0, s{sLW}, {sl+24576}"], f"buffer_load_dwordx4 v{vW12}, {sr(SU1)}, s{sK12} offen lds"),
             ([f"s_add_u32 m0, s{sLW}, {sl+32768}"], f"buffer_load_dwordx4 v{vW12}, {sr(SU2)}, s{sK12} offen lds")]
        return g, ("st", t)
    def dma_p1(Tq):
        sl = ((8 + Tq) % 3) * SLOT
        g = []
        for c2 in range(2):
            sk = sK0 if c2 == 0 else sK12
            pre = [f"s_add_u32 s{sT3}, s{sROT}, {2*Tq+c2}", f"s_and_b32 s{sT3}, s{sT3}, 7", f"s_mul_i32 s{sk}, s{sT3}, {64*3584}"]
            if OPT["rot"] == 1: pre = [f"s_mov_b32 s{sk}, {(2*Tq+c2)*64*3584}"]
            g += [(pre + [f"s_add_u32 m0, s{sLW}, {sl+c2*16384}"], f"buffer_load_dwordx4 v{vWg}, {sr(SPG)}, s{sk} offen lds"),
                  ([f"s_add_u32 m0, s{sLW}, {sl+c2*16384+8192}"], f"buffer_load_dwordx4 v{vWg}, {sr(SPU)}, s{sk} offen lds")]
        return g, ("st", 8 + Tq)
    def emit_dma(d):
        g, tag = d
        for pre, ld in g:
            a.extend(pre); a(ld); vm.issue(tag)
    emit_dma(dma_p0(0))
    if OPT["start"] == 0: emit_dma(dma_p0(1))
    for S, plo in ((SPG, 12), (SPU, 14)):
        a(f"""
        s_lshl_b32 s{sT0}, s{sPF}, 7
        s_add_u32 s{S}, s{plo}, s{sT0}
        s_addc_u32 s{S+1}, s{plo+1}, 0
        s_and_b32 s{S+1}, s{S+1}, 0xffff
        s_sub_u32 s{S+2}, {GSZ}, s{sT0}
        s_mov_b32 s{S+3}, 0x20000
        """)
    a(f"""
    s_mov_b32 s{SWS}, s22
    s_and_b32 s{SWS+1}, s23, 0xffff
    s_mov_b32 s{SWS+2}, {WS_END}
    s_mov_b32 s{SWS+3}, 0x20000
    s_mov_b32 s{SDBG}, s20
    s_and_b32 s{SDBG+1}, s21, 0xffff
    s_movk_i32 s{SDBG+2}, 256
    s_mov_b32 s{SDBG+3}, 0x20000
    s_lshr_b32 s{sMG}, s{sW}, 1
    s_and_b32 s{sNH}, s{sW}, 1
    """)
    rare([f"s_or_b32 s{sT0}, s2, s{sW}", f"s_cmp_eq_u32 s{sT0}, 0"], f"""
    s_memrealtime s[92:93]
    s_waitcnt lgkmcnt(0)
    s_or_b32 s92, s92, 1
    v_mov_b32 v{T[0]}, s92
    s_mov_b64 exec, 1
    buffer_store_dword v{T[0]}, off, {sr(SDBG)}, 0{SC}
    s_mov_b64 exec, -1
    """)
    a(f"""
    s_and_b32 s{sT0}, s{sMG}, 1
    s_lshl_b32 s{sT0}, s{sT0}, 1
    s_lshr_b32 s{sT1}, s{sMG}, 1
    s_xor_b32 s{sT1}, s{sT1}, s{sNH}
    s_add_u32 s{sT0}, s{sT0}, s{sT1}
    v_and_b32 v{T[0]}, 31, v{vL}
    v_lshrrev_b32 v{T[1]}, 5, v{vL}
    v_bfe_u32 v{T[2]}, v{vL}, 1, 3
    v_xor_b32 v{T[2]}, v{T[2]}, v{T[1]}
    v_lshlrev_b32 v{T[2]}, 4, v{T[2]}
    v_lshl_add_u32 v{T[2]}, v{T[0]}, 7, v{T[2]}
    s_lshl_b32 s{sT1}, s{sMG}, 12
    v_add_u32 v{T[2]}, s{sT1}, v{T[2]}
    s_lshl_b32 s{sT1}, s{sT0}, 5
    v_xor_b32 v{vXR[0]}, s{sT1}, v{T[2]}
    v_xor_b32 v{vXR[1]}, 32, v{vXR[0]}
    v_xor_b32 v{vXR[2]}, 64, v{vXR[0]}
    v_xor_b32 v{vXR[3]}, 0x60, v{vXR[0]}
    """)
    a(f"""
    v_bfe_u32 v{T[2]}, v{vL}, 2, 2
    v_lshl_add_u32 v{T[3]}, v{T[1]}, 3, v{T[2]}
    v_lshlrev_b32 v{T[3]}, 7, v{T[3]}
    v_lshrrev_b32 v{T[2]}, 1, v{T[2]}
    v_xor_b32 v{T[2]}, s{sNH}, v{T[2]}
    v_lshl_add_u32 v{T[3]}, v{T[2]}, 6, v{T[3]}
    v_bfe_u32 v{T[2]}, v{vL}, 4, 1
    v_lshl_add_u32 v{T[3]}, v{T[2]}, 5, v{T[3]}
    v_and_b32 v{T[2]}, 3, v{vL}
    v_lshl_add_u32 v{T[3]}, v{T[2]}, 3, v{T[3]}
    s_lshl_b32 s{sT1}, s{sT0}, 11
    v_xor_b32 v{vWR[0]}, s{sT1}, v{T[3]}
    v_xor_b32 v{vWR[1]}, 0x800, v{vWR[0]}
    v_xor_b32 v{vWR[2]}, 0x1000, v{vWR[0]}
    v_xor_b32 v{vWR[3]}, 0x1800, v{vWR[0]}
    v_lshlrev_b32 v{vD}, 4, v{vL}
    """)
    a(f"""
    v_lshrrev_b32 v{T[2]}, 4, v{vL}
    v_xor_b32 v{T[2]}, v{T[2]}, v{vL}
    v_and_b32 v{T[2]}, 1, v{T[2]}
    v_cmp_eq_u32 vcc, 0, v{T[2]}
    v_mov_b32 v{T[3]}, 0x3f803f80
    v_cndmask_b32 v{SEL}, 0, v{T[3]}, vcc
    v_mov_b32 v{SEL+1}, v{SEL}
    v_mov_b32 v{SEL+2}, v{SEL}
    v_mov_b32 v{SEL+3}, v{SEL}
    v_mov_b32 v{T[4]}, v{T[3]}
    v_mov_b32 v{T[5]}, v{T[3]}
    v_mov_b32 v{T[6]}, v{T[3]}
    v_mov_b32 v{T[7]}, v{T[3]}
    v_add_u32 v{T[0]}, {LONE}, v{vD}
    ds_write_b128 v{T[0]}, {vr(T[4])}
    """)
    for r in vS + vQ: a(f"v_mov_b32 v{r}, 0")
    lg.issue("misc", 1)
    if OPT["start"] == 0: emit_dma(dma_p0(2))
    elif OPT["start"] in (1, 3): emit_dma(dma_p0(1))
    def lds(lst):
        for ins, tag in lst: a(ins); lg.issue(tag)
    def run_slots(mfs, reads=(), valu=(), dmas=None, rstart=0, rper=2.0, vper=2, fill=None, fper=0):
        ri = vi = 0
        for k, (tags, ins) in enumerate(mfs):
            for tg in tags: W(lg.wait(tg))
            a(ins)
            if dmas and k in dmas: a.extend(dmas[k][0])
            for _ in range(vper):
                if vi < len(valu): a(valu[vi]); vi += 1
            if k >= rstart:
                lim = int(rper * (k - rstart + 1) + 0.999)
                while ri < len(reads) and ri < lim and reads[ri][2] <= k:
                    a(reads[ri][0]); lg.issue(reads[ri][1]); ri += 1
            if fill is not None:
                n = 0
                while fill and n < fper:
                    if fill[0][0] == 'at':
                        if cur["step"] < fill[0][1]: break
                        fill.pop(0); continue
                    n += do_fill(fill.pop(0))
            if dmas and k in dmas: a(dmas[k][1]); vm.issue(dmas[k][2])
        while vi < len(valu): a(valu[vi]); vi += 1
        while ri < len(reads): a(reads[ri][0]); lg.issue(reads[ri][1]); ri += 1
    cur = {"step": None}
    def do_fill(it):
        kind = it[0]
        if cur["step"] is not None and kind in "vl":
            for t_, r_ in Ins(it[1]).wr:
                if t_ == 'v' and r_ >= XF: assert (r_ - XF) // 4 < cur["step"], (it, cur)
        if kind == 'v': a(it[1]); return 2 if it[1].startswith(("v_exp", "v_rcp")) else 1
        if kind == 's': a(it[1]); return 0.5
        if kind == 'm': a(it[1]); vm.issue(it[2]); return 1
        if kind == 'l': a(it[1]); lg.issue(it[2]); return 0.5
        if kind == 'w': W(lg.wait(it[1])); return 0.5
        if kind == 'gap': return it[1]
        raise ValueError
    def F(text, tag=None):
        out = []
        lines = [l.strip() for l in text.strip().split("\n") if l.strip()]
        i = 0
        while i < len(lines):
            l = lines[i]
            if l.startswith("s_cmp"):
                out.append(('s', l + "\n" + lines[i + 1])); i += 2; continue
            if l.startswith("WAIT"): out.append(('w', l.split()[1]))
            elif l.startswith("ds_"):
                body, tg = l.split(" @"); out.append(('l', body, tg))
            elif l.startswith("s_"): out.append(('s', l))
            else: out.append(('v', l))
            i += 1
        return out
    def slot_adv(t_next, regs):
        d = SLOT if (t_next % 3) else -2 * SLOT
        return [f"v_add_u32 v{r}, {d & 0xffffffff}, v{r}" for r in regs]
    MF32 = "v_mfma_f32_32x32x16_bf16"; MF16 = "v_mfma_f32_16x16x32_bf16"

    a(f"""
    v_and_b32 v{vPO}, 3, v{vL}
    v_lshlrev_b32 v{vPO}, 7, v{vPO}
    s_lshr_b32 s{sPFo}, s2, 3
    s_lshl_b32 s{sPFo}, s{sPFo}, 3
    s_add_u32 s{sPFo}, s{sPFo}, s{sW}
    s_lshl_b32 s{sPFo}, s{sPFo}, 10
    s_and_b32 s{sT0}, s2, 1
    s_lshl_b32 s{sT0}, s{sT0}, 9
    s_add_u32 s{sPFo}, s{sPFo}, s{sT0}
    v_add_u32 v{vPF}, s{sPFo}, v{vPO}
    s_mov_b32 s{STP}, s8
    s_and_b32 s{STP+1}, s9, 0xffff
    s_mov_b32 s{STP+2}, {512*1024}
    s_mov_b32 s{STP+3}, 0x20000
    """)
    def wtouch(k):
        pre = []
        if k == 2: pre = [f"s_mov_b32 s{STP}, s16", f"s_and_b32 s{STP+1}, s17, 0xffff", f"s_mov_b32 s{STP+2}, {1792*1024}"]
        kk = k if k < 2 else k - 2
        pre += [f"s_mov_b32 m0, {LONE + 1280}", f"s_mov_b32 s{sPFo}, {kk << 18}"]
        a.extend(pre)
        if OPT["texec"]: a("s_mov_b64 exec, 15")
        a(f"buffer_load_dword v{vPF}, {sr(STP)}, s{sPFo} offen lds"); vm.issue("wpf")
        if OPT["texec"]: a("s_mov_b64 exec, -1")
    L_P = SCR; L_T = SCR + 3072; L_RS = LK + 8192
    def xaddr(cw, pr, tw, tr, sa, sb):
        return f"""
        v_lshrrev_b32 v{cw}, 4, v{vL}
        v_lshlrev_b32 v{cw}, 4, v{cw}
        v_and_b32 v{pr}, 1, v{vL}
        v_lshl_add_u32 v{cw}, v{pr}, 6, v{cw}
        s_lshl_b32 s{sa}, s{sNH}, 2
        s_add_u32 s{sa}, s{sa}, s{sMG}
        s_mul_i32 s{sa}, s{sa}, 384
        s_add_u32 s{sa}, s{sa}, {L_P}
        v_add_u32 v{cw}, s{sa}, v{cw}
        v_min_u32 v{pr}, 47, v{vL}
        v_lshlrev_b32 v{pr}, 3, v{pr}
        s_mul_i32 s{sa}, s{sNH}, 384
        s_add_u32 s{sa}, s{sa}, {L_T}
        v_add_u32 v{tw}, s{sa}, v{pr}
        s_mul_i32 s{sb}, s{sNH}, {4*384}
        s_add_u32 s{sb}, s{sb}, {L_P}
        v_add_u32 v{pr}, s{sb}, v{pr}
        v_lshrrev_b32 v{tr}, 5, v{vL}
        v_lshlrev_b32 v{tr}, 4, v{tr}
        v_add_u32 v{tr}, s{sa}, v{tr}
        """
    XA0 = [SPARE, SPARE + 1, SPARE + 2, SPARE + 3]
    a(xaddr(*XA0, sT0, sT1))
    def x_reduce(XA, tmp, extra=""):
        cw, pr, tw, tr = XA
        return F("\n".join(f"ds_read_b64 {vr(tmp+2*m,2)}, v{pr} offset:{m*384} @cp" for m in range(4)) + "\n" + extra) + [('gap', 5)] + F(f"""
        WAIT cp
        v_add_f32 v{tmp}, v{tmp}, v{tmp+2}
        v_add_f32 v{tmp+1}, v{tmp+1}, v{tmp+3}
        v_add_f32 v{tmp+4}, v{tmp+4}, v{tmp+6}
        v_add_f32 v{tmp+5}, v{tmp+5}, v{tmp+7}
        v_add_f32 v{tmp}, v{tmp}, v{tmp+4}
        v_add_f32 v{tmp+1}, v{tmp+1}, v{tmp+5}
        ds_write_b64 v{tw}, {vr(tmp,2)} @ct
        """)
    vNM, vVE, vA_, vC1, vC2 = vS[0], vQ[0], vS[1], vQ[1], vST[0]
    def fslot(n): return FR + (n % NF) * 4
    def rd_x(s): return [(f"ds_read_b128 {vr(xf(s))}, v{vXR[s & 3]}", ("x", s))]
    def rd_w0(s, u):
        f = fslot(3 * s + u)
        return [(f"ds_read_b64_tr_b16 {vr(f+2*hh, 2)}, v{vWR[s & 3]} offset:{16384+u*8192+hh*512}", ("w", s, u)) for hh in range(2)]
    def stat_ops(s):
        o = []
        for j in range(4):
            x = xf(s) + j
            o += [f"v_lshlrev_b32 v{vST[0]}, 16, v{x}", f"v_and_b32 v{vST[1]}, 0xffff0000, v{x}",
                  f"v_add_f32 v{vS[0]}, v{vS[0]}, v{vST[0]}", f"v_add_f32 v{vS[1]}, v{vS[1]}, v{vST[1]}",
                  f"v_fmac_f32 v{vQ[0]}, v{vST[0]}, v{vST[0]}", f"v_fmac_f32 v{vQ[1]}, v{vST[1]}, v{vST[1]}"]
        return o
    if OPT["prio"]:
        a(f"s_cmp_{'ge' if OPT['prio'] == 1 else 'lt'}_u32 s{sW}, 4")
        a("s_cbranch_scc0 L_np")
        a("s_setprio 1")
        a.label("L_np")
    stamp(name="setup")
    W(vm.wait(("st", 0)))
    if OPT["start"] == 2: emit_dma(dma_p0(1))
    if OPT["start"] in (1, 2): emit_dma(dma_p0(2))
    a(lg.drain())
    a("s_barrier")
    stamp(name="wait st0")
    a.label("X_begin")
    for s in range(2):
        lds(rd_x(s))
        for u in range(3): lds(rd_w0(s, u))
    pend = []
    WTH = [[3, 5, 7, 9, 11, 13, 15], [5, 6, 7, 9, 11, 13, 15], [6, 7, 8, 9, 10, 11, 13]][OPT['wsh']]
    for h in range(16):
        t = h >> 1; odd = h & 1
        valu = []
        if odd:
            if t < 7: valu = slot_adv(t + 1, [vXR[0], vWR[0], vXR[1], vWR[1], vXR[2], vWR[2], vXR[3], vWR[3]])
            else: valu = slot_adv(t + 1, vWR)
            g, tag = dma_p0(t + 3) if t + 3 < 8 else dma_p1(t + 3 - 8)
            pend = [(pre, ld, tag) for pre, ld in g]
        if h < 15: valu += stat_ops(2 * h)
        if h == 14: valu += stat_ops(30)
        dm = {}
        if h == 0 and OPT["start"] == 3:
            g, tag = dma_p0(2); dm = dict(zip([0, 2, 4, 6, 8], [(pre, ld, tag) for pre, ld in g]))
        if h == 0 and OPT["start"] == 4:
            g, tag = dma_p0(1); g2, tag2 = dma_p0(2)
            lst = [(pre, ld, tag) for pre, ld in g] + [(pre, ld, tag2) for pre, ld in g2[:4]]
            dm = dict(zip(range(9), lst)); late4 = (g2[4], tag2)
        if h >= 1:
            if OPT["dsch"] == 0:
                if odd and h < 15: now = pend[:3]; pend = pend[3:]; sl_ = [0, 2, 4]
                elif odd: now = pend; pend = []; sl_ = [0, 2, 3, 5]
                else: now = pend; pend = []; sl_ = [1, 5]
            elif OPT["dsch"] == 1:
                if odd: now = pend; pend = []; sl_ = [0, 1, 2, 3, 4]
                else: now = []; sl_ = []
            else:
                if odd and h < 15: now = pend[:2]; pend = pend[2:]; sl_ = [1, 4]
                elif odd: now = pend; pend = []; sl_ = [0, 2, 3, 5]
                else: now = pend; pend = []; sl_ = [0, 3, 6]
            dm = dict(zip(sl_, now))

        mfs = []
        for ss in range(2):
            s = 2 * h + ss
            for u in range(3):
                tags = ([("x", s)] if u == 0 else []) + [("w", s, u)]
                if OPT["wmerge"]: tags = [("w", s, 2)] if u == 0 else []
                mfs.append((tags, f"{MF32} {vr(acc(u),16)}, {vr(fslot(3*s+u))}, {vr(xf(s))}, {vr(acc(u),16) if s else 0}"))
                if (s & 3) == 0:
                    mfs.append(([], f"{MF16} {vr(CA[u])}, {vr(fslot(3*s+u))}, {vr(SEL)}, {vr(CA[u]) if s else 0}"))
        free = {}
        idx = 0
        for ss in range(2):
            for u in range(3):
                idx += 2 if ((2 * h + ss) & 3) == 0 else 1
                free[(ss, u)] = idx - 1
        reads = []
        if h + 1 < 16:
            s0 = 2 * h + 2
            reads += [(i_, tg, 0) for i_, tg in rd_x(s0)]
            for u in range(3): reads += [(i_, tg, 0) for i_, tg in rd_w0(s0, u)]
            reads += [(i_, tg, 0) for i_, tg in rd_x(s0 + 1)]
            for u in range(3): reads += [(i_, tg, free[(0, u)]) for i_, tg in rd_w0(s0 + 1, u)]
        if h == 7:
            a(f"buffer_load_dword v{vPOLL}, off, {sr(SDBG)}, 0"); vm.issue("nonce")
        if OPT["wpf"] and h in WTH: wtouch(WTH.index(h))
        if OPT["xpf"] and h == OPT["xpf"] - 1:
            a(f"""
            s_lshl_b32 s{sE0}, s{sCGL}, 3
            s_add_u32 s{sE0}, s{sE0}, s{sW}
            s_lshl_b32 s{sE0}, s{sE0}, 12
            s_add_u32 s{sE0}, s{sE0}, s{sXB}
            v_bfe_u32 v{vPOLL}, v{vL}, 2, 2
            v_lshlrev_b32 v{vPOLL}, 10, v{vPOLL}
            v_and_b32 v{vST[0]}, 3, v{vL}
            v_lshl_add_u32 v{vPOLL}, v{vST[0]}, 7, v{vPOLL}
            s_mov_b32 m0, {LONE + 1280 - 512}
            s_nop 0
            buffer_load_dword v{vPOLL}, {sr(SX)}, s{sE0} offen offset:512 lds
            """)
            vm.issue("wpf", 1)
        if OPT["w0pf"] and h == OPT["w0pf"] - 1:
            a(f"""
            s_lshl_b32 s{sE0}, s{sRL}, 3
            s_add_u32 s{sE0}, s{sE0}, s{sW}
            s_lshl_b32 s{sE0}, s{sE0}, 2
            s_add_u32 s{sE0}, s{sE0}, 256
            v_and_b32 v{vST[0]}, 3, v{vL}
            v_add_u32 v{vST[0]}, s{sE0}, v{vST[0]}
            v_mul_u32_u24 v{vPOLL}, 3072, v{vST[0]}
            s_lshr_b32 s{sE1}, s{sP12}, 6
            v_mul_u32_u24 v{vST[0]}, s{sE1}, v{vST[0]}
            s_mov_b32 m0, {LONE + 1280}
            s_nop 0
            buffer_load_dword v{vPOLL}, {sr(SU0)}, 0 offen lds
            buffer_load_dword v{vST[0]}, {sr(SU1)}, 0 offen lds
            buffer_load_dword v{vST[0]}, {sr(SU2)}, 0 offen lds
            """)
            vm.issue("wpf", 3)
        if OPT["p1pf"] and h == OPT["p1pf"]:
            a(f"""
            s_lshl_b32 s{sE0}, s{sRL}, 3
            s_add_u32 s{sE0}, s{sE0}, s{sW}
            s_mul_i32 s{sE0}, s{sE0}, {8*3584}
            v_and_b32 v{vPOLL}, 7, v{vL}
            v_mul_u32_u24 v{vPOLL}, 3584, v{vPOLL}
            s_mov_b32 m0, {LONE + 1280}
            {"s_mov_b64 exec, 0xff" if OPT["texec"] else "s_nop 0"}
            buffer_load_dword v{vPOLL}, {sr(SPG)}, s{sE0} offen lds
            buffer_load_dword v{vPOLL}, {sr(SPU)}, s{sE0} offen lds
            s_mov_b64 exec, -1
            """)
            vm.issue("wpf", 2)
        fl = None
        if h == 14:
            mfs[4] = (mfs[4][0] + [("x", 30)], mfs[4][1])
        if h == 15:
            TR = fslot(3 * 29)
            assert fslot(3*29+1) == TR + 4
            fl = x_reduce(XA0, TR, f"ds_read_b64 v[{vQ[0]}:{vQ[1]}], v{vX0} @cp") + F(f"""
            v_add_f32 v{vS[0]}, v{vS[0]}, v{vQ[0]}
            v_add_f32 v{vS[1]}, v{vS[1]}, v{vQ[1]}
            v_mul_f32 v{vNM}, {hx(-1.0/512)}, v{vS[0]}
            v_mul_f32 v{vQ[1]}, v{vNM}, v{vNM}
            v_mov_b32 v{vST[1]}, {hx(1.0/512)}
            v_fma_f32 v{vVE}, v{vS[1]}, v{vST[1]}, -v{vQ[1]}
            v_max_f32 v{vVE}, 0, v{vVE}
            v_add_f32 v{vVE}, {hx(1e-5)}, v{vVE}
            v_rsq_f32 v{vA_}, v{vVE}
            v_mul_f32 v{vC1}, {hx(GK1)}, v{vA_}
            v_mul_f32 v{vC2}, v{vA_}, v{vA_}
            v_mul_f32 v{vC2}, v{vC2}, v{vA_}
            v_mul_f32 v{vC2}, {hx(GK2)}, v{vC2}
            v_and_b32 v{vX0}, 31, v{vL}
            v_lshrrev_b32 v{vX1}, 5, v{vL}
            v_lshlrev_b32 v{vX1}, 4, v{vX1}
            v_lshl_add_u32 v{vX0}, v{vX0}, 5, v{vX1}
            s_lshl_b32 s{sT0}, s{sRB}, 12
            s_lshl_b32 s{sT1}, s{sMG}, 10
            s_add_u32 s{sT0}, s{sT0}, s{sT1}
            v_add_u32 v{vX0}, s{sT0}, v{vX0}
            """)
        run_slots(mfs, reads, valu, dm, rstart=0, rper=(OPT['rpo']/10 if odd else OPT['rpe']/10), vper=(6 if (odd or h == 14) else OPT['vpe']), fill=fl, fper=6)
        while fl: do_fill(fl.pop(0))
        if h == 14:
            a(f"""
            v_add_f32 v{vS[0]}, v{vS[0]}, v{vS[1]}
            v_add_f32 v{vQ[0]}, v{vQ[0]}, v{vQ[1]}
            v_mov_b32 v{vS[1]}, v{vS[0]}
            v_mov_b32 v{vQ[1]}, v{vQ[0]}
            v_and_b32 v{vX0}, 31, v{vL}
            v_lshlrev_b32 v{vX0}, 3, v{vX0}
            v_permlane32_swap_b32 v{vS[0]}, v{vS[1]}
            v_permlane32_swap_b32 v{vQ[0]}, v{vQ[1]}
            s_lshl_b32 s{sT0}, s{sW}, 8
            s_add_u32 s{sT0}, s{sT0}, {L_RS}
            v_add_u32 v{vX0}, s{sT0}, v{vX0}
            v_add_f32 v{vS[0]}, v{vS[0]}, v{vS[1]}
            v_add_f32 v{vS[1]}, v{vQ[0]}, v{vQ[1]}
            ds_write_b128 v{XA0[0]}, {vr(CA[0])}
            ds_write_b128 v{XA0[0]}, {vr(CA[1])} offset:128
            ds_write_b128 v{XA0[0]}, {vr(CA[2])} offset:256
            ds_write_b64 v{vX0}, v[{vS[0]}:{vS[1]}]
            v_xor_b32 v{vX0}, 0x100, v{vX0}
            """)
            lg.issue("misc", 4)
        if h == 0 and OPT["start"] == 4:
            a.extend(late4[0][0]); a(late4[0][1]); vm.issue(late4[1])
        if not odd:
            if OPT["fine"] == 4: stamp(name=f"p0 mm{t}")
            a(lg.drain())
            W(vm.wait(("st", t + 1)))
            if OPT["fine"] == 4: stamp(name=f"p0 vm{t}")
            a("s_barrier")
            if OPT["fine"] == 4: stamp(name=f"p0 bar{t}")
    a.label("X_end")
    stamp(name="pass0")
    fillS = F(f"""
    s_lshl_b32 s{sFL}, s{sRB}, 4
    s_lshl_b32 s{sT1}, s{sCGQ}, 2
    s_add_u32 s{sT1}, s{sT1}, s{sCGL}
    s_add_u32 s{sFL}, s{sFL}, s{sT1}
    s_lshr_b32 s{sQB}, s{sRB}, 1
    s_and_b32 s{sHD}, s{sFL}, 31
    s_lshl_b32 s{sMT}, s{sCGQ}, 3
    s_add_u32 s{sMT}, s{sMT}, s{sRL}
    s_and_b32 s{sNT}, s2, 1
    s_lshl_b32 s{sNT}, s{sNT}, 2
    s_add_u32 s{sNT}, s{sNT}, s{sCGL}
    s_and_b32 s{sCT}, s{sW}, 3
    s_lshr_b32 s{sKH}, s{sW}, 2
    s_lshl_b32 s{sJS}, s{sCT}, 1
    s_sub_u32 s{sJS}, 8, s{sJS}
    s_cmp_eq_u32 s{sQB}, 0
    s_cselect_b32 s{sJS}, s{sJS}, 0
    """)
    E = 40
    vQA = vX0
    W(vm.wait("nonce"))
    a(f"v_readfirstlane_b32 s{sTAG}, v{vPOLL}")
    rare([f"s_cmp_eq_u32 s{sTAG}, 0"], f"""
    s_mov_b32 s{sCNT}, 0
    L_nc:
    s_sleep 2
    buffer_load_dword v{vPOLL}, off, {sr(SDBG)}, 0{SC}
    s_waitcnt vmcnt(0)
    v_readfirstlane_b32 s{sTAG}, v{vPOLL}
    s_add_u32 s{sCNT}, s{sCNT}, 1
    s_cmp_gt_u32 s{sCNT}, 0x8000
    s_cbranch_scc1 L_nd
    s_cmp_eq_u32 s{sTAG}, 0
    s_cbranch_scc1 L_nc
    L_nd:
    """)
    def cs_fold(nu, accf, tmp, tr):
        def rd(u):
            for q in range(4):
                a(f"ds_read_b128 {vr(tmp+16*(u&1)+4*q)}, v{tr} offset:{u*128+q*32}"); lg.issue(("cf", u))
        rd(0); rd(1)
        for u in range(nu):
            W(lg.wait(("cf", u)))
            for r in range(16): a(f"v_fmac_f32 v{accf(u)+r}, v{vNM}, v{tmp+16*(u&1)+r}")
            if u + 2 < nu: rd(u + 2)
    cs_fold(3, acc, E, XA0[3])
    stamp(name="E0 serial")
    def f_qkv(x, uadd, tmp, tag):
        o = [('s', f"s_add_u32 s{sE0}, s{sU0}, {uadd}"), ('s', f"s_cmp_lt_u32 s{sE0}, 8\ns_cselect_b32 s{sSC0}, {hx(QSCALE)}, 1.0"),
             ('s', f"s_lshl_b32 s{sE0}, s{sE0}, 2"), ('s', f"s_lshl_b32 s{sE1}, s{sNH}, 1"), ('s', f"s_add_u32 s{sE0}, s{sE0}, s{sE1}"),
             ('s', f"s_lshl_b32 s{sE0}, s{sE0}, 16"), ('s', f"s_add_u32 s{sE0}, s{sE0}, {WS_QKV}"), ('s', f"s_add_u32 s{sE1}, s{sE0}, 0x10000"),
             ('v', f"v_mul_f32 v{tmp+8}, s{sSC0}, v{vA_}")]
        for e in range(2):
            for r in range(8): o.append(('v', f"v_mul_f32 v{x+8*e+r}, v{tmp+8}, v{x+8*e+r}"))
            for r in range(4): o.append(('v', f"v_cvt_pk_bf16_f32 v{tmp+4*e+r}, v{x+8*e+2*r}, v{x+8*e+2*r+1}"))
            o.append(('m', f"buffer_store_dwordx4 {vr(tmp+4*e)}, v{vQA}, {sr(SWS)}, s{sE0 if e == 0 else sE1} offen{SC}", tag))
        return o
    def f_h(g, u, spair, tmp, tag):
        o = [('s', f"s_lshl_b32 s{sE0}, s{spair}, 1"), ('s', f"s_add_u32 s{sE0}, s{sE0}, s{sNH}"), ('s', f"s_lshl_b32 s{sE0}, s{sE0}, 7"),
             ('s', f"s_lshl_b32 s{sE1}, s{sRB}, 2"), ('s', f"s_add_u32 s{sE0}, s{sE0}, s{sE1}"),
             ('s', f"s_add_u32 s{sE0}, s{sE0}, s{sMG}"), ('s', f"s_lshl_b32 s{sE0}, s{sE0}, 10"), ('s', f"s_add_u32 s{sE1}, s{sE0}, 0x10000")]
        t = tmp + 8
        for e in range(2):
            for q in range(2):
                G_, U_ = g + 8 * e + 4 * q, u + 8 * e + 4 * q
                for r in range(4): o.append(('v', f"v_mul_f32 v{t+r}, v{G_+r}, v{G_+r}"))
                for r in range(4): o.append(('v', f"v_fma_f32 v{t+r}, v{t+r}, v{vC2}, v{vC1}"))
                for r in range(4): o.append(('v', f"v_mul_f32 v{t+r}, v{t+r}, v{G_+r}"))
                for r in range(4): o.append(('v', f"v_exp_f32 v{t+r}, v{t+r}"))
                for r in range(4): o.append(('v', f"v_mul_f32 v{G_+r}, v{G_+r}, v{U_+r}"))
                for r in range(4): o.append(('v', f"v_fma_f32 v{t+r}, v{t+r}, v{vVE}, v{vVE}"))
                for r in range(4): o.append(('v', f"v_rcp_f32 v{t+r}, v{t+r}"))
                for r in range(4): o.append(('v', f"v_mul_f32 v{G_+r}, v{G_+r}, v{t+r}"))
                o.append(('v', f"v_cvt_pk_bf16_f32 v{tmp+4*e+2*q}, v{G_}, v{G_+1}"))
                o.append(('v', f"v_cvt_pk_bf16_f32 v{tmp+4*e+2*q+1}, v{G_+2}, v{G_+3}"))
            o.append(('m', f"buffer_store_dwordx4 {vr(tmp+4*e)}, v{vD}, {sr(SWS)}, s{sE0 if e == 0 else sE1} offen{SC}", tag))
        return o
    vWS, vWS2 = vWq, vX1
    sRE, sRLt, sB6, sB8 = sR2, sWQ, sWL, sCGQ
    fillS += F(f"""
    v_and_b32 v{vWS2}, 7, v{vL}
    v_bfe_u32 v{vST[1]}, v{vL}, 4, 1
    v_lshlrev_b32 v{vST[1]}, 2, v{vST[1]}
    v_xor_b32 v{vWS2}, v{vWS2}, v{vST[1]}
    v_lshlrev_b32 v{vWS2}, 4, v{vWS2}
    v_lshrrev_b32 v{vST[1]}, 3, v{vL}
    v_lshl_add_u32 v{vWS}, v{vST[1]}, 10, v{vWS2}
    s_lshl_b32 s{sT1}, s{sNT}, 7
    s_lshl_b32 s{sT2}, s{sCT}, 14
    s_add_u32 s{sT1}, s{sT1}, s{sT2}
    v_add_u32 v{vWS}, s{sT1}, v{vWS}
    v_add_u32 v{vWS2}, {8192-1024}, v{vWS}
    s_mov_b32 s{SWD}, s16
    s_and_b32 s{SWD+1}, s17, 0xffff
    s_mov_b32 s{SWD+2}, {1792*1024}
    s_mov_b32 s{SWO}, s8
    s_and_b32 s{SWO+1}, s9, 0xffff
    s_mov_b32 s{SWO+2}, {512*1024}
    s_mov_b32 s{SOUT}, s18
    s_and_b32 s{SOUT+1}, s19, 0xffff
    s_mov_b32 s{SOUT+2}, {2048*1024}
    s_lshl_b32 s{sAO}, s{sMT}, 11
    s_lshl_b32 s{sT1}, s{sCT}, 16
    s_add_u32 s{sAO}, s{sAO}, s{sT1}
    s_lshl_b32 s{sT1}, s{sCGL}, 1
    s_add_u32 s{sRLt}, s{sR2}, s{sT1}
    s_and_b32 s{sRLt}, s{sRLt}, {R2MASK}
    s_sub_u32 s{sT1}, s{sRLt}, 6
    s_min_u32 s{sRE}, s{sRLt}, s{sT1}
    s_lshl_b32 s{sB6}, s{sCT}, 11
    """)
    AREAS = [0, SLOT, 2 * SLOT]
    sLB = sB6
    def unit_calc(sg):
        if sg < 6:
            return [f"s_add_u32 s{sT2}, s{sRE}, {sg}", f"s_sub_u32 s{sT3}, s{sT2}, 6", f"s_min_u32 s{sT2}, s{sT2}, s{sT3}"]
        return [f"s_add_u32 s{sT2}, s{sRLt}, {sg-6}", f"s_and_b32 s{sT2}, s{sT2}, 7", f"s_add_u32 s{sT2}, s{sT2}, 12"]
    def wdma(sg, calc=True):
        ar = AREAS[sg % 3]; d = 6 if sg < 6 else 8; g = []
        for q in range(2):
            pre = (unit_calc(sg) if (calc and q == 0) else []) + [f"s_add_u32 m0, s{sLB}, {ar+16384+q*8192}"]
            pre += [f"s_lshl_b32 s{sT0}, s{sT2}, 16"] if q == 0 else [f"s_add_u32 s{sT0}, s{sT0}, {d << 16}"]
            g += [(pre, f"buffer_load_dwordx4 v{vWS}, {sr(SWD)}, s{sT0} offen lds"),
                  ([], f"buffer_load_dwordx4 v{vWS2}, {sr(SWD)}, s{sT0} offen offset:1024 lds")]
        return g, ("g", sg)
    def adma(sg, calc=True):
        ar = AREAS[sg % 3]; d = 6 if sg < 6 else 8; g = []
        for q in range(2):
            pre = (unit_calc(sg) if (calc and q == 0) else []) + [f"s_add_u32 m0, s{sLB}, {ar+q*8192}"]
            pre += [f"s_lshl_b32 s{sT0}, s{sT2}, 18", f"s_add_u32 s{sT0}, s{sT0}, s{sAO}"] if q == 0 else [f"s_add_u32 s{sT0}, s{sT0}, {d << 18}"]
            g += [(pre, f"buffer_load_dwordx4 v{vD}, {sr(SWS)}, s{sT0} offen lds"),
                  ([], f"buffer_load_dwordx4 v{vD}, {sr(SWS)}, s{sT0} offen offset:1024 lds")]
        return g, ("g", sg)
    def wodma(pz):
        ar = AREAS[pz]; g = []
        for q in range(2):
            pre = [f"s_add_u32 m0, s{sLX}, {ar+q*16384}", f"s_lshl_b32 s{sT0}, s{sKH}, 18", f"s_add_u32 s{sT0}, s{sT0}, {(2*pz+q) << 16}"]
            g += [(pre, f"buffer_load_dwordx4 v{vWS}, {sr(SWO)}, s{sT0} offen lds"),
                  ([], f"buffer_load_dwordx4 v{vWS2}, {sr(SWO)}, s{sT0} offen offset:1024 lds")]
        return g, ("wo", pz)
    W0 = [f"s_cmp_eq_u32 s{sW}, 0"]
    def publish(level):
        if level < 4:
            adr = f"""s_lshr_b32 s92, s{sFL}, 4
            s_lshl_b32 s92, s92, 7
            s_and_b32 s93, s{sFL}, 15
            s_lshl_b32 s93, s93, 2
            s_add_u32 s92, s92, s93"""
        else:
            adr = f"s_lshl_b32 s92, s{sFL}, 2"
        rare(W0, f"""
        {adr}
        s_add_u32 s92, s92, {WS_F + (level-1)*4096}
        v_mov_b32 v{vPUB}, s{sTAG}
        s_mov_b64 exec, 1
        buffer_store_dword v{vPUB}, off, {sr(SWS)}, s92{SC}
        s_mov_b64 exec, -1
        """)
    def poll_addr(kind):
        if kind == 1:
            return f"""v_lshrrev_b32 v{vPO}, 4, v{vL}
            v_lshlrev_b32 v{vPO}, 7, v{vPO}
            v_and_b32 v{vPOLL}, 15, v{vL}
            v_lshl_add_u32 v{vPO}, v{vPOLL}, 2, v{vPO}"""
        m = 15 if kind == 2 else 31
        return f"""v_and_b32 v{vPO}, {m}, v{vL}
            v_lshlrev_b32 v{vPO}, 2, v{vPO}"""
    def poll_issue(tag, sbase, kind):
        rare(W0, f"""
        {poll_addr(kind)}
        buffer_load_dword v{vPOLL}, v{vPO}, {sr(SWS)}, s{sbase} offen{SC}
        """)
        vm.mark(tag)
    def poll_check(tag, sbase, kind):
        n = U()
        rare(W0, f"""
        {vm.peek(tag)}
        s_mov_b32 s{sCNT}, 0
        L_pl{n}:
        v_cmp_ne_u32 vcc, s{sTAG}, v{vPOLL}
        s_nop 4
        s_cbranch_vccz L_pd{n}
        s_add_u32 s{sCNT}, s{sCNT}, 1
        s_cmp_gt_u32 s{sCNT}, 0x20000
        s_cbranch_scc1 L_pd{n}
        buffer_load_dword v{vPOLL}, v{vPO}, {sr(SWS)}, s{sbase} offen{SC}
        s_sleep {OPT["psl"]}
        s_waitcnt vmcnt({OPT["pdepth"]})
        s_branch L_pl{n}
        L_pd{n}:
        """)
        fstamp(f"poll {tag}")
    sPB = sXB
    for it in f_qkv(acc(0), 0, E, "eq"): do_fill(it)
    def acc1_init():
        pass
    R1 = [36, SPARE, 6, CA[2], xf(0), xf(1)]
    def f1(s, u): return R1[(2 * s + u) % 6]
    def acc1(u): return ACC1 + 16 * u
    def rd_w1(s):
        c2 = (s >> 2) & 1
        return [(f"ds_read_b64_tr_b16 {vr(f1(s,u)+2*hh,2)}, v{vWR[s & 3]} offset:{c2*16384+u*8192+hh*512}", ("w1", s, u)) for u in range(2) for hh in range(2)]
    PFS = [0, 3, 10, 13, 19]
    def pass1(fill, nq):
        lds(rd_w1(0)); lds(rd_w1(1))
        early = list(fillS)
        for s in range(32):
            Tq, r8 = s >> 3, s & 7; g = 8 + Tq
            cur["step"] = s
            valu = []; dm = {}
            if r8 == 6 and Tq < 3:
                a(lg.drain())
                f2stamp(f"p1 mm{Tq}")
                if Tq == 0:
                    while early: do_fill(early.pop(0))
                if Tq == 1: W(vm.wait("eq"))
                W(vm.wait(("st", g + 1)))
                f2stamp(f"p1 vmwait{Tq}")
                a("s_barrier")
                f2stamp(f"p1 bar{Tq}")
                if OPT["wpf"] and Tq < 2: wtouch(7 + Tq)
                if Tq == 1: publish(1)
                valu = slot_adv(g + 1, vWR)
                if Tq <= OPT["early_b"]:
                    gr, tag = dma_p1(3) if Tq == 0 else wodma(Tq - 1)
                    pass1.pend = [(pre, ld, tag) for pre, ld in gr]
            if s == 30:
                assert not fill, "fillers must be done before the exchange barrier"
                a(f"ds_write_b128 v{XA1[0]}, {vr(CA[0])}")
                a(f"ds_write_b128 v{XA1[0]}, {vr(CA[1])} offset:128")
                poll_check("p1", sPB, 1)
                if "eh" in vm.q: W(vm.wait("eh"))
                W(vm.wait(("wo", 1)))
                a(lg.drain())
                a("s_barrier")
                publish(2)
                kv_loads()
                fill.extend(x_reduce(XA1, xf(4)))
            if getattr(pass1, "pend", None) and (r8 in (6, 7, 0, 1)):
                dm = {1: pass1.pend.pop(0)}
            mfs = []
            for u in range(2):
                mfs.append((([("w1", s, 1)] if u == 0 else []) if OPT["wmerge"] else [("w1", s, u)], f"{MF32} {vr(acc1(u),16)}, {vr(f1(s,u))}, {vr(xf(s))}, {vr(acc1(u),16) if s else 0}"))
                if (s & 3) == 0:
                    mfs.append(([], f"{MF16} {vr(CA[u])}, {vr(f1(s,u))}, {vr(SEL)}, {vr(CA[u]) if s else 0}"))
            last = len(mfs) - 1
            reads = []
            if s + 2 < 32:
                e = last if s == 0 else 0
                if s == 0:
                    reads = [(i_, tg, last) for i_, tg in rd_w1(2)[:2]]
                elif s == 1:
                    reads = [(i_, tg, last) for i_, tg in rd_w1(2)[2:]] + [(i_, tg, last) for i_, tg in rd_w1(3)]
                else:
                    reads = [(i_, tg, 0) for i_, tg in rd_w1(s + 2)]
            run_slots(mfs, reads, valu, dm, rper=2.0 if s > 1 else 8.0, vper=4, fill=(early if early else (fill if s >= 5 else None)), fper=(4 if early else OPT["fper"]))
            if s == 25:
                a(f"""
                s_lshl_b32 s{sPB}, s{sQB}, 8
                s_sub_i32 s{sPB}, s{sPB}, 256
                s_max_i32 s{sPB}, s{sPB}, 0
                s_add_u32 s{sPB}, s{sPB}, {WS_F}
                """)
                poll_issue("p1", sPB, 1)
        cur["step"] = None
        print("fill left after pass1:", len(fill), file=sys.stderr)
        while fill: do_fill(fill.pop(0))
    vM, vKR, vVR, vVS, vBIG = 1, 4, 5, 6, 7
    P2r = 8; KF = [16, 20]; VT = 24; P = 32; S = [40, 56]; NEG = 80; O = 96
    QF = 76; QF1 = 112; ACC3 = 112; WOF = 128
    hKR, hVR, hVS, hWRd, hAR = 176, 177, 178, 179, 180
    t0, t1, t2 = 190, 191, 175
    MP = [4 + 2 * i for i in range(10)] + [40, 42, 44, 46] + [64, 66]
    fillM = F(f"""
    v_and_b32 v{t0}, 31, v{vL}
    v_lshrrev_b32 v{t1}, 5, v{vL}
    v_lshlrev_b32 v{t2}, 2, v{t1}
    v_sub_u32 v{t2}, v{t0}, v{t2}
    """ + "\n".join(f"v_cmp_le_i32 s[{MP[r]}:{MP[r]+1}], {8*(r>>2)+(r&3)}, v{t2}" for r in range(16)) + f"""
    v_lshlrev_b32 v{hKR}, 4, v{t1}
    v_lshl_add_u32 v{hKR}, v{t0}, 5, v{hKR}
    v_bfe_u32 v{t0}, v{vL}, 2, 2
    v_lshl_add_u32 v{t0}, v{t1}, 2, v{t0}
    v_and_b32 v{t2}, 1, v{vL}
    v_lshlrev_b32 v{t2}, 4, v{t2}
    v_lshl_add_u32 v{hVR}, v{t0}, 5, v{t2}
    v_bfe_u32 v{t2}, v{vL}, 1, 1
    v_lshl_add_u32 v{hVR}, v{t2}, 3, v{hVR}
    v_lshlrev_b32 v{hWRd}, 7, v{t0}
    v_bfe_u32 v{t2}, v{vL}, 3, 1
    s_bfe_u32 s{sE0}, s{sW}, 0x10001
    v_xor_b32 v{t2}, s{sE0}, v{t2}
    v_lshl_add_u32 v{hWRd}, v{t2}, 6, v{hWRd}
    v_bfe_u32 v{t2}, v{vL}, 4, 1
    v_lshl_add_u32 v{hWRd}, v{t2}, 5, v{hWRd}
    v_and_b32 v{t2}, 3, v{vL}
    v_lshl_add_u32 v{hWRd}, v{t2}, 3, v{hWRd}
    s_lshl_b32 s{sT2}, s{sNH}, 10
    v_add_u32 v{hAR}, s{sT2}, v{vD}
    v_bfe_u32 v{t2}, v{vL}, 4, 1
    v_xor_b32 v{t2}, 1, v{t2}
    v_lshlrev_b32 v{hVS}, 10, v{t2}
    s_add_u32 s{sT1}, s{sLB}, {(LV - LONE) & 0xffffffff}
    v_mul_lo_u32 v{t0}, v{t2}, s{sT1}
    v_add_u32 v{hVR}, v{hVR}, v{t0}
    v_add_u32 v{hVR}, {LONE}, v{hVR}
    """)
    def kv_loads():
        a(f"""
        s_lshl_b32 s{sT0}, s{sQB}, 8
        s_lshl_b32 s{sT1}, s{sW}, 6
        s_add_u32 s{sT1}, s{sT1}, s{sT0}
        s_sub_i32 s{sT1}, s{sT1}, 256
        s_max_i32 s{sT1}, s{sT1}, 0
        s_lshl_b32 s{sT1}, s{sT1}, 5
        s_lshl_b32 s{sT2}, s{sHD}, 16
        s_add_u32 m0, s{sLX}, {LK}
        s_add_u32 s{sT1}, s{sT1}, s{sT2}
        s_add_u32 s{sT3}, s{sT1}, {WS_QKV + 64*65536}
        s_add_u32 s{sT1}, s{sT1}, {WS_QKV + 32*65536}
        buffer_load_dwordx4 v{vD}, {sr(SWS)}, s{sT1} offen lds
        buffer_load_dwordx4 v{vD}, {sr(SWS)}, s{sT1} offen offset:1024 lds
        s_add_u32 m0, s{sLX}, {LV}
        s_nop 0
        buffer_load_dwordx4 v{vD}, {sr(SWS)}, s{sT3} offen lds
        buffer_load_dwordx4 v{vD}, {sr(SWS)}, s{sT3} offen offset:1024 lds
        """)
        vm.issue("kv", 4)
    XA1 = [172, 173, 174, 167]
    fillM = F(xaddr(*XA1, sT1, sT2)) + fillM
    TF = xf(2)
    fillA = f_h(acc(1), acc(2), sP0, TF, "eh") + [('at', 17)] + list(fillM)
    fillB = [('at', 17)] + list(fillM)
    sv, sl0, sn = vm.save(), lg.save(), nstamp[0]
    a(f"s_cmp_eq_u32 s{sTB}, 1")
    a("s_cbranch_scc1 L_p1b")
    acc1_init()
    pass1.pend = []
    pass1(fillA, 2)
    stA = vm.save()
    a("s_branch L_e1")
    a.label("L_p1b")
    vm.restore(sv); lg.restore(sl0); nstamp[0] = sn; del SNAMES[sn:]
    for it in f_qkv(acc(1), 1, E + 12, "eq") + f_qkv(acc(2), 2, E, "eq"): do_fill(it)
    acc1_init()
    pass1.pend = []
    pass1(fillB, 6)
    stB = vm.save()
    a.label("L_e1")
    qa = [t for t in stA[0] if t not in ("eq", "eh")]; qb_ = [t for t in stB[0] if t not in ("eq", "eh")]
    if len(qb_) > len(qa): qa, qb_ = qb_, qa
    assert qa[len(qa) - len(qb_):] == qb_, (qa, qb_)
    vm.q = list(qa)
    vm.total = 1000; vm.marks = {}
    stamp(name="pass1")
    NB = 16
    def e1_body(extra):
        cs_fold(2, acc1, ACC, XA1[3])
        fe1 = f_h(acc1(0), acc1(1), sPF, ACC, "e1")
        st_last = [it for it in fe1 if it[0] == 'm']
        fe1 = [it for it in fe1 if it[0] != 'm']
        rate = len(extra) / (len(fe1) - 8); acc_ = 0.0
        for it in fe1:
            do_fill(it); acc_ += rate
            while extra and acc_ >= 1.0: extra.pop(0)(); acc_ -= 1.0
        while extra: extra.pop(0)()
        return st_last
    svv, svl, sn2 = vm.save(), lg.save(), nstamp[0]
    a(f"s_cmp_eq_u32 s{sKH}, 1")
    a("s_cbranch_scc1 L_B")
    vW0, vW1 = 10, 11
    a(f"""
    s_lshl_b32 s{sT0}, s{sQB}, 13
    s_add_u32 s{sT0}, s{sT0}, s{sLB}
    s_lshl_b32 s{sT2}, s{sHD}, 16
    s_add_u32 s{sT0}, s{sT0}, s{sT2}
    s_add_u32 s{sT0}, s{sT0}, {WS_QKV}
    buffer_load_dwordx4 {vr(QF)}, v{hKR}, {sr(SWS)}, s{sT0} offen
    buffer_load_dwordx4 {vr(QF1)}, v{hKR}, {sr(SWS)}, s{sT0} offen offset:1024
    s_add_u32 s{sT0}, s{sLB}, {LK}
    v_add_u32 v{vKR}, s{sT0}, v{hKR}
    v_mov_b32 v{vVR}, v{hVR}
    v_mov_b32 v{vVS}, v{hVS}
    v_mov_b32 v{vBIG}, {hx(2.0**OPT["fbexp"])}
    v_mov_b32 v{vW0}, v{hWRd}
    v_add_u32 v{vW1}, {SLOT}, v{hWRd}
    s_lshr_b32 s{sPB}, s{sMT}, 1
    s_lshl_b32 s{sPB}, s{sPB}, 7
    s_add_u32 s{sPB}, s{sPB}, {WS_F + 4096}
    """)
    vm.issue("q", 2)
    wof = []
    for f in range(32):
        unit, i = f >> 2, f & 3
        khp, pz, q = unit >> 2, (unit >> 1) & 1, unit & 1
        for hh in range(2):
            ins = f"ds_read_b64_tr_b16 {vr(WOF+4*f+2*hh,2)}, v{vW0 if pz == 0 else vW1} offset:{q*16384+(khp*4+i)*2048+hh*1024}"
            wof.append(lambda ins=ins: (a(ins), lg.issue("wof")))
    wof.insert(40, lambda: poll_issue("pe", sPB, 2))
    st_last = e1_body(wof)
    for it in st_last: do_fill(it)
    stamp(name="E1")
    poll_check("pe", sPB, 2)
    W(lg.wait("wof"))
    W(vm.wait("q"))
    a("s_barrier")
    stamp(name="bar0")
    def hpfA(k16base, n):
        if not OPT["hpfa"]: return
        a(f"""
        s_lshl_b32 s{sT0}, s{sCGL}, 2
        s_add_u32 s{sT0}, s{sT0}, s{sCT}
        s_mul_i32 s{sT0}, s{sT0}, {n}
        v_min_u32 v{ACC3+8}, {n-1}, v{vL}
        v_add_u32 v{ACC3+8}, s{sT0}, v{ACC3+8}
        v_and_b32 v{ACC3+9}, 15, v{ACC3+8}
        v_lshrrev_b32 v{ACC3+8}, 4, v{ACC3+8}
        v_lshlrev_b32 v{ACC3+8}, 16, v{ACC3+8}
        v_lshl_add_u32 v{ACC3+8}, v{ACC3+9}, 7, v{ACC3+8}
        s_lshl_b32 s{sT0}, s{sMT}, 11
        s_add_u32 s{sT0}, s{sT0}, {k16base << 16}
        buffer_load_dword v{ACC3+10}, v{ACC3+8}, {sr(SWS)}, s{sT0} offen
        """)
        vm.issue("hpf")
    hpfA(0, 48)
    nbar = [1]
    def abar():
        k = nbar[0]; nbar[0] += 1
        sg = k - 1
        if sg == OPT["ck3"]: poll_check("p2", sPB, 2)
        if sg == OPT["pub3"]: W(vm.wait("e1"))
        a("s_barrier")
        if sg == OPT["pub3"]: publish(3)
        if sg == OPT["ck3"]: hpfA(48, 64)
        if sg == OPT["ck3"] - 1:
            a(f"s_add_u32 s{sPB}, s{sPB}, 4096")
            poll_issue("p2", sPB, 2)
    credit = [0.0]; marks = [OPT["ab2"] + OPT["abs"] * i for i in range(20)]
    def A(ins, w=1.0):
        a(ins); credit[0] += w
        if marks and credit[0] >= marks[0] and nbar[0] < NB - OPT['apost']:
            marks.pop(0); abar()
    def mf_s(dst, kf): return f"{MF32} {vr(dst,16)}, {vr(kf)}, {vr(QF)}, {vr(NEG,16)}"
    def rdk(j, buf=None):
        a(f"ds_read_b128 {vr(KF[j & 1 if buf is None else buf])}, v{vKR} offset:{j*1024}"); lg.issue(("k", j))
    def cset(val): return "\n".join(val(r) for r in range(16))
    big = lambda r: f"v_mov_b32 v{NEG+r}, {NEGBIG}"
    negm = lambda r: f"v_sub_f32 v{NEG+r}, 0, v{vM}"
    def rdv(tag):
        for t in range(2):
            for hh in range(2):
                a(f"ds_read_b64_tr_b16 {vr(VT+4*t+2*hh,2)}, v{vVR} offset:{t*512+hh*256}"); lg.issue(tag)
    PB = [P, P2r]
    fb = Asm()
    def attention(rr):
        npv = [0]
        def pv1(p, t):
            npv[0] += 1
            return f"{MF32} {vr(O,16)}, {vr(VT+4*t)}, {vr(p+4*t)}, {vr(O,16) if npv[0] > 1 else 0}"
        rdk(8, 0); rdk(1)
        a(f"v_mov_b32 v{vM}, 0")
        W(lg.wait(("k", 8)))
        for r in range(4): a(f"v_dot2c_f32_bf16 v{vM}, v{QF+r}, v{KF[0]+r}")
        a(f"""
        v_mov_b32 v{VT}, v{vM}
        v_permlane32_swap_b32 v{vM}, v{VT}
        v_add_f32 v{vM}, v{vM}, v{VT}
        """)
        for r in range(16): A(negm(r))
        rare([f"s_cmp_gt_i32 s{sJS}, 1"], cset(big))
        for j in range(1, 9):
            if j >= 2: rare([f"s_cmp_eq_u32 s{sJS}, {j}"], cset(negm))
            W(lg.wait(("k", j)))
            a(mf_s(S[j & 1], KF[j & 1]))
            if j < 8: rdk(j + 1)
            else: rdk(0, 1)
            if j > 1:
                sx = S[(j - 1) & 1]; px = PB[(j - 1) & 1]
                ex = [f"v_exp_f32 v{sx+r}, v{sx+r}" for r in range(16)]
                cv = [f"v_cvt_pk_bf16_f32 v{px+r}, v{sx+2*r}, v{sx+2*r+1}" for r in range(8)]
                for x in ex[0:5]: A(x, 2)
                if j > 2:
                    W(lg.wait(("v", j - 2))); a(pv1(PB[j & 1], 0))
                for x in ex[5:10]: A(x, 2)
                if j > 2: a(pv1(PB[j & 1], 1))
                A(ex[10], 2); A(ex[11], 2)
                a(f"v_add_u32 v{vVR}, v{vVR}, v{vVS}")
                for q in range(4):
                    A(ex[12 + q], 2)
                    a(f"ds_read_b64_tr_b16 {vr(VT+2*q,2)}, v{vVR} offset:{(q>>1)*512+(q&1)*256}"); lg.issue(("v", j - 1))
                for x in cv: A(x)
        W(lg.wait(("k", 0)))
        a(mf_s(S[1], KF[1]))
        rare([f"s_cmp_gt_i32 s{sJS}, 0"], "s_nop 15\n" + "\n".join(f"v_mov_b32 v{S[1]+r}, {NEGBIG}" for r in range(16)))
        W(lg.wait(("v", 7)))
        a(pv1(PB[1], 0)); a(pv1(PB[1], 1))
        for r in range(16): A(f"v_cndmask_b32 v{S[0]+r}, v{S[1]+r}, v{S[0]+r}, s[{MP[r]}:{MP[r]+1}]")
        a(f"v_add_u32 v{vVR}, v{vVR}, v{vVS}")
        rdv(("v", 8))
        for r in range(16): A(f"v_exp_f32 v{S[0]+r}, v{S[0]+r}", 2)
        for r in range(16): A(f"v_cndmask_b32 v{S[1]+r}, 0, v{S[0]+r}, s[{MP[r]}:{MP[r]+1}]")
        for r in range(8): A(f"v_cvt_pk_bf16_f32 v{PB[0]+r}, v{S[1]+2*r}, v{S[1]+2*r+1}")
        W(lg.wait(("v", 8)))
        a(pv1(PB[0], 0))
        for r in range(8): A(f"v_cndmask_b32 v{S[0]+r}, v{S[0]+r}, 0, s[{MP[r]}:{MP[r]+1}]")
        a(pv1(PB[0], 1))
        a(f"v_lshlrev_b32 v{KF[0]}, 3, v{vVS}")
        a(f"v_sub_u32 v{vVR}, v{vVR}, v{KF[0]}")
        rdv(("v", 0))
        for r in range(8, 16): A(f"v_cndmask_b32 v{S[0]+r}, v{S[0]+r}, 0, s[{MP[r]}:{MP[r]+1}]")
        for r in range(8): A(f"v_cvt_pk_bf16_f32 v{PB[1]+r}, v{S[0]+2*r}, v{S[0]+2*r+1}")
        W(lg.wait(("v", 0)))
        a(pv1(PB[1], 0)); a(pv1(PB[1], 1))
        a(f"""
        s_lshl_b32 s{sE0}, s{sHD}, 16
        s_lshl_b32 s{sE1}, s{sQB}, 13
        s_add_u32 s{sE0}, s{sE0}, s{sE1}
        s_add_u32 s{sE0}, s{sE0}, s{sLB}
        s_add_u32 s{sE0}, s{sE0}, {WS_O + rr*1024}
        s_mov_b32 s{sE1}, {rr}
        v_cmp_nlt_f32 vcc, v{O+8}, v{vBIG}
        s_nop 4
        s_cbranch_vccnz L_fb
        L_fbd{rr}:
        v_rcp_f32 v{vM}, v{O+8}
        """)
        for r in range(8): a(f"v_mul_f32 v{O+r}, v{O+r}, v{vM}")
        for r in range(4): a(f"v_cvt_pk_bf16_f32 v{S[1]+r}, v{O+2*r}, v{O+2*r+1}")
        a(f"buffer_store_dwordx4 {vr(S[1])}, v{vD}, {sr(SWS)}, s{sE0} offen{SC}")
        vm.issue("o")
    if OPT["aprio"]: a(f"s_setprio {OPT['aprio']}")
    attention(0)
    for r in range(4): a(f"v_mov_b32 v{QF+r}, v{QF1+r}")
    a(f"""
    v_add_u32 v{vKR}, 0x400, v{vKR}
    v_add_u32 v{vVR}, v{vVR}, v{vVS}
    s_sub_i32 s{sJS}, s{sJS}, 1
    """)
    attention(1)
    print("barriers inside attention:", nbar[0], "credit", credit[0], file=sys.stderr)
    stamp(name="att")
    fb.label("L_fb")
    fb("s_nop 15")
    fb(f"v_mov_b32 v{vM}, {NEGBIG}")
    def fb_tile(j, c, dst):
        fb(f"ds_read_b128 {vr(KF[0])}, v{vKR} offset:{j*1024}")
        fb("s_waitcnt lgkmcnt(0)")
        fb(f"{MF32} {vr(dst,16)}, {vr(KF[0])}, {vr(QF)}, {c}")
    def fb_merged(c):
        n = U()
        for r in range(16): fb(f"v_mov_b32 v{S[1]+r}, {NEGBIG}")
        fb(f"s_cmp_gt_i32 s{sJS}, 0")
        fb(f"s_cbranch_scc1 L_fm{n}")
        fb_tile(0, c, S[1])
        fb.label(f"L_fm{n}")
        fb_tile(8, c, S[0])
        for r in range(16): fb(f"v_cndmask_b32 v{S[0]+r}, v{S[1]+r}, v{S[0]+r}, s[{MP[r]}:{MP[r]+1}]")
    def fb_max(s_):
        for r in range(0, 16, 2): fb(f"v_max3_f32 v{vM}, v{s_+r}, v{s_+r+1}, v{vM}")
    def fb_pv(j, p):
        fb(f"v_mul_u32_u24 v{KF[1]}, {j}, v{vVS}")
        fb(f"v_add_u32 v{KF[1]}, v{KF[1]}, v{vVR}")
        for q in range(4): fb(f"ds_read_b64_tr_b16 {vr(VT+2*q,2)}, v{KF[1]} offset:{(q>>1)*512+(q&1)*256}")
        fb("s_waitcnt lgkmcnt(0)")
        for t in range(2): fb(f"{MF32} {vr(O,16)}, {vr(VT+4*t)}, {vr(p+4*t)}, {vr(O,16)}")
    fb_merged("0"); fb_max(S[0])
    for j in range(1, 8):
        n = U()
        fb(f"s_cmp_gt_i32 s{sJS}, {j}"); fb(f"s_cbranch_scc1 L_fa{n}")
        fb_tile(j, "0", S[0]); fb_max(S[0])
        fb.label(f"L_fa{n}")
    fb(f"""
    v_mov_b32 v{VT}, v{vM}
    v_permlane32_swap_b32 v{vM}, v{VT}
    v_max_f32 v{vM}, v{vM}, v{VT}
    """)
    fb(cset(negm))
    for r in range(16): fb(f"v_mov_b32 v{O+r}, 0")
    fb_merged(vr(NEG, 16))
    for r in range(16): fb(f"v_exp_f32 v{S[0]+r}, v{S[0]+r}")
    for r in range(16): fb(f"v_cndmask_b32 v{S[1]+r}, 0, v{S[0]+r}, s[{MP[r]}:{MP[r]+1}]")
    for r in range(8): fb(f"v_cvt_pk_bf16_f32 v{P+r}, v{S[1]+2*r}, v{S[1]+2*r+1}")
    fb_pv(8, P)
    for r in range(16): fb(f"v_cndmask_b32 v{S[1]+r}, v{S[0]+r}, 0, s[{MP[r]}:{MP[r]+1}]")
    for r in range(8): fb(f"v_cvt_pk_bf16_f32 v{P+r}, v{S[1]+2*r}, v{S[1]+2*r+1}")
    fb_pv(0, P)
    for j in range(1, 8):
        n = U()
        fb(f"s_cmp_gt_i32 s{sJS}, {j}"); fb(f"s_cbranch_scc1 L_fc{n}")
        fb_tile(j, vr(NEG, 16), S[0])
        for r in range(16): fb(f"v_exp_f32 v{S[0]+r}, v{S[0]+r}")
        for r in range(8): fb(f"v_cvt_pk_bf16_f32 v{P+r}, v{S[0]+2*r}, v{S[0]+2*r+1}")
        fb_pv(j, P)
        fb.label(f"L_fc{n}")
    fb(f"""
    s_nop 15
    s_cmp_eq_u32 s{sE1}, 0
    s_cbranch_scc1 L_fbd0
    s_branch L_fbd1
    """)
    vXO = 4; XR = 8; vOA = 5; OFB = 16; vXD = 6; vXL = 7
    a(f"""
    s_lshl_b32 s{sT1}, s{sMT}, 16
    s_lshl_b32 s{sT2}, s{sNH}, 15
    s_add_u32 s{sT1}, s{sT1}, s{sT2}
    s_lshl_b32 s{sT2}, s{sNT}, 7
    s_add_u32 s{sT1}, s{sT1}, s{sT2}
    s_lshr_b32 s{sT2}, s{sCT}, 1
    s_lshl_b32 s{sT2}, s{sT2}, 6
    s_add_u32 s{sT1}, s{sT1}, s{sT2}
    v_and_b32 v{XR}, 31, v{vL}
    v_lshrrev_b32 v{XR+1}, 5, v{vL}
    v_lshlrev_b32 v{vXO}, 10, v{XR}
    v_lshl_add_u32 v{vXO}, v{XR+1}, 4, v{vXO}
    v_add_u32 v{vXO}, s{sT1}, v{vXO}
    v_lshlrev_b32 v{vXL}, 6, v{XR}
    v_lshl_add_u32 v{vXL}, v{XR+1}, 3, v{vXL}
    v_lshrrev_b32 v{vXD}, 2, v{vL}
    v_lshlrev_b32 v{vXD}, 10, v{vXD}
    v_and_b32 v{XR}, 3, v{vL}
    v_lshl_add_u32 v{vXD}, v{XR}, 4, v{vXD}
    s_add_u32 s{sT2}, s{sT1}, 0x4000
    s_add_u32 s{sT3}, s{sLB}, {LK}
    v_add_u32 v{vXL}, s{sT3}, v{vXL}
    s_lshl_b32 s{sE0}, s{sQB}, 2
    s_add_u32 s{sE0}, s{sE0}, s{sCT}
    s_lshl_b32 s{sE0}, s{sE0}, 7
    s_lshl_b32 s{sE1}, s{sHD}, 2
    s_add_u32 s{sE0}, s{sE0}, s{sE1}
    s_add_u32 s{sE0}, s{sE0}, {WS_F + 3*4096}
    v_mov_b32 v{vOA}, s{sTAG}
    """)
    abar()
    a(f"""
    s_mov_b32 m0, s{sT3}
    s_lshl_b32 s{sPB}, s{sMT}, 7
    buffer_load_dwordx4 v{vXD}, {sr(SX)}, s{sT1} offen lds
    s_add_u32 m0, s{sT3}, 1024
    s_add_u32 s{sPB}, s{sPB}, {WS_F + 3*4096}
    buffer_load_dwordx4 v{vXD}, {sr(SX)}, s{sT2} offen lds
    v_and_b32 v{vPO}, 31, v{vL}
    v_lshlrev_b32 v{vPO}, 2, v{vPO}
    """)
    vm.issue("x", 2)
    W(vm.wait("o"))
    a(f"""
    s_mov_b64 exec, 1
    buffer_store_dword v{vOA}, off, {sr(SWS)}, s{sE0}{SC}
    s_mov_b64 exec, -1
    s_lshl_b32 s{sE0}, s{sMT}, 11
    s_lshl_b32 s{sT1}, s{sNH}, 10
    s_add_u32 s{sE0}, s{sE0}, s{sT1}
    s_add_u32 s{sE0}, s{sE0}, {WS_O}
    v_mov_b32 v{vPOLL}, 0
    """)
    while nbar[0] < NB - 1 - OPT["pollbk"]: abar()
    if OPT["pollbk"]: a(f"buffer_load_dword v{vPOLL}, v{vPO}, {sr(SWS)}, s{sPB} offen{SC}")
    while nbar[0] < NB - 1: abar()
    stamp(name="A bars")
    a(f"""
    buffer_load_dword v{vPOLL}, v{vPO}, {sr(SWS)}, s{sPB} offen{SC}
    s_mov_b32 s{sCNT}, 0
    s_waitcnt vmcnt(1)
    L_p3:
    v_cmp_ne_u32 vcc, s{sTAG}, v{vPOLL}
    s_add_u32 s{sCNT}, s{sCNT}, 1
    s_cmp_gt_u32 s{sCNT}, 0x20000
    s_cbranch_scc1 L_p3d
    s_nop 2
    s_cbranch_vccz L_p3d
    s_sleep {OPT["psl"]}
    buffer_load_dword v{vPOLL}, v{vPO}, {sr(SWS)}, s{sPB} offen{SC}
    s_waitcnt vmcnt({OPT["pdepth"]})
    s_branch L_p3
    L_p3d:
    """)
    vm.q = []
    stamp(name="p3")
    OQ = list(range(16, 72, 4)) + list(range(76, 112, 4))
    NO = len(OQ)
    def ofr(f): return OQ[f] if f < NO else WOF + 4 * (f - NO)
    def oload(f):
        if f: a(f"s_add_u32 s{sE0}, s{sE0}, 0x10000")
        a(f"buffer_load_dwordx4 {vr(ofr(f))}, v{vD}, {sr(SWS)}, s{sE0} offen"); vm.issue(("of", f))
    for f in range(NO): oload(f)
    GX = WOF + 40
    for f in range(32):
        W(vm.wait(("of", f)))
        a(f"{MF32} {vr(ACC3,16)}, {vr(WOF+4*f)}, {vr(ofr(f))}, {vr(ACC3,16) if f else 0}")
        if f + NO < 32: oload(NO + f)
        if f == 9:
            for q in range(4): a(f"ds_read_b64 v[{XR+2*q}:{XR+2*q+1}], v{vXL} offset:{16*q}")
        if f == 13: a("s_waitcnt lgkmcnt(0)")
        if 14 <= f < 22:
            d = f - 14
            a(f"v_lshlrev_b32 v{OFB+2*d}, 16, v{XR+d}")
            a(f"v_and_b32 v{OFB+2*d+1}, 0xffff0000, v{XR+d}")
        if f == 27:
            abar()
            a(f"s_lshl_b32 s{sT1}, s{sCT}, 12")
            a(f"v_add_u32 v{vOA}, s{sT1}, v{vD}")
            for q in range(4): a(f"ds_read_b128 {vr(GX+4*q)}, v{vOA} offset:{q*1024}")
    assert nbar[0] == NB
    stamp(name="G3")
    a("s_waitcnt lgkmcnt(0)")
    TM = OFB
    for i in range(16): a(f"v_fmac_f32 v{TM+i}, v{ACC3+i}, v{GX+i}")
    for i in range(8): a(f"v_cvt_pk_bf16_f32 v{TM+16+i}, v{TM+2*i}, v{TM+2*i+1}")
    for h2 in range(2):
        T4 = TM + 16 + 4 * h2
        a(f"v_permlane32_swap_b32 v{T4}, v{T4+2}")
        a(f"v_permlane32_swap_b32 v{T4+1}, v{T4+3}")
        a(f"buffer_store_dwordx4 {vr(T4)}, v{vXO}, {sr(SOUT)}, 0 offen offset:{32*h2}")
    a("s_branch L_fin")
    nsA = nstamp[0]
    a.label("L_B")
    vm.restore(svv); lg.restore(svl); nstamp[0] = sn2
    sav_names = list(SNAMES)
    vAR, vWRd = hAR, hWRd
    vAa = [182, 183]; vWa = [184, 185]
    ACC2 = 112; GF = 128
    ex_ = []
    for pre, ld in wdma(2)[0]:
        ex_.append(lambda pre=pre: a.extend(pre)); ex_.append(lambda ld=ld: (a(ld), vm.issue(("g", 2))))
    st_last = e1_body(ex_)
    for it in st_last: do_fill(it)
    a(f"v_add_u32 v{vWRd}, 0x4000, v{vWRd}")
    stamp(name="E1")
    W(vm.wait("kv"))
    a("s_barrier")
    stamp(name="bar0")
    if OPT["bprio"]: a(f"s_setprio {OPT['bprio']}")
    for sg in range(2):
        emit_dma(wdma(sg)); emit_dma(adma(sg, calc=False))
    DB = OPT['bdist']; NR = DB + 2
    GF = 192
    def ga(n): return GF + (n % NR) * 8
    def gw(n): return GF + (n % NR) * 8 + 4
    def g_reads(n):
        sg, i = n >> 3, n & 7
        return [(f"ds_read_b128 {vr(ga(n))}, v{vAa[sg & 1]} offset:{i*2048}", ("ga", n), 0)] + \
               [(f"ds_read_b64_tr_b16 {vr(gw(n)+2*hh,2)}, v{vWa[sg & 1]} offset:{i*2048+hh*1024}", ("ga", n), 0) for hh in range(2)]
    def bst(i):
        if not (STAMP and OPT["fineb"]): return
        a("s_memtime s[92:93]"); a("s_waitcnt lgkmcnt(0)"); lg.q = []
        a(f"v_writelane_b32 v{vSTAMP}, s92, {i}")
    def bbar(sg):
        if sg > 0: W(lg.wait(("ga", 8 * sg - 1)))
        bst(20 + 3 * sg)
        if sg == OPT["pub3"]: W(vm.wait("e1"))
        W(vm.wait(("g", sg)))
        bst(21 + 3 * sg)
        a("s_barrier")
        bst(22 + 3 * sg)
        a(f"v_add_u32 v{vAa[sg & 1]}, {AREAS[sg % 3]}, v{vAR}")
        a(f"v_add_u32 v{vWa[sg & 1]}, {AREAS[sg % 3]}, v{vWRd}")
    bbar(0)
    for n in range(DB):
        for ins, tg, _ in g_reads(n): a(ins); lg.issue(tg)
    pend = [(pre, ld, ("g", 2)) for pre, ld in adma(2)[0]]
    for n in range(112):
        sg, i = n >> 3, n & 7
        if i == 8 - DB and sg < 13:
            assert not pend
            bbar(sg + 1)
            s3 = sg + 3
            if s3 < 14:
                assert s3 < 6 or sg + 1 >= OPT["ck3"]
                pend = [(pre, ld, ("g", s3)) for pre, ld in wdma(s3)[0] + adma(s3, calc=False)[0]]
        dm = {0: pend.pop(0)} if pend else {}
        mfs = [([("ga", n)], f"{MF32} {vr(ACC2,16)}, {vr(gw(n))}, {vr(ga(n))}, {vr(ACC2,16) if n else 0}")]
        run_slots(mfs, g_reads(n + DB) if n + DB < 112 else [], [], dm, rper=3.0)
        for _ in range(OPT["bdma"] - 1):
            if pend:
                pre, ld, tg = pend.pop(0); a.extend(pre); a(ld); vm.issue(tg)
    stamp(name="att")
    Tz = GF
    for i in range(16): a(f"v_mul_f32 v{Tz+i}, {hx(-LOG2E)}, v{ACC2+i}")
    for i in range(16): a(f"v_exp_f32 v{Tz+i}, v{Tz+i}")
    a(f"""
    s_lshl_b32 s{sT1}, s{sCT}, 12
    v_add_u32 v{vAa[0]}, s{sT1}, v{vD}
    """)
    for i in range(16): a(f"v_add_f32 v{Tz+i}, 1.0, v{Tz+i}")
    for i in range(16): a(f"v_rcp_f32 v{Tz+i}, v{Tz+i}")
    for i in range(16): a(f"v_mul_f32 v{Tz+i}, v{ACC2+i}, v{Tz+i}")
    for q in range(4): a(f"ds_write_b128 v{vAa[0]}, {vr(Tz+4*q)} offset:{q*1024}")
    a("s_waitcnt lgkmcnt(0)")
    a("s_barrier")
    while nstamp[0] < nsA: stamp(name="")
    SNAMES[:] = sav_names
    a.label("L_fin")
    TM = 16
    if STAMP:
        stamp(name="final"); stamp(True)
        a(f"""
        s_lshl_b32 s{sT0}, s2, 3
        s_add_u32 s{sT0}, s{sT0}, s{sW}
        s_lshl_b32 s{sT0}, s{sT0}, 8
        s_add_u32 s{sT0}, s{sT0}, {WS_STAMP}
        s_mov_b32 s{SWS+2}, {WS_STAMP + (1 << 20)}
        v_lshlrev_b32 v{TM}, 2, v{vL}
        buffer_store_dword v{vSTAMP}, v{TM}, {sr(SWS)}, s{sT0} offen
        """)
        if OPT["dbgst"]:
            a(f"""
            s_lshl_b32 s{sT0}, s2, 3
            s_add_u32 s{sT0}, s{sT0}, s{sW}
            s_cmp_eq_u32 s{sT0}, {OPT["dbgst"]}
            s_cbranch_scc0 L_end
            v_add_u32 v{TM}, 4, v{TM}
            s_mov_b64 exec, 0x7fff
            buffer_store_dword v{vSTAMP}, v{TM}, {sr(SDBG)}, 0 offen
            """)
        print("stamps:", nstamp[0], file=sys.stderr)
        open("snames.txt", "w").write("\n".join(SNAMES))
    a.label("L_end")
    a("s_endpgm")
    a.items += ool.items
    a.label("L_code_end")
    a.items += fb.items
    return dict(lds=LDS_TOTAL, vgpr=256, sgpr=100)

HEADER = open("cdna_kernels/%s.s.ref" % NAME).read().split("; Override launch")[0]

def build(path):
    a = Asm(); info = gen(a)
    items = []; inside = False; inm = False
    for k, x in a.items:
        if k == 'l' and x == "X_begin": inside = True
        if k == 'l' and x == "X_end": inside = False
        if k == 'l' and x == "M_begin": inm = True
        if k == 'l' and x == "M_end": inm = False
        if inm and k == 'i':
            if OPT["m_nodma"] and x.startswith("buffer_load") and x.endswith("lds"): continue
            if OPT["m_noexp"] and x.startswith("v_exp"): continue
            if OPT["m_nobar"] and x.startswith("s_barrier"): continue
        if inside and k == 'i':
            if OPT["x_nodma"] and x.startswith("buffer_load") and x.endswith("lds"): continue
            if OPT["x_nomfma"] and x.startswith("v_mfma"): continue
            if OPT["x_nords"] and x.startswith("ds_read"): continue
            if OPT["x_nostat"] and re.match(r"(v_fmac_f32 v1[67]|v_add_f32 v1[45]|v_lshlrev_b32 v18, 16|v_and_b32 v19, 0xffff0000)", x): continue
        if k == 'i' and OPT["x_nocs"] and x.startswith("v_mfma_f32_16x16x32"): continue
        items.append((k, x))
    a.items = items
    txt = a.render()
    label = NAME + "_kernel"
    n = sum(1 for k, _ in a.items if k == 'i')
    print("instrs", n, "nops", a.nnop, file=sys.stderr)
    out = HEADER + f"; @launch grid=(256,1,1) block=(512,1,1) lds={info['lds']}\n"
    out += '.amdgcn_target "amdgcn-amd-amdhsa--gfx950"\n.text\n'
    out += f".globl {label}\n.p2align 8\n.type {label},@function\n{label}:\n"
    out += txt.replace("CODE_BYTES", "(L_code_end - L_pc)")
    out += f""".section .rodata,"a"
.p2align 6
.amdhsa_kernel {label}
  .amdhsa_next_free_vgpr {info['vgpr']}
  .amdhsa_next_free_sgpr {info['sgpr']}
  .amdhsa_accum_offset {info['vgpr']}
  .amdhsa_group_segment_fixed_size 0
  .amdhsa_kernarg_size 80
  .amdhsa_user_sgpr_count 2
  .amdhsa_user_sgpr_kernarg_segment_ptr 1
  .amdhsa_system_sgpr_workgroup_id_x 1
.end_amdhsa_kernel
"""
    open(path, "w").write(out)

if __name__ == "__main__":
    path = sys.argv[1]
    for arg in sys.argv[2:]:
        if arg == "stamp": STAMP = True
        elif "=" in arg:
            k, v = arg.split("="); assert k in OPT, k; OPT[k] = int(v)
    build(path)
```
